```python
import torch

def _softmax(x, axis=-1):
    return torch.softmax(x, dim=axis)
def _gelu(x):
    return torch.nn.functional.gelu(x, approximate="tanh")
def _silu(x):
    return torch.nn.functional.silu(x)
def _sigmoid(x):
    return torch.sigmoid(x)
def _layernorm(x, axis=-1, eps=1e-5):
    m = x.mean(dim=axis, keepdim=True)
    v = x.var(dim=axis, keepdim=True, unbiased=False)
    return (x - m) / torch.sqrt(v + eps)
def _scatter_add(tgt, idx, src, axis=0):
    return tgt.clone().index_add_(axis, idx, src)
def _segment_sum(src, seg, n):
    out = torch.zeros((n,) + src.shape[1:], dtype=src.dtype)
    return out.index_add_(0, seg, src)
def _pad(x, pw):
    flat = tuple(v for pair in reversed(pw) for v in pair)
    return torch.nn.functional.pad(x, flat)

kernel_name = 'standalone__spectral_fnet__prompt'

def setup_inputs():

    _w = (lambda a: (lambda t: t.to(torch.bfloat16) if t.is_floating_point() else t)(torch.as_tensor(a)))
    B, S, D = 1, 2048, 448
    ns = torch.arange(S)[:, None] * torch.arange(S)[None, :]
    nd = torch.arange(D)[:, None] * torch.arange(D)[None, :]
    Ws_re = torch.cos(-2.0 * torch.pi * ns / S).to(float)
    Ws_im = torch.sin(-2.0 * torch.pi * ns / S).to(float)
    Wd_re = torch.cos(-2.0 * torch.pi * nd / D).to(float)
    Wd_im = torch.sin(-2.0 * torch.pi * nd / D).to(float)
    return {
        "x": _w((lambda *s: torch.randn(*s, dtype=torch.bfloat16) * 0.05)(B, S, D)),
        "dft_seq_re": _w(Ws_re),
        "dft_seq_im": _w(Ws_im),
        "dft_hid_re": _w(Wd_re),
        "dft_hid_im": _w(Wd_im),
    }

def reference(x, dft_seq_re, dft_seq_im, dft_hid_re, dft_hid_im):
    a = torch.einsum("bsd,ed->bse", x, dft_hid_re)
    b = torch.einsum("bsd,ed->bse", x, dft_hid_im)
    y = torch.einsum("ts,bse->bte", dft_seq_re, a) - torch.einsum("ts,bse->bte", dft_seq_im, b)
    return y
```

```python
import sys

HEADER = """; Kernarg layout for this problem (64 bytes, ptrs only, base s[0:1]):
"""

X_BYTES = 2048 * 448 * 2
C_BYTES = 2048 * 2048 * 2
D_BYTES = 448 * 448 * 2
PQ_BYTES = 2 * 128 * 28 * 1024
DOFF = PQ_BYTES
DF_BYTES = 28 * 28 * 1024
WS_BYTES = PQ_BYTES + DF_BYTES


class Asm:
    def __init__(self):
        self.lines = []

    def __call__(self, s):
        self.lines.append("    " + s)

    def label(self, s):
        self.lines.append(s + ":")

    def raw(self, s):
        self.lines.append(s)

    def text(self):
        return "\n".join(self.lines) + "\n"


def srd(a, d, b, nbytes):
    a(f"s_mov_b32 s{d}, s{b}")
    a(f"s_and_b32 s{d+1}, s{b+1}, 0xffff")
    a(f"s_mov_b32 s{d+2}, {nbytes}")
    a(f"s_mov_b32 s{d+3}, 0x20000")


def interleave(main, fill, per=2):
    out = []
    fi = 0

    def put(x):
        if isinstance(x, list):
            out.extend(x)
        else:
            out.append(x)
    for m in main:
        out.append(m)
        for _ in range(per):
            if fi < len(fill):
                put(fill[fi])
                fi += 1
    for x in fill[fi:]:
        put(x)
    return out


def flat(l):
    out = []
    for x in l:
        if isinstance(x, list):
            out.extend(x)
        else:
            out.append(x)
    return out


NSLOT = 5
SLOT = 30720
XOFF = 16384
NSTAGE = 16


def gen_k1(a):
    name = "fnet_k1_kernel"
    a.raw(f".globl {name}")
    a.raw(".p2align 8")
    a.raw(f".type {name},@function")
    a.label(name)
    sX, sC, sWS, sDr, sDi = 16, 20, 24, 28, 32
    sW = 36
    sCo = 37
    sXo = 38
    sM0C = 39
    sSlotW = 40
    sSlotR = 41
    sIt = 42
    sT0 = 43
    sT1 = 44
    sH, sRB, sJ = 45, 46, 47
    sMask = 48
    sWk, sWm = 50, 51
    sF = 52
    sStg = 53
    sCoE, sXoE = 54, 55
    sOOB = 56
    sWC, sWX = 57, 58

    vLane = 1
    vOC = 2
    vOX = 6
    vCb0 = 10
    vXb0 = 11
    vCb = 13
    vXb = 14
    vT = 16
    vDp = 20
    vDo = 24
    FR = 28
    ACC = 116

    def cfrag(s, n):
        b = FR + s * 44 + n * 4
        return b

    def xfrag(s, m):
        b = FR + s * 44 + 16 + m * 4
        return b

    def acc(m, n):
        return ACC + (m * 4 + n) * 4

    a("s_cmp_ge_u32 s2, 256")
    a("s_cbranch_scc1 L_k1_done")
    a("s_load_dwordx8 s[4:11], s[0:1], 0")
    a("s_load_dwordx2 s[12:13], s[0:1], 32")
    a("s_load_dwordx2 s[14:15], s[0:1], 56")
    a(f"v_lshrrev_b32 v{vT}, 6, v0")
    a(f"v_and_b32 v{vLane}, 63, v0")
    a(f"v_readfirstlane_b32 s{sW}, v{vT}")
    a(f"s_and_b32 s{sT0}, s2, 7")
    a(f"s_lshr_b32 s{sT1}, s2, 3")
    a(f"s_and_b32 s{sH}, s{sT0}, 1")
    a(f"s_lshr_b32 s{sRB}, s{sT0}, 1")
    a(f"s_lshr_b32 s{sJ}, s{sT1}, 2")
    a(f"s_lshl_b32 s{sJ}, s{sJ}, 2")
    a(f"s_add_u32 s{sRB}, s{sRB}, s{sJ}")
    a(f"s_and_b32 s{sJ}, s{sT1}, 3")
    a(f"s_and_b32 s{sWk}, s{sW}, 1")
    a(f"s_lshr_b32 s{sWm}, s{sW}, 1")
    a(f"s_lshl_b32 s{sCo}, s{sRB}, 18")
    a(f"s_lshl_b32 s{sT0}, s{sWk}, 17")
    a(f"s_add_u32 s{sCo}, s{sCo}, s{sT0}")
    a(f"s_lshl_b32 s{sT0}, s{sH}, 11")
    a(f"s_add_u32 s{sCo}, s{sCo}, s{sT0}")
    a(f"s_mul_i32 s{sXo}, s{sH}, {1024*896}")
    a(f"s_mul_i32 s{sT0}, s{sJ}, 224")
    a(f"s_add_u32 s{sXo}, s{sXo}, s{sT0}")
    a(f"s_lshl_b32 s{sWC}, s{sW}, 12")
    a(f"s_mul_i32 s{sWX}, s{sW}, 3584")
    a(f"s_add_u32 s{sWX}, s{sWX}, {XOFF}")
    a(f"s_mov_b32 s{sMask}, -1")
    a(f"s_mov_b32 s{sMask+1}, 0")
    a(f"s_mov_b32 s{sOOB}, 0x7f000000")
    a(f"v_lshrrev_b32 v{vT}, 3, v{vLane}")
    a(f"v_lshlrev_b32 v{vT}, 12, v{vT}")
    a(f"v_and_b32 v{vT+1}, 7, v{vLane}")
    a(f"v_lshrrev_b32 v{vT+2}, 4, v{vLane}")
    a(f"v_xor_b32 v{vT+1}, v{vT+1}, v{vT+2}")
    a(f"v_lshl_add_u32 v{vOC}, v{vT+1}, 4, v{vT}")
    a(f"v_xor_b32 v{vT+1}, 4, v{vT+1}")
    a(f"v_lshl_add_u32 v{vOC+1}, v{vT+1}, 4, v{vT}")
    a(f"v_add_u32 v{vOC+1}, {8*4096-1024}, v{vOC+1}")
    a(f"v_add_u32 v{vOC+2}, {16*4096-2048}, v{vOC}")
    a(f"v_add_u32 v{vOC+3}, {16*4096-2048}, v{vOC+1}")
    a(f"s_mul_i32 s{sT0}, s{sW}, 224")
    a(f"s_mov_b32 s{sT1}, 4682")
    for q in range(4):
        a(f"v_add_u32 v{vT}, s{sT0}, v{vLane}")
        if q:
            a(f"v_add_u32 v{vT}, {64*q}, v{vT}")
        a(f"v_mul_lo_u32 v{vT+1}, v{vT}, s{sT1}")
        a(f"v_lshrrev_b32 v{vT+1}, 16, v{vT+1}")
        a(f"v_mul_u32_u24 v{vT+2}, 14, v{vT+1}")
        a(f"v_sub_u32 v{vT+2}, v{vT}, v{vT+2}")
        a(f"v_lshrrev_b32 v{vT+3}, 1, v{vT+1}")
        a(f"v_and_b32 v{vT+3}, 4, v{vT+3}")
        a(f"v_xor_b32 v{vT+1}, v{vT+1}, v{vT+3}")
        a(f"v_mul_u32_u24 v{vT+1}, 896, v{vT+1}")
        a(f"v_lshl_add_u32 v{vOX+q}, v{vT+2}, 4, v{vT+1}")
        if q:
            a(f"v_subrev_u32 v{vOX+q}, {1024*q}, v{vOX+q}")
    for c in range(1024):
        assert (c * 4682) >> 16 == c // 14
    a("s_waitcnt lgkmcnt(0)")
    srd(a, sX, 4, X_BYTES)
    a(f"s_cmp_ge_u32 s{sW}, 2")
    a(f"s_cselect_b32 s{sC}, s8, s6")
    a(f"s_cselect_b32 s{sC+1}, s9, s7")
    a(f"s_and_b32 s{sC+1}, s{sC+1}, 0xffff")
    a(f"s_mov_b32 s{sC+2}, {C_BYTES}")
    a(f"s_mov_b32 s{sC+3}, 0x20000")
    srd(a, sWS, 14, WS_BYTES)
    srd(a, sDr, 10, D_BYTES)
    srd(a, sDi, 12, D_BYTES)

    def dma_stage(slot_expr, co, xo):
        ins = []
        ins.append(f"s_add_u32 m0, s{slot_expr}, s{sWC}")
        ins.append("s_nop 0")
        for q in range(4):
            ins.append(f"buffer_load_dwordx4 v{vOC+q}, s[{sC}:{sC+3}], s{co} offen offset:{q*1024} lds")
        ins.append(f"s_add_u32 m0, s{slot_expr}, s{sWX}")
        ins.append("s_nop 0")
        for q in range(3):
            ins.append(f"buffer_load_dwordx4 v{vOX+q}, s[{sX}:{sX+3}], s{xo} offen offset:{q*1024} lds")
        ins.append([f"s_mov_b64 exec, s[{sMask}:{sMask+1}]",
                    f"buffer_load_dwordx4 v{vOX+3}, s[{sX}:{sX+3}], s{xo} offen offset:3072 lds",
                    "s_mov_b64 exec, -1"])
        return ins

    a(f"s_mov_b32 s{sSlotW}, 0")
    for st in range(NSLOT):
        for i in flat(dma_stage(sSlotW, sCo, sXo)):
            a(i)
        a(f"s_add_u32 s{sCo}, s{sCo}, 128")
        a(f"s_add_u32 s{sXo}, s{sXo}, {64*896}")
        a(f"s_add_u32 s{sSlotW}, s{sSlotW}, {SLOT}")
    a(f"s_mov_b32 s{sSlotW}, 0")
    a(f"s_mov_b32 s{sStg}, {NSLOT}")

    a(f"s_lshl_b32 s{sF}, s2, 2")
    a(f"s_add_u32 s{sF}, s{sF}, s{sW}")
    a(f"s_mul_i32 s{sT0}, s{sF}, 2341")
    a(f"s_lshr_b32 s{sT0}, s{sT0}, 16")
    a(f"s_mul_i32 s{sT1}, s{sT0}, 28")
    a(f"s_sub_u32 s{sT1}, s{sF}, s{sT1}")
    for f in range(1024):
        assert (f * 2341) >> 16 == f // 28
    a(f"s_mul_i32 s{sT0}, s{sT0}, {16*896}")
    a(f"s_lshl_b32 s{sT1}, s{sT1}, 5")
    a(f"s_add_u32 s{sT0}, s{sT0}, s{sT1}")
    a(f"v_and_b32 v{vT}, 15, v{vLane}")
    a(f"v_mul_u32_u24 v{vT}, 896, v{vT}")
    a(f"v_lshrrev_b32 v{vT+1}, 4, v{vLane}")
    a(f"v_lshl_add_u32 v{vT}, v{vT+1}, 3, v{vT}")
    a(f"buffer_load_dwordx2 v[{vDp}:{vDp+1}], v{vT}, s[{sDr}:{sDr+3}], s{sT0} offen")
    a(f"buffer_load_dwordx2 v[{vDp+2}:{vDp+3}], v{vT}, s[{sDi}:{sDi+3}], s{sT0} offen")
    NEXTRA = 2

    a(f"v_and_b32 v{vT}, 15, v{vLane}")
    a(f"v_lshrrev_b32 v{vT+1}, 4, v{vLane}")
    a(f"s_lshl_b32 s{sT0}, s{sWk}, 2")
    a(f"v_add_u32 v{vT+2}, s{sT0}, v{vT+1}")
    a(f"v_lshrrev_b32 v{vT+3}, 1, v{vT}")
    a(f"v_xor_b32 v{vT+2}, v{vT+2}, v{vT+3}")
    a(f"v_lshlrev_b32 v{vT+2}, 4, v{vT+2}")
    a(f"v_lshl_add_u32 v{vCb0}, v{vT}, 7, v{vT+2}")
    a(f"s_lshl_b32 s{sT0}, s{sWm}, 12")
    a(f"v_add_u32 v{vCb0}, s{sT0}, v{vCb0}")
    a(f"v_lshlrev_b32 v{vT+2}, 3, v{vT+1}")
    a(f"v_lshrrev_b32 v{vT+3}, 2, v{vT}")
    a(f"v_add_u32 v{vT+2}, v{vT+2}, v{vT+3}")
    a(f"s_lshl_b32 s{sT0}, s{sWk}, 5")
    a(f"v_add_u32 v{vT+2}, s{sT0}, v{vT+2}")
    a(f"v_and_b32 v{vT+3}, 1, v{vT+1}")
    a(f"v_lshlrev_b32 v{vT+3}, 2, v{vT+3}")
    a(f"v_add_u32 v{vXb0}, v{vT+2}, v{vT+3}")
    a(f"v_xor_b32 v{vT+3}, 4, v{vT+3}")
    a(f"v_add_u32 v{vXb0+1}, v{vT+2}, v{vT+3}")
    a(f"v_and_b32 v{vT}, 3, v{vT}")
    a(f"v_lshlrev_b32 v{vT}, 3, v{vT}")
    a(f"v_add_u32 v{vT}, {XOFF}, v{vT}")
    a(f"v_mov_b32 v{vT+1}, 224")
    a(f"v_mad_u32_u24 v{vXb0}, v{vXb0}, v{vT+1}, v{vT}")
    a(f"v_mad_u32_u24 v{vXb0+1}, v{vXb0+1}, v{vT+1}, v{vT}")
    for r in range(112):
        a(f"v_mov_b32 v{ACC+r}, 0")

    def frag_reads(s):
        ins = []
        def xr(m):
            return [f"ds_read_b64_tr_b16 v[{xfrag(s,m)}:{xfrag(s,m)+1}], v{vXb} offset:{m*32}",
                    f"ds_read_b64_tr_b16 v[{xfrag(s,m)+2}:{xfrag(s,m)+3}], v{vXb+1} offset:{m*32}"]
        ins += xr(0)
        for n in range(4):
            pq, tl = n >> 1, n & 1
            ins.append(f"ds_read_b128 v[{cfrag(s,n)}:{cfrag(s,n)+3}], v{vCb} offset:{pq*8192+tl*2048}")
        for m in range(1, 7):
            ins += xr(m)
        return ins

    def set_read_bases(slot_sgpr):
        return [f"v_add_u32 v{vCb}, s{slot_sgpr}, v{vCb0}",
                f"v_add_u32 v{vXb}, s{slot_sgpr}, v{vXb0}",
                f"v_add_u32 v{vXb+1}, s{slot_sgpr}, v{vXb0+1}"]

    def mfmas(s):
        return [f"v_mfma_f32_16x16x32_bf16 v[{acc(m,n)}:{acc(m,n)+3}], v[{xfrag(s,m)}:{xfrag(s,m)+3}], "
                f"v[{cfrag(s,n)}:{cfrag(s,n)+3}], v[{acc(m,n)}:{acc(m,n)+3}]"
                for m in range(7) for n in range(4)]

    a(f"s_mov_b32 s{sSlotR}, 0")
    for i in set_read_bases(sSlotR):
        a(i)
    a(f"s_waitcnt vmcnt({(NSLOT-1)*8+NEXTRA})")
    a("s_barrier")
    for i in frag_reads(0):
        a(i)
    a(f"s_mov_b32 s{sIt}, 0")

    a.label("L_k1_loop")
    for s in range(2):
        a(f"s_add_u32 s{sSlotR}, s{sSlotR}, {SLOT}")
        a(f"s_cmp_eq_u32 s{sSlotR}, {SLOT*NSLOT}")
        a(f"s_cselect_b32 s{sSlotR}, 0, s{sSlotR}")
        a(f"s_cmp_lt_u32 s{sStg}, {NSTAGE}")
        a(f"s_cselect_b32 s{sCoE}, s{sCo}, s{sOOB}")
        a(f"s_cselect_b32 s{sXoE}, s{sXo}, s{sOOB}")
        for i in set_read_bases(sSlotR):
            a(i)
        a(f"s_waitcnt vmcnt({(NSLOT-2)*8}) lgkmcnt(0)")
        a("s_barrier")
        fill = frag_reads(1 - s) + dma_stage(sSlotW, sCoE, sXoE)
        fill += [f"s_add_u32 s{sCo}, s{sCo}, 128",
                 f"s_add_u32 s{sXo}, s{sXo}, {64*896}",
                 f"s_add_u32 s{sStg}, s{sStg}, 1",
                 f"s_add_u32 s{sSlotW}, s{sSlotW}, {SLOT}",
                 f"s_cmp_eq_u32 s{sSlotW}, {SLOT*NSLOT}",
                 f"s_cselect_b32 s{sSlotW}, 0, s{sSlotW}"]
        for i in interleave(mfmas(s), fill, per=2):
            a(i)
    a(f"s_add_u32 s{sIt}, s{sIt}, 1")
    a(f"s_cmp_lt_u32 s{sIt}, {NSTAGE//2}")
    a("s_cbranch_scc1 L_k1_loop")

    a("s_waitcnt vmcnt(0) lgkmcnt(0)")
    a("s_barrier")
    a(f"s_mul_i32 s{sT0}, s{sW}, 14336")
    a(f"s_xor_b32 s{sT1}, s{sW}, 1")
    a(f"s_mul_i32 s{sT1}, s{sT1}, 14336")
    a(f"v_lshlrev_b32 v{vT}, 4, v{vLane}")
    a(f"v_add_u32 v{vT+1}, s{sT1}, v{vT}")
    a(f"v_add_u32 v{vT}, s{sT0}, v{vT}")
    a(f"s_cmp_eq_u32 s{sWk}, 0")
    a("s_cbranch_scc0 L_k1_epi1")
    for wk in range(2):
        if wk == 1:
            a.label("L_k1_epi1")
        give = 1 - wk
        keep = wk
        idx = 0
        for m in range(7):
            for pq in range(2):
                r = acc(m, pq * 2 + give)
                a(f"ds_write_b128 v{vT}, v[{r}:{r+3}] offset:{idx*1024}")
                idx += 1
        a("s_waitcnt lgkmcnt(0)")
        a("s_barrier")
        idx = 0
        for m in range(7):
            for pq in range(2):
                r = FR + idx * 4
                a(f"ds_read_b128 v[{r}:{r+3}], v{vT+1} offset:{idx*1024}")
                idx += 1
        a(f"s_lshl_b32 s{sT0}, s{sH}, 7")
        a(f"s_lshl_b32 s{sT1}, s{sRB}, 2")
        a(f"s_add_u32 s{sT0}, s{sT0}, s{sT1}")
        a(f"s_lshl_b32 s{sT1}, s{sWm}, 1")
        a(f"s_add_u32 s{sT0}, s{sT0}, s{sT1}")
        a(f"s_add_u32 s{sT0}, s{sT0}, {keep}")
        a(f"s_mul_i32 s{sT0}, s{sT0}, 28")
        a(f"s_mul_i32 s{sT1}, s{sJ}, 7")
        a(f"s_add_u32 s{sT0}, s{sT0}, s{sT1}")
        a(f"s_lshl_b32 s{sT0}, s{sT0}, 10")
        a(f"v_lshlrev_b32 v{vT+2}, 4, v{vLane}")
        a(f"v_add_u32 v{vT+3}, 4096, v{vT+2}")
        idx = 0
        for m in range(7):
            a(f"s_waitcnt lgkmcnt({12-2*m})")
            for pq in range(2):
                r = FR + idx * 4
                ac = acc(m, pq * 2 + keep)
                for k in range(4):
                    a(f"v_add_f32 v{ac+k}, v{ac+k}, v{r+k}")
                idx += 1
            p = acc(m, keep)
            q = acc(m, 2 + keep)
            o = FR + 56 + m * 4
            a(f"v_cvt_pk_bf16_f32 v{o}, v{p}, v{p+1}")
            a(f"v_cvt_pk_bf16_f32 v{o+1}, v{p+2}, v{p+3}")
            a(f"v_cvt_pk_bf16_f32 v{o+2}, v{q}, v{q+1}")
            a(f"v_cvt_pk_bf16_f32 v{o+3}, v{q+2}, v{q+3}")
            vo = vT + 2 if m < 4 else vT + 3
            a(f"buffer_store_dwordx4 v[{o}:{o+3}], v{vo}, s[{sWS}:{sWS+3}], s{sT0} offen offset:{(m%4)*1024}")
        if wk == 0:
            a("s_branch L_k1_epi2")
    a.label("L_k1_epi2")
    a(f"s_cmp_ge_u32 s{sF}, 784")
    a("s_cbranch_scc1 L_k1_done")
    a(f"v_xor_b32 v{vDp+2}, 0x80008000, v{vDp+2}")
    a(f"v_xor_b32 v{vDp+3}, 0x80008000, v{vDp+3}")
    a(f"s_lshl_b32 s{sT0}, s{sF}, 10")
    a(f"s_add_u32 s{sT0}, s{sT0}, {DOFF}")
    a(f"buffer_store_dwordx4 v[{vDp}:{vDp+3}], v{vT+2}, s[{sWS}:{sWS+3}], s{sT0} offen")
    a.label("L_k1_done")
    a("s_endpgm")
    return name, 228, 0, NSLOT * SLOT


def gen_k2(a):
    name = "fnet_k2_kernel"
    a.raw(f".globl {name}")
    a.raw(".p2align 8")
    a.raw(f".type {name},@function")
    a.label(name)
    sWS, sOut = 8, 12
    sW = 16
    sT0, sT1 = 17, 18
    sTB, sJ = 19, 20
    sPQ = 24
    sD = 28
    vLane = 1
    vO = 2
    vT = 4
    PQR = 8
    ACC = 120

    def pq(ml, h, tl):
        return PQR + ((ml * 2 + h) * 2 + tl) * 4

    def df(ml, et):
        return (ml * 7 + et) * 4

    def acc(et, tl):
        return ACC + (et * 2 + tl) * 4

    a("s_cmp_ge_u32 s2, 256")
    a("s_cbranch_scc1 L_k2_done")
    a("s_load_dwordx2 s[4:5], s[0:1], 56")
    a("s_load_dwordx2 s[6:7], s[0:1], 40")
    a(f"v_lshrrev_b32 v{vT}, 6, v0")
    a(f"v_and_b32 v{vLane}, 63, v0")
    a(f"v_readfirstlane_b32 s{sW}, v{vT}")
    a(f"s_and_b32 s{sT0}, s2, 7")
    a(f"s_lshr_b32 s{sT1}, s2, 3")
    a(f"s_lshr_b32 s{sTB}, s{sT1}, 2")
    a(f"s_lshl_b32 s{sTB}, s{sTB}, 3")
    a(f"s_add_u32 s{sTB}, s{sTB}, s{sT0}")
    a(f"s_and_b32 s{sJ}, s{sT1}, 3")
    a(f"v_lshlrev_b32 v{vO}, 4, v{vLane}")
    a(f"v_add_u32 v{vO+1}, 4096, v{vO}")
    a(f"s_mul_i32 s{sT0}, s{sW}, 7")
    a(f"s_mul_i32 s{sT1}, s{sTB}, 56")
    a(f"s_add_u32 s{sT1}, s{sT1}, s{sT0}")
    a(f"s_lshl_b32 s{sT1}, s{sT1}, 10")
    for h in range(2):
        for tl in range(2):
            a(f"s_add_u32 s{sPQ+h*2+tl}, s{sT1}, {(h*128+tl)*28*1024}")
    a(f"s_mul_i32 s{sT1}, s{sJ}, 196")
    a(f"s_add_u32 s{sT1}, s{sT1}, s{sT0}")
    a(f"s_lshl_b32 s{sT1}, s{sT1}, 10")
    for et in range(7):
        a(f"s_add_u32 s{sD+et}, s{sT1}, {DOFF + et*28*1024}")
    a("s_waitcnt lgkmcnt(0)")
    srd(a, sWS, 4, WS_BYTES)
    srd(a, sOut, 6, X_BYTES)

    def loads(ml):
        ins = []
        vo = vO if ml < 4 else vO + 1
        off = (ml % 4) * 1024
        for h in range(2):
            for tl in range(2):
                r = pq(ml, h, tl)
                ins.append(f"buffer_load_dwordx4 v[{r}:{r+3}], v{vo}, s[{sWS}:{sWS+3}], s{sPQ+h*2+tl} offen offset:{off}")
        for et in range(7):
            r = df(ml, et)
            ins.append(f"buffer_load_dwordx4 a[{r}:{r+3}], v{vo}, s[{sWS}:{sWS+3}], s{sD+et} offen offset:{off}")
        return ins

    def mfmas(ml):
        return [f"v_mfma_f32_16x16x32_bf16 v[{acc(et,tl)}:{acc(et,tl)+3}], a[{df(ml,et)}:{df(ml,et)+3}], "
                f"v[{pq(ml,h,tl)}:{pq(ml,h,tl)+3}], v[{acc(et,tl)}:{acc(et,tl)+3}]"
                for h in range(2) for et in range(7) for tl in range(2)]

    for ml in range(5):
        for i in loads(ml):
            a(i)
    for r in range(56):
        a(f"v_mov_b32 v{ACC+r}, 0")
    a("s_waitcnt vmcnt(44)")
    for i in interleave(mfmas(0), loads(5), per=1):
        a(i)
    a("s_waitcnt vmcnt(44)")
    for i in interleave(mfmas(1), loads(6), per=1):
        a(i)
    for ml in range(2, 7):
        a(f"s_waitcnt vmcnt({(6-ml)*11})")
        for i in mfmas(ml):
            a(i)
    a(f"s_mul_i32 s{sT0}, s{sW}, 14336")
    a(f"v_add_u32 v{vT}, s{sT0}, v{vO}")
    a("s_nop 7")
    for t in range(14):
        a(f"ds_write_b128 v{vT}, v[{ACC+t*4}:{ACC+t*4+3}] offset:{t*1024}")
    a("s_waitcnt lgkmcnt(0)")
    a("s_barrier")
    a(f"s_lshl_b32 s{sT0}, s{sW}, 10")
    a(f"v_add_u32 v{vT}, s{sT0}, v{vO}")
    R = PQR
    for q in range(4):
        for p in range(4):
            r = R + (q * 4 + p) * 4
            a(f"ds_read_b128 v[{r}:{r+3}], v{vT} offset:{p*14336+q*4096}")
    a(f"v_and_b32 v{vT+1}, 15, v{vLane}")
    a(f"v_mul_u32_u24 v{vT+1}, 896, v{vT+1}")
    a(f"v_lshrrev_b32 v{vT+2}, 4, v{vLane}")
    a(f"v_lshl_add_u32 v{vT+1}, v{vT+2}, 3, v{vT+1}")
    a(f"s_and_b32 s{sT0}, s{sW}, 1")
    a(f"s_lshl_b32 s{sT0}, s{sT0}, 4")
    a(f"s_lshl_b32 s{sT1}, s{sTB}, 5")
    a(f"s_add_u32 s{sT0}, s{sT0}, s{sT1}")
    a(f"s_mul_i32 s{sT0}, s{sT0}, 896")
    a(f"s_mul_i32 s{sT1}, s{sJ}, 224")
    a(f"s_add_u32 s{sT0}, s{sT0}, s{sT1}")
    a(f"s_lshr_b32 s{sT1}, s{sW}, 1")
    a(f"s_lshl_b32 s{sT1}, s{sT1}, 5")
    a(f"s_add_u32 s{sT0}, s{sT0}, s{sT1}")
    for q in range(4):
        if q == 3:
            a(f"s_cmp_ge_u32 s{sW}, 2")
            a("s_cbranch_scc1 L_k2_done")
        a(f"s_waitcnt lgkmcnt({12-4*q})")
        r = R + q * 16
        for k in range(4):
            a(f"v_add_f32 v{r+k}, v{r+k}, v{r+4+k}")
            a(f"v_add_f32 v{r+8+k}, v{r+8+k}, v{r+12+k}")
        for k in range(4):
            a(f"v_add_f32 v{r+k}, v{r+k}, v{r+8+k}")
        a(f"v_cvt_pk_bf16_f32 v{r+4}, v{r}, v{r+1}")
        a(f"v_cvt_pk_bf16_f32 v{r+5}, v{r+2}, v{r+3}")
        a(f"buffer_store_dwordx2 v[{r+4}:{r+5}], v{vT+1}, s[{sOut}:{sOut+3}], s{sT0} offen offset:{q*64}")
    a.label("L_k2_done")
    a("s_endpgm")
    return name, 176, 196, 65536


def descriptor(name, nv, na, sgpr=96):
    accum = (nv + 3) // 4 * 4
    nfv = accum + na if na else nv
    return f""".p2align 6
.amdhsa_kernel {name}
  .amdhsa_next_free_vgpr {nfv}
  .amdhsa_next_free_sgpr {sgpr}
  .amdhsa_accum_offset {accum}
  .amdhsa_group_segment_fixed_size 0
  .amdhsa_kernarg_size 64
  .amdhsa_user_sgpr_count 2
  .amdhsa_user_sgpr_kernarg_segment_ptr 1
  .amdhsa_system_sgpr_workgroup_id_x 1
.end_amdhsa_kernel
"""


def main():
    a = Asm()
    a.raw('.amdgcn_target "amdgcn-amd-amdhsa--gfx950"')
    a.raw(".text")
    ks = [gen_k1(a), gen_k2(a)]
    out = HEADER
    for name, nv, na, lds in ks:
        out += f"; @launch kernel={name} grid=(256,1,1) block=(256,1,1) lds={lds}\n"
    out += a.text()
    out += '.section .rodata,"a"\n'
    for name, nv, na, lds in ks:
        out += descriptor(name, nv, na)
    path = sys.argv[1] if len(sys.argv) > 1 else "standalone__spectral_fnet__prompt.s"
    open(path, "w").write(out)


if __name__ == "__main__":
    main()
```

```python
import sys, os
OPT = lambda k, d=0: int(os.environ.get(k, d))

HEADER = """; Kernarg layout for this problem (64 bytes, ptrs only, base s[0:1]):
"""

X_BYTES = 2048 * 448 * 2
C_BYTES = 2048 * 2048 * 2
D_BYTES = 448 * 448 * 2
PQ_BYTES = 2 * 128 * 28 * 1024
DOFF = PQ_BYTES
DF_BYTES = 28 * 28 * 1024
NCOPY = OPT('NCOPY', 1)
NFR = 25 if NCOPY == 8 else 4
WS_BYTES = PQ_BYTES + NCOPY * DF_BYTES


class Asm:
    def __init__(self):
        self.lines = []

    def __call__(self, s):
        self.lines.append("    " + s)

    def label(self, s):
        self.lines.append(s + ":")

    def raw(self, s):
        self.lines.append(s)

    def text(self):
        return "\n".join(self.lines) + "\n"


STAMP_OFF = 64 << 20


class Stamps:
    def __init__(self, a, base, kidx):
        self.a, self.base, self.n, self.kidx = a, base, 0, kidx

    def __call__(self):
        if not OPT("STAMP"):
            return
        a = self.a
        a(f"s_memtime s[{self.base+self.n*4}:{self.base+self.n*4+1}]")
        a(f"s_memrealtime s[{self.base+self.n*4+2}:{self.base+self.n*4+3}]")
        self.n += 1

    def dump(self, sws, stmp, vtmp, swave):
        if not OPT("STAMP"):
            return
        a = self.a
        self()
        a("s_waitcnt lgkmcnt(0)")
        a(f"s_mov_b32 s{sws+2}, 0x8000000")
        a(f"s_lshl_b32 s{stmp}, s2, 2")
        a(f"s_add_u32 s{stmp}, s{stmp}, s{swave}")
        a(f"s_lshl_b32 s{stmp}, s{stmp}, 7")
        a(f"s_add_u32 s{stmp}, s{stmp}, {STAMP_OFF + self.kidx * (1 << 20)}")
        a(f"v_mov_b32 v{vtmp+1}, 0")
        for i in range(self.n):
            a(f"v_mov_b32 v{vtmp}, s{self.base+i*4}")
            a(f"buffer_store_dword v{vtmp}, v{vtmp+1}, s[{sws}:{sws+3}], s{stmp} offen offset:{i*8}")
            a(f"v_mov_b32 v{vtmp}, s{self.base+i*4+2}")
            a(f"buffer_store_dword v{vtmp}, v{vtmp+1}, s[{sws}:{sws+3}], s{stmp} offen offset:{i*8+4}")


def srd(a, d, b, nbytes):
    a(f"s_mov_b32 s{d}, s{b}")
    a(f"s_and_b32 s{d+1}, s{b+1}, 0xffff")
    a(f"s_mov_b32 s{d+2}, {nbytes}")
    a(f"s_mov_b32 s{d+3}, 0x20000")


def interleave(main, fill, per=2):
    out = []
    fi = 0

    def put(x):
        if isinstance(x, list):
            out.extend(x)
        else:
            out.append(x)
    for m in main:
        out.append(m)
        for _ in range(per):
            if fi < len(fill):
                put(fill[fi])
                fi += 1
    for x in fill[fi:]:
        put(x)
    return out


def flat(l):
    out = []
    for x in l:
        if isinstance(x, list):
            out.extend(x)
        else:
            out.append(x)
    return out


NSLOT = 5
NTD = 'nt' if OPT('NTD', 1) else ''
NTS = 'nt' if OPT('NTS', 0) else ''
NT2 = 'nt' if OPT('NT2', 0) else ''
NTC = 'nt ' if OPT('NTC', 1) else ''
NTX = 'nt ' if OPT('NTX', 1) else ''
SLOT = 30720
XOFF = 16384
NSTAGE = 16


def gen_k1(a):
    name = "fnet_k1_kernel"
    a.raw(f".globl {name}")
    a.raw(".p2align 8")
    a.raw(f".type {name},@function")
    a.label(name)
    sX, sC, sWS, sDr, sDi = 16, 20, 24, 28, 32
    sW = 36
    sCo = 37
    sXo = 38
    sM0C = 39
    sSlotW = 40
    sSlotR = 41
    sIt = 42
    sT0 = 43
    sT1 = 44
    sH, sRB, sJ = 45, 46, 47
    sMask = 48
    sWk, sWm = 50, 51
    sF = 52
    sStg = 53
    sCoE, sXoE = 54, 55
    sOOB = 56
    sWC, sWX = 57, 58
    sRot = 59
    sT2, sT3 = 60, 61
    sR0, sWs, sI = 62, 63, 3

    vLane = 1
    vOC = 2
    vOX = 6
    vCb0 = 10
    vXb0 = 11
    vCb = 13
    vXb = 14
    vT = 16
    vDp = 20
    vDo = 24
    FR = 28
    ACC = 116

    def cfrag(s, n):
        b = FR + s * 44 + n * 4
        return b

    def xfrag(s, m):
        b = FR + s * 44 + 16 + m * 4
        return b

    def acc(m, n):
        return ACC + (m * 4 + n) * 4

    st = Stamps(a, 64, 0)
    a("s_cmp_ge_u32 s2, 256")
    a("s_cbranch_scc1 L_k1_done")
    st()
    a("s_load_dwordx8 s[4:11], s[0:1], 0")
    a("s_load_dwordx2 s[12:13], s[0:1], 32")
    a("s_load_dwordx2 s[14:15], s[0:1], 56")
    a(f"v_lshrrev_b32 v{vT}, 6, v0")
    a(f"v_and_b32 v{vLane}, 63, v0")
    a(f"v_readfirstlane_b32 s{sW}, v{vT}")
    a(f"s_and_b32 s{sT0}, s2, 7")
    a(f"s_lshr_b32 s{sT1}, s2, 3")
    if OPT("MAPB"):
        a(f"s_lshr_b32 s{sH}, s{sT1}, 2")
        a(f"s_and_b32 s{sH}, s{sH}, 1")
        a(f"s_lshr_b32 s{sRB}, s{sT1}, 3")
        a(f"s_lshl_b32 s{sRB}, s{sRB}, 3")
        a(f"s_add_u32 s{sRB}, s{sRB}, s{sT0}")
    else:
        a(f"s_and_b32 s{sH}, s{sT0}, 1")
        a(f"s_lshr_b32 s{sRB}, s{sT0}, 1")
        a(f"s_lshr_b32 s{sJ}, s{sT1}, 2")
        a(f"s_lshl_b32 s{sJ}, s{sJ}, 2")
        a(f"s_add_u32 s{sRB}, s{sRB}, s{sJ}")
    a(f"s_and_b32 s{sJ}, s{sT1}, 3")
    a(f"s_and_b32 s{sWk}, s{sW}, 1")
    a(f"s_lshr_b32 s{sWm}, s{sW}, 1")
    a(f"s_lshl_b32 s{sCo}, s{sRB}, 18")
    a(f"s_lshl_b32 s{sT0}, s{sWk}, 17")
    a(f"s_add_u32 s{sCo}, s{sCo}, s{sT0}")
    a(f"s_lshl_b32 s{sT0}, s{sH}, 11")
    a(f"s_add_u32 s{sCo}, s{sCo}, s{sT0}")
    a(f"s_mul_i32 s{sXo}, s{sH}, {1024*896}")
    a(f"s_mul_i32 s{sT0}, s{sJ}, 224")
    a(f"s_add_u32 s{sXo}, s{sXo}, s{sT0}")
    if OPT("ROT", 0):
        if OPT("MAPB"):
            a(f"s_lshr_b32 s{sRot}, s{sT1}, 3")
            a(f"s_lshl_b32 s{sRot}, s{sRot}, 2")
        else:
            a(f"s_lshr_b32 s{sRot}, s{sT1}, 2")
            a(f"s_lshl_b32 s{sRot}, s{sRot}, 1")
        if OPT("ROT", 0) == 3:
            a(f"s_lshr_b32 s{sT0}, s{sT1}, 3")
            a(f"s_add_u32 s{sT0}, s{sT0}, s{sJ}")
            a(f"s_lshl_b32 s{sR0}, s{sT0}, 1")
            a(f"s_and_b32 s{sR0}, s{sR0}, 7")
            a(f"s_lshr_b32 s{sT0}, s{sT1}, 2")
            a(f"s_and_b32 s{sT0}, s{sT0}, 1")
            a(f"s_lshl_b32 s{sWs}, s{sT0}, 3")
            if OPT("MAPB"):
                a(f"s_mov_b32 s{sWs}, 0")
            a(f"s_mov_b32 s{sI}, 0")
            a(f"s_add_u32 s{sRot}, s{sR0}, s{sWs}")
        if OPT("ROT", 0) == 2:
            a(f"s_lshl_b32 s{sT0}, s{sJ}, 2")
            a(f"s_add_u32 s{sRot}, s{sRot}, s{sT0}")
            a(f"s_and_b32 s{sRot}, s{sRot}, 15")
        a(f"s_mov_b32 s{sT2}, s{sCo}")
        a(f"s_mov_b32 s{sT3}, s{sXo}")
        a(f"s_lshl_b32 s{sT0}, s{sRot}, 7")
        a(f"s_add_u32 s{sCo}, s{sCo}, s{sT0}")
        a(f"s_mul_i32 s{sT0}, s{sRot}, {64*896}")
        a(f"s_add_u32 s{sXo}, s{sXo}, s{sT0}")
    a(f"s_lshl_b32 s{sWC}, s{sW}, 12")
    a(f"s_mul_i32 s{sWX}, s{sW}, 3584")
    a(f"s_add_u32 s{sWX}, s{sWX}, {XOFF}")
    a(f"s_mov_b32 s{sMask}, -1")
    a(f"s_mov_b32 s{sMask+1}, 0")
    a(f"s_mov_b32 s{sOOB}, 0x7f000000")
    a(f"v_lshrrev_b32 v{vT}, 3, v{vLane}")
    a(f"v_lshlrev_b32 v{vT}, 12, v{vT}")
    a(f"v_and_b32 v{vT+1}, 7, v{vLane}")
    a(f"v_lshrrev_b32 v{vT+2}, 4, v{vLane}")
    a(f"v_xor_b32 v{vT+1}, v{vT+1}, v{vT+2}")
    a(f"v_lshl_add_u32 v{vOC}, v{vT+1}, 4, v{vT}")
    a(f"v_xor_b32 v{vT+1}, 4, v{vT+1}")
    a(f"v_lshl_add_u32 v{vOC+1}, v{vT+1}, 4, v{vT}")
    a(f"v_add_u32 v{vOC+1}, {8*4096-1024}, v{vOC+1}")
    a(f"v_add_u32 v{vOC+2}, {16*4096-2048}, v{vOC}")
    a(f"v_add_u32 v{vOC+3}, {16*4096-2048}, v{vOC+1}")
    a(f"s_mul_i32 s{sT0}, s{sW}, 224")
    a(f"s_mov_b32 s{sT1}, 4682")
    for q in range(4):
        a(f"v_add_u32 v{vT}, s{sT0}, v{vLane}")
        if q:
            a(f"v_add_u32 v{vT}, {64*q}, v{vT}")
        a(f"v_mul_lo_u32 v{vT+1}, v{vT}, s{sT1}")
        a(f"v_lshrrev_b32 v{vT+1}, 16, v{vT+1}")
        a(f"v_mul_u32_u24 v{vT+2}, 14, v{vT+1}")
        a(f"v_sub_u32 v{vT+2}, v{vT}, v{vT+2}")
        a(f"v_lshrrev_b32 v{vT+3}, 1, v{vT+1}")
        a(f"v_and_b32 v{vT+3}, 4, v{vT+3}")
        a(f"v_xor_b32 v{vT+1}, v{vT+1}, v{vT+3}")
        a(f"v_mul_u32_u24 v{vT+1}, 896, v{vT+1}")
        a(f"v_lshl_add_u32 v{vOX+q}, v{vT+2}, 4, v{vT+1}")
        if q:
            a(f"v_subrev_u32 v{vOX+q}, {1024*q}, v{vOX+q}")
    for c in range(1024):
        assert (c * 4682) >> 16 == c // 14
    a("s_waitcnt lgkmcnt(0)")
    srd(a, sX, 4, X_BYTES)
    a(f"s_cmp_ge_u32 s{sW}, 2")
    a(f"s_cselect_b32 s{sC}, s8, s6")
    a(f"s_cselect_b32 s{sC+1}, s9, s7")
    a(f"s_and_b32 s{sC+1}, s{sC+1}, 0xffff")
    a(f"s_mov_b32 s{sC+2}, {C_BYTES}")
    a(f"s_mov_b32 s{sC+3}, 0x20000")
    srd(a, sWS, 14, WS_BYTES)
    srd(a, sDr, 10, D_BYTES)
    srd(a, sDi, 12, D_BYTES)
    a(f"s_cmp_eq_u32 s{sW}, 4")
    a("s_cbranch_scc1 L_k1_helper")

    def dma_stage(slot_expr, co, xo):
        ins = []
        ins.append(f"s_add_u32 m0, s{slot_expr}, s{sWC}")
        ins.append("s_nop 0")
        if OPT("NOC"):
            co = sOOB
        if OPT("NOX"):
            xo = sOOB
        for q in range(4):
            ins.append(f"buffer_load_dwordx4 v{vOC+q}, s[{sC}:{sC+3}], s{co} offen offset:{q*1024} {NTC}lds")
        ins.append(f"s_add_u32 m0, s{slot_expr}, s{sWX}")
        ins.append("s_nop 0")
        for q in range(3):
            ins.append(f"buffer_load_dwordx4 v{vOX+q}, s[{sX}:{sX+3}], s{xo} offen offset:{q*1024} {NTX}lds")
        ins.append([f"s_mov_b64 exec, s[{sMask}:{sMask+1}]",
                    f"buffer_load_dwordx4 v{vOX+3}, s[{sX}:{sX+3}], s{xo} offen offset:3072 {NTX}lds",
                    "s_mov_b64 exec, -1"])
        return ins

    def advance():
        if OPT("ROT", 0) == 3:
            return [f"s_add_u32 s{sI}, s{sI}, 1",
                    f"s_add_u32 s{sRot}, s{sR0}, s{sI}",
                    f"s_and_b32 s{sRot}, s{sRot}, 7",
                    f"s_xor_b32 s{sCo}, s{sI}, s{sWs}",
                    f"s_and_b32 s{sCo}, s{sCo}, 8",
                    f"s_add_u32 s{sRot}, s{sRot}, s{sCo}",
                    f"s_lshl_b32 s{sCo}, s{sRot}, 7",
                    f"s_add_u32 s{sCo}, s{sCo}, s{sT2}",
                    f"s_mul_i32 s{sXo}, s{sRot}, {64*896}",
                    f"s_add_u32 s{sXo}, s{sXo}, s{sT3}"]
        if OPT("ROT", 0):
            return [f"s_add_u32 s{sRot}, s{sRot}, 1",
                    f"s_and_b32 s{sRot}, s{sRot}, 15",
                    f"s_lshl_b32 s{sCo}, s{sRot}, 7",
                    f"s_add_u32 s{sCo}, s{sCo}, s{sT2}",
                    f"s_mul_i32 s{sXo}, s{sRot}, {64*896}",
                    f"s_add_u32 s{sXo}, s{sXo}, s{sT3}"]
        return [f"s_add_u32 s{sCo}, s{sCo}, 128",
                f"s_add_u32 s{sXo}, s{sXo}, {64*896}"]

    if OPT("PFBAR"):
        a("s_barrier")
    st()
    a(f"s_mov_b32 s{sSlotW}, 0")
    for _stg in range(NSLOT):
        for i in flat(dma_stage(sSlotW, sCo, sXo)):
            a(i)
        for i in flat(advance()):
            a(i)
        a(f"s_add_u32 s{sSlotW}, s{sSlotW}, {SLOT}")
    a(f"s_mov_b32 s{sSlotW}, 0")
    a(f"s_mov_b32 s{sStg}, {NSLOT}")

    NEXTRA = 0

    a(f"v_and_b32 v{vT}, 15, v{vLane}")
    a(f"v_lshrrev_b32 v{vT+1}, 4, v{vLane}")
    a(f"s_lshl_b32 s{sT0}, s{sWk}, 2")
    a(f"v_add_u32 v{vT+2}, s{sT0}, v{vT+1}")
    a(f"v_lshrrev_b32 v{vT+3}, 1, v{vT}")
    a(f"v_xor_b32 v{vT+2}, v{vT+2}, v{vT+3}")
    a(f"v_lshlrev_b32 v{vT+2}, 4, v{vT+2}")
    a(f"v_lshl_add_u32 v{vCb0}, v{vT}, 7, v{vT+2}")
    a(f"s_lshl_b32 s{sT0}, s{sWm}, 12")
    a(f"v_add_u32 v{vCb0}, s{sT0}, v{vCb0}")
    a(f"v_lshlrev_b32 v{vT+2}, 3, v{vT+1}")
    a(f"v_lshrrev_b32 v{vT+3}, 2, v{vT}")
    a(f"v_add_u32 v{vT+2}, v{vT+2}, v{vT+3}")
    a(f"s_lshl_b32 s{sT0}, s{sWk}, 5")
    a(f"v_add_u32 v{vT+2}, s{sT0}, v{vT+2}")
    a(f"v_and_b32 v{vT+3}, 1, v{vT+1}")
    a(f"v_lshlrev_b32 v{vT+3}, 2, v{vT+3}")
    a(f"v_add_u32 v{vXb0}, v{vT+2}, v{vT+3}")
    a(f"v_xor_b32 v{vT+3}, 4, v{vT+3}")
    a(f"v_add_u32 v{vXb0+1}, v{vT+2}, v{vT+3}")
    a(f"v_and_b32 v{vT}, 3, v{vT}")
    a(f"v_lshlrev_b32 v{vT}, 3, v{vT}")
    a(f"v_add_u32 v{vT}, {XOFF}, v{vT}")
    a(f"v_mov_b32 v{vT+1}, 224")
    a(f"v_mad_u32_u24 v{vXb0}, v{vXb0}, v{vT+1}, v{vT}")
    a(f"v_mad_u32_u24 v{vXb0+1}, v{vXb0+1}, v{vT+1}, v{vT}")
    for r in range(112):
        a(f"v_mov_b32 v{ACC+r}, 0")

    def frag_reads(s):
        ins = []
        def xr(m):
            return [f"ds_read_b64_tr_b16 v[{xfrag(s,m)}:{xfrag(s,m)+1}], v{vXb} offset:{m*32}",
                    f"ds_read_b64_tr_b16 v[{xfrag(s,m)+2}:{xfrag(s,m)+3}], v{vXb+1} offset:{m*32}"]
        ins += xr(0)
        for n in range(4):
            pq, tl = n >> 1, n & 1
            ins.append(f"ds_read_b128 v[{cfrag(s,n)}:{cfrag(s,n)+3}], v{vCb} offset:{pq*8192+tl*2048}")
        for m in range(1, 7):
            ins += xr(m)
        return ins

    def set_read_bases(slot_sgpr):
        return [f"v_add_u32 v{vCb}, s{slot_sgpr}, v{vCb0}",
                f"v_add_u32 v{vXb}, s{slot_sgpr}, v{vXb0}",
                f"v_add_u32 v{vXb+1}, s{slot_sgpr}, v{vXb0+1}"]

    def mfmas(s):
        return [f"v_mfma_f32_16x16x32_bf16 v[{acc(m,n)}:{acc(m,n)+3}], v[{xfrag(s,m)}:{xfrag(s,m)+3}], "
                f"v[{cfrag(s,n)}:{cfrag(s,n)+3}], v[{acc(m,n)}:{acc(m,n)+3}]"
                for m in range(7) for n in range(4)]

    a(f"s_mov_b32 s{sSlotR}, 0")
    for i in set_read_bases(sSlotR):
        a(i)
    st()
    a(f"s_waitcnt vmcnt({(NSLOT-1)*8+NEXTRA})")
    st()
    a("s_barrier")
    for i in frag_reads(0):
        a(i)
    a(f"s_mov_b32 s{sIt}, 0")

    a.label("L_k1_loop")
    for s in range(2):
        a(f"s_add_u32 s{sSlotR}, s{sSlotR}, {SLOT}")
        a(f"s_cmp_eq_u32 s{sSlotR}, {SLOT*NSLOT}")
        a(f"s_cselect_b32 s{sSlotR}, 0, s{sSlotR}")
        a(f"s_cmp_lt_u32 s{sStg}, {NSTAGE}")
        a(f"s_cselect_b32 s{sCoE}, s{sCo}, s{sOOB}")
        a(f"s_cselect_b32 s{sXoE}, s{sXo}, s{sOOB}")
        for i in set_read_bases(sSlotR):
            a(i)
        a(f"s_waitcnt vmcnt({(NSLOT-2)*8}) lgkmcnt(0)")
        a("s_barrier")
        if OPT("TRACE"):
            a("s_memtime s[96:97]")
            a("s_waitcnt lgkmcnt(0)")
            a(f"s_mov_b32 s99, m0")
            a(f"s_mov_b32 m0, s{sStg}")
            a("s_nop 0")
            a(f"v_writelane_b32 v{vDo}, s96, m0")
            a(f"s_mov_b32 m0, s99")
        fill = frag_reads(1 - s) + dma_stage(sSlotW, sCoE, sXoE)
        if OPT("NODMA"):
            fill = frag_reads(1 - s)
        if OPT("NOREAD"):
            fill = dma_stage(sSlotW, sCoE, sXoE)
        fill += advance()
        fill += [f"s_add_u32 s{sStg}, s{sStg}, 1",
                 [f"s_add_u32 s{sSlotW}, s{sSlotW}, {SLOT}",
                  f"s_cmp_eq_u32 s{sSlotW}, {SLOT*NSLOT}",
                  f"s_cselect_b32 s{sSlotW}, 0, s{sSlotW}"]]
        for i in interleave(mfmas(s) if not OPT("NOMFMA") else [], fill, per=2):
            a(i)
    a(f"s_add_u32 s{sIt}, s{sIt}, 1")
    a(f"s_cmp_lt_u32 s{sIt}, {NSTAGE//2}")
    a("s_cbranch_scc1 L_k1_loop")

    st()
    a("s_waitcnt vmcnt(0) lgkmcnt(0)")
    a("s_barrier")
    a(f"s_mul_i32 s{sT0}, s{sW}, 14336")
    a(f"s_xor_b32 s{sT1}, s{sW}, 1")
    a(f"s_mul_i32 s{sT1}, s{sT1}, 14336")
    a(f"v_lshlrev_b32 v{vT}, 4, v{vLane}")
    a(f"v_add_u32 v{vT+1}, s{sT1}, v{vT}")
    a(f"v_add_u32 v{vT}, s{sT0}, v{vT}")
    a(f"s_cmp_eq_u32 s{sWk}, 0")
    a("s_cbranch_scc0 L_k1_epi1")
    for wk in range(2):
        if wk == 1:
            a.label("L_k1_epi1")
        give = 1 - wk
        keep = wk
        idx = 0
        for m in range(7):
            for pq in range(2):
                r = acc(m, pq * 2 + give)
                a(f"ds_write_b128 v{vT}, v[{r}:{r+3}] offset:{idx*1024}")
                idx += 1
        a("s_waitcnt lgkmcnt(0)")
        a("s_barrier")
        idx = 0
        for m in range(7):
            for pq in range(2):
                r = FR + idx * 4
                a(f"ds_read_b128 v[{r}:{r+3}], v{vT+1} offset:{idx*1024}")
                idx += 1
        a(f"s_lshl_b32 s{sT0}, s{sH}, 7")
        a(f"s_lshl_b32 s{sT1}, s{sRB}, 2")
        a(f"s_add_u32 s{sT0}, s{sT0}, s{sT1}")
        a(f"s_lshl_b32 s{sT1}, s{sWm}, 1")
        a(f"s_add_u32 s{sT0}, s{sT0}, s{sT1}")
        a(f"s_add_u32 s{sT0}, s{sT0}, {keep}")
        a(f"s_mul_i32 s{sT0}, s{sT0}, 28")
        a(f"s_mul_i32 s{sT1}, s{sJ}, 7")
        a(f"s_add_u32 s{sT0}, s{sT0}, s{sT1}")
        a(f"s_lshl_b32 s{sT0}, s{sT0}, 10")
        a(f"v_lshlrev_b32 v{vT+2}, 4, v{vLane}")
        a(f"v_add_u32 v{vT+3}, 4096, v{vT+2}")
        idx = 0
        for m in range(7):
            a(f"s_waitcnt lgkmcnt({12-2*m})")
            for pq in range(2):
                r = FR + idx * 4
                ac = acc(m, pq * 2 + keep)
                for k in range(4):
                    a(f"v_add_f32 v{ac+k}, v{ac+k}, v{r+k}")
                idx += 1
            p = acc(m, keep)
            q = acc(m, 2 + keep)
            o = FR + 56 + m * 4
            a(f"v_cvt_pk_bf16_f32 v{o}, v{p}, v{p+1}")
            a(f"v_cvt_pk_bf16_f32 v{o+1}, v{p+2}, v{p+3}")
            a(f"v_cvt_pk_bf16_f32 v{o+2}, v{q}, v{q+1}")
            a(f"v_cvt_pk_bf16_f32 v{o+3}, v{q+2}, v{q+3}")
            vo = vT + 2 if m < 4 else vT + 3
            a(f"buffer_store_dwordx4 v[{o}:{o+3}], v{vo}, s[{sWS}:{sWS+3}], s{sT0} offen offset:{(m%4)*1024} {NTS}")
        if wk == 0:
            a("s_branch L_k1_epi2")
    a.label("L_k1_epi2")
    st()
    if OPT("STAMP"):
        a("s_waitcnt vmcnt(0)")
    st.dump(sWS, sT0, vT, sW)
    if OPT("TRACE"):
        a(f"v_writelane_b32 v{vDo}, s64, 0")
        a(f"s_lshl_b32 s{sT0}, s2, 2")
        a(f"s_add_u32 s{sT0}, s{sT0}, s{sW}")
        a(f"s_lshl_b32 s{sT0}, s{sT0}, 8")
        a(f"s_add_u32 s{sT0}, s{sT0}, {STAMP_OFF + 3 * (1 << 20)}")
        a(f"v_lshlrev_b32 v{vT}, 2, v{vLane}")
        a(f"buffer_store_dword v{vDo}, v{vT}, s[{sWS}:{sWS+3}], s{sT0} offen")
    a("s_endpgm")
    a.label("L_k1_helper")
    sCi = 64 if not OPT("STAMP") else 92
    srd(a, sCi, 6, C_BYTES)
    sCrp, sCip = sCi, sC
    ST = OPT("PF_ST", 128)
    CH = OPT("PF_CH", 512)
    LPR = CH // ST
    RPI = 64 // LPR
    NCH = 2048 // CH
    if OPT("PF", 1):
        import math
        a(f"v_lshrrev_b32 v{vT}, {int(math.log2(LPR))}, v{vLane}")
        a(f"v_lshlrev_b32 v{vT}, 12, v{vT}")
        a(f"v_and_b32 v{vT+1}, {LPR-1}, v{vLane}")
        a(f"v_lshlrev_b32 v{vT+1}, {int(math.log2(ST))}, v{vT+1}")
        a(f"v_add_u32 v{vT}, v{vT}, v{vT+1}")
        a(f"v_lshlrev_b32 v{vT+1}, {int(math.log2(ST))}, v{vLane}")
        a(f"s_lshl_b32 s{sT0}, s{sRB}, 18")
        a(f"s_lshl_b32 s{sT1}, s{sJ}, 16")
        a(f"s_add_u32 s{sT0}, s{sT0}, s{sT1}")
        a(f"s_lshl_b32 s{sT1}, s{sH}, 11")
        a(f"s_add_u32 s{sT0}, s{sT0}, s{sT1}")
        xch = (CH // 2) * 896
        if OPT("MAPB"):
            xpart = xch // 16
            a(f"s_lshr_b32 s{sT1}, s2, 6")
            a(f"s_lshl_b32 s{sT1}, s{sT1}, 2")
            a(f"s_add_u32 s{sT1}, s{sT1}, s{sJ}")
        else:
            xpart = xch // 32
            a(f"s_lshr_b32 s{sT1}, s2, 3")
        a(f"s_mul_i32 s{sT1}, s{sT1}, {xpart}")
        a(f"s_mul_i32 s{sT2}, s{sH}, {1024*896}")
        a(f"s_add_u32 s{sT1}, s{sT1}, s{sT2}")
        for c in range(OPT("PF_SKIP", 0), NCH):
            for rg in range(16 // RPI):
                a(f"s_add_u32 s{sT2}, s{sT0}, {c*CH + rg*RPI*4096}")
                a(f"buffer_load_dword v{vT+2}, v{vT}, s[{sCrp}:{sCrp+3}], s{sT2} offen nt")
                a(f"buffer_load_dword v{vT+2}, v{vT}, s[{sCip}:{sCip+3}], s{sT2} offen nt")
            for p in range((xpart + 64*ST - 1) // (64*ST)):
                a(f"s_add_u32 s{sT2}, s{sT1}, {c*xch + p*64*ST}")
                if not OPT("PF_NOX"):
                    a(f"buffer_load_dword v{vT+2}, v{vT+1}, s[{sX}:{sX+3}], s{sT2} offen {NTX}")
    if OPT("STAMP"):
        sth = Stamps(a, 64, 2)
        sth.n = 1
        sth()
        a("s_waitcnt vmcnt(0)")
        if OPT("PFBAR"):
            a("s_barrier")
        a(f"s_mov_b32 s{sW}, 0")
        sth.dump(sWS, sT0, vT, sW)
        a(f"s_mov_b32 s{sWS+2}, {WS_BYTES}")
    a(f"v_and_b32 v{vT}, 15, v{vLane}")
    a(f"v_mul_u32_u24 v{vT}, 896, v{vT}")
    a(f"v_lshrrev_b32 v{vT+1}, 4, v{vLane}")
    a(f"v_lshl_add_u32 v{vT}, v{vT+1}, 3, v{vT}")
    a(f"v_lshlrev_b32 v{vT+1}, 4, v{vLane}")
    if NCOPY == 8:
        a(f"s_lshr_b32 s{sF}, s2, 3")
        a(f"s_mul_i32 s{sF}, s{sF}, 25")
    else:
        a(f"s_lshl_b32 s{sF}, s2, 2")
    for i in range(NFR):
        a(f"s_add_u32 s{sT2}, s{sF}, {i}")
        a(f"s_mul_i32 s{sT0}, s{sT2}, 2341")
        a(f"s_lshr_b32 s{sT0}, s{sT0}, 16")
        a(f"s_mul_i32 s{sT1}, s{sT0}, 28")
        a(f"s_sub_u32 s{sT1}, s{sT2}, s{sT1}")
        a(f"s_mul_i32 s{sT0}, s{sT0}, {16*896}")
        a(f"s_lshl_b32 s{sT1}, s{sT1}, 5")
        a(f"s_add_u32 s{sT0}, s{sT0}, s{sT1}")
        r = FR + i * 4
        a(f"buffer_load_dwordx2 v[{r}:{r+1}], v{vT}, s[{sDr}:{sDr+3}], s{sT0} offen {NTD}")
        a(f"buffer_load_dwordx2 v[{r+2}:{r+3}], v{vT}, s[{sDi}:{sDi+3}], s{sT0} offen {NTD}")
    for f in range(1024):
        assert (f * 2341) >> 16 == f // 28
    a(f"s_and_b32 s{sT0}, s2, {NCOPY-1}")
    a(f"s_mul_i32 s{sT0}, s{sT0}, {DF_BYTES}")
    a(f"s_lshl_b32 s{sT1}, s{sF}, 10")
    a(f"s_add_u32 s{sT0}, s{sT0}, s{sT1}")
    a(f"s_add_u32 s{sT0}, s{sT0}, {DOFF}")
    for i in range(NFR):
        r = FR + i * 4
        a(f"s_add_u32 s{sT2}, s{sF}, {i}")
        a(f"s_cmp_ge_u32 s{sT2}, 784")
        a("s_cbranch_scc1 L_k1_done")
        a(f"s_waitcnt vmcnt({min(63, 2*(NFR-1-i) + i)})")
        a(f"v_xor_b32 v{r+2}, 0x80008000, v{r+2}")
        a(f"v_xor_b32 v{r+3}, 0x80008000, v{r+3}")
        a(f"buffer_store_dwordx4 v[{r}:{r+3}], v{vT+1}, s[{sWS}:{sWS+3}], s{sT0} offen {NTS}")
        a(f"s_add_u32 s{sT0}, s{sT0}, 1024")
    a.label("L_k1_done")
    a("s_endpgm")
    return name, 228, 0, NSLOT * SLOT, 320


def gen_k2(a):
    name = "fnet_k2_kernel"
    a.raw(f".globl {name}")
    a.raw(".p2align 8")
    a.raw(f".type {name},@function")
    a.label(name)
    sWS, sOut = 8, 12
    sW = 16
    sT0, sT1 = 17, 18
    sTB, sJ = 19, 20
    sPQ = 24
    sD = 28
    vLane = 1
    vO = 2
    vT = 4
    PQR = 8
    ACC = 120

    def pq(ml, h, tl):
        return PQR + ((ml * 2 + h) * 2 + tl) * 4

    def df(ml, et):
        return (ml * 7 + et) * 4

    def acc(et, tl):
        return ACC + (et * 2 + tl) * 4

    st = Stamps(a, 64, 1)
    a("s_cmp_ge_u32 s2, 256")
    a("s_cbranch_scc1 L_k2_done")
    st()
    a("s_load_dwordx2 s[4:5], s[0:1], 56")
    a("s_load_dwordx2 s[6:7], s[0:1], 40")
    a(f"v_lshrrev_b32 v{vT}, 6, v0")
    a(f"v_and_b32 v{vLane}, 63, v0")
    a(f"v_readfirstlane_b32 s{sW}, v{vT}")
    a(f"s_and_b32 s{sT0}, s2, 7")
    a(f"s_lshr_b32 s{sT1}, s2, 3")
    a(f"s_lshr_b32 s{sTB}, s{sT1}, 2")
    a(f"s_lshl_b32 s{sTB}, s{sTB}, 3")
    a(f"s_add_u32 s{sTB}, s{sTB}, s{sT0}")
    a(f"s_and_b32 s{sJ}, s{sT1}, 3")
    a(f"v_lshlrev_b32 v{vO}, 4, v{vLane}")
    a(f"v_add_u32 v{vO+1}, 4096, v{vO}")
    a(f"s_mul_i32 s{sT0}, s{sW}, 7")
    a(f"s_mul_i32 s{sT1}, s{sTB}, 56")
    a(f"s_add_u32 s{sT1}, s{sT1}, s{sT0}")
    a(f"s_lshl_b32 s{sT1}, s{sT1}, 10")
    for h in range(2):
        for tl in range(2):
            a(f"s_add_u32 s{sPQ+h*2+tl}, s{sT1}, {(h*128+tl)*28*1024}")
    a(f"s_mul_i32 s{sT1}, s{sJ}, 196")
    a(f"s_add_u32 s{sT1}, s{sT1}, s{sT0}")
    a(f"s_lshl_b32 s{sT1}, s{sT1}, 10")
    a(f"s_and_b32 s{sT0}, s2, {NCOPY-1}")
    a(f"s_mul_i32 s{sT0}, s{sT0}, {DF_BYTES}")
    a(f"s_add_u32 s{sT1}, s{sT1}, s{sT0}")
    for et in range(7):
        a(f"s_add_u32 s{sD+et}, s{sT1}, {DOFF + et*28*1024}")
    a("s_waitcnt lgkmcnt(0)")
    srd(a, sWS, 4, WS_BYTES)
    srd(a, sOut, 6, X_BYTES)

    def loads(ml):
        ins = []
        vo = vO if ml < 4 else vO + 1
        off = (ml % 4) * 1024
        for h in range(2):
            for tl in range(2):
                r = pq(ml, h, tl)
                ins.append(f"buffer_load_dwordx4 v[{r}:{r+3}], v{vo}, s[{sWS}:{sWS+3}], s{sPQ+h*2+tl} offen offset:{off} {NT2}")
        for et in range(7):
            r = df(ml, et)
            ins.append(f"buffer_load_dwordx4 a[{r}:{r+3}], v{vo}, s[{sWS}:{sWS+3}], s{sD+et} offen offset:{off} {NT2}")
        return ins

    def mfmas(ml):
        return [f"v_mfma_f32_16x16x32_bf16 v[{acc(et,tl)}:{acc(et,tl)+3}], a[{df(ml,et)}:{df(ml,et)+3}], "
                f"v[{pq(ml,h,tl)}:{pq(ml,h,tl)+3}], v[{acc(et,tl)}:{acc(et,tl)+3}]"
                for h in range(2) for et in range(7) for tl in range(2)]

    st()
    for ml in range(5):
        for i in loads(ml):
            a(i)
    for r in range(56):
        a(f"v_mov_b32 v{ACC+r}, 0")
    st()
    a("s_waitcnt vmcnt(44)")
    st()
    for i in interleave(mfmas(0), loads(5), per=1):
        a(i)
    a("s_waitcnt vmcnt(44)")
    for i in interleave(mfmas(1), loads(6), per=1):
        a(i)
    for ml in range(2, 7):
        a(f"s_waitcnt vmcnt({(6-ml)*11})")
        for i in mfmas(ml):
            a(i)
    st()
    if OPT("STAMP"):
        a("s_waitcnt lgkmcnt(0)")
    a(f"s_mul_i32 s{sT0}, s{sW}, 14336")
    a(f"v_add_u32 v{vT}, s{sT0}, v{vO}")
    a("s_nop 7")
    for t in range(14):
        a(f"ds_write_b128 v{vT}, v[{ACC+t*4}:{ACC+t*4+3}] offset:{t*1024}")
    a("s_waitcnt lgkmcnt(0)")
    a("s_barrier")
    a(f"s_lshl_b32 s{sT0}, s{sW}, 10")
    a(f"v_add_u32 v{vT}, s{sT0}, v{vO}")
    R = PQR
    for q in range(4):
        for p in range(4):
            r = R + (q * 4 + p) * 4
            a(f"ds_read_b128 v[{r}:{r+3}], v{vT} offset:{p*14336+q*4096}")
    a(f"v_and_b32 v{vT+1}, 15, v{vLane}")
    a(f"v_mul_u32_u24 v{vT+1}, 896, v{vT+1}")
    a(f"v_lshrrev_b32 v{vT+2}, 4, v{vLane}")
    a(f"v_lshl_add_u32 v{vT+1}, v{vT+2}, 3, v{vT+1}")
    a(f"s_and_b32 s{sT0}, s{sW}, 1")
    a(f"s_lshl_b32 s{sT0}, s{sT0}, 4")
    a(f"s_lshl_b32 s{sT1}, s{sTB}, 5")
    a(f"s_add_u32 s{sT0}, s{sT0}, s{sT1}")
    a(f"s_mul_i32 s{sT0}, s{sT0}, 896")
    a(f"s_mul_i32 s{sT1}, s{sJ}, 224")
    a(f"s_add_u32 s{sT0}, s{sT0}, s{sT1}")
    a(f"s_lshr_b32 s{sT1}, s{sW}, 1")
    a(f"s_lshl_b32 s{sT1}, s{sT1}, 5")
    a(f"s_add_u32 s{sT0}, s{sT0}, s{sT1}")
    for q in range(4):
        if q == 3:
            if OPT("STAMP"):
                a("s_waitcnt vmcnt(0)")
                st.dump(sWS, sT1, vT + 2, sW)
            a(f"s_cmp_ge_u32 s{sW}, 2")
            a("s_cbranch_scc1 L_k2_done")
        a(f"s_waitcnt lgkmcnt({12-4*q})")
        r = R + q * 16
        for k in range(4):
            a(f"v_add_f32 v{r+k}, v{r+k}, v{r+4+k}")
            a(f"v_add_f32 v{r+8+k}, v{r+8+k}, v{r+12+k}")
        for k in range(4):
            a(f"v_add_f32 v{r+k}, v{r+k}, v{r+8+k}")
        a(f"v_cvt_pk_bf16_f32 v{r+4}, v{r}, v{r+1}")
        a(f"v_cvt_pk_bf16_f32 v{r+5}, v{r+2}, v{r+3}")
        a(f"buffer_store_dwordx2 v[{r+4}:{r+5}], v{vT+1}, s[{sOut}:{sOut+3}], s{sT0} offen offset:{q*64}")
    a.label("L_k2_done")
    a("s_endpgm")
    return name, 176, 196, 65536, 256


def descriptor(name, nv, na, sgpr=100):
    accum = (nv + 3) // 4 * 4
    nfv = accum + na if na else nv
    return f""".p2align 6
.amdhsa_kernel {name}
  .amdhsa_next_free_vgpr {nfv}
  .amdhsa_next_free_sgpr {sgpr}
  .amdhsa_accum_offset {accum}
  .amdhsa_group_segment_fixed_size 0
  .amdhsa_kernarg_size 64
  .amdhsa_user_sgpr_count 2
  .amdhsa_user_sgpr_kernarg_segment_ptr 1
  .amdhsa_system_sgpr_workgroup_id_x 1
.end_amdhsa_kernel
"""


def main():
    a = Asm()
    a.raw('.amdgcn_target "amdgcn-amd-amdhsa--gfx950"')
    a.raw(".text")
    ks = [gen_k1(a), gen_k2(a)]
    out = HEADER
    if OPT("K1TWICE"):
        name, nv, na, lds, blk = ks[0]
        out += f"; @launch kernel={name} grid=(256,1,1) block=({blk},1,1) lds={lds}\n"
    for name, nv, na, lds, blk in ks:
        out += f"; @launch kernel={name} grid=(256,1,1) block=({blk},1,1) lds={lds}\n"
    if OPT("K2TWICE"):
        name, nv, na, lds, blk = ks[1]
        out += f"; @launch kernel={name} grid=(256,1,1) block=({blk},1,1) lds={lds}\n"
    out += a.text()
    out += '.section .rodata,"a"\n'
    for name, nv, na, lds, blk in ks:
        out += descriptor(name, nv, na)
    path = sys.argv[1] if len(sys.argv) > 1 else "standalone__spectral_fnet__prompt.s"
    open(path, "w").write(out)


if __name__ == "__main__":
    main()
```

```python
import sys, os, math
import gen as G
from gen import OPT, Asm, Stamps, srd, interleave, flat, X_BYTES, C_BYTES, D_BYTES, DOFF, WS_BYTES, STAMP_OFF, HEADER

NSLOT, SLOT, XOFF, NSTAGE = 5, 30720, 16384, 16
NTC = 'nt ' if OPT('NTC', 1) else ''
NTX = 'nt ' if OPT('NTX', 0) else ''
NTD = 'nt' if OPT('NTD', 1) else ''
MAPB = OPT("MAPB", 1)
PDEPTH = 4


def gen_k1(a):
    name = "fnet_k1_kernel"
    a.raw(f".globl {name}")
    a.raw(".p2align 8")
    a.raw(f".type {name},@function")
    a.label(name)
    sA, sB, sWS, sE = 16, 20, 24, 28
    sW = 36
    sT0, sT1, sT2, sT3 = 37, 38, 39, 40
    sH, sRB, sJ = 41, 42, 43
    sWk, sWm = 44, 45
    sRot = 46
    sBase = 47
    sOff = 48
    sOff2 = 49
    sSlot = 50
    sIt = 51
    sF = 52

    vLane = 1
    vT = 2
    vCb0 = 6
    vXb0 = 7
    vCb = 9
    vXb = 10
    vTr = 12
    vO = 12
    FR = 28
    ACC = 116

    def cfrag(s, n):
        return FR + s * 44 + n * 4

    def xfrag(s, m):
        return FR + s * 44 + 16 + m * 4

    def acc(m, n):
        return ACC + (m * 4 + n) * 4

    st = Stamps(a, 64, 0)
    a("s_cmp_ge_u32 s2, 256")
    a("s_cbranch_scc1 L_k1_done")
    st()
    a("s_load_dwordx8 s[4:11], s[0:1], 0")
    a("s_load_dwordx2 s[12:13], s[0:1], 32")
    a("s_load_dwordx2 s[14:15], s[0:1], 56")
    a(f"v_lshrrev_b32 v{vT}, 6, v0")
    a(f"v_and_b32 v{vLane}, 63, v0")
    a(f"v_readfirstlane_b32 s{sW}, v{vT}")
    a(f"s_and_b32 s{sT0}, s2, 7")
    a(f"s_lshr_b32 s{sT1}, s2, 3")
    a(f"s_and_b32 s{sJ}, s{sT1}, 3")
    if MAPB:
        a(f"s_lshr_b32 s{sH}, s{sT1}, 2")
        a(f"s_and_b32 s{sH}, s{sH}, 1")
        a(f"s_lshr_b32 s{sRot}, s{sT1}, 3")
        a(f"s_lshl_b32 s{sRB}, s{sRot}, 3")
        a(f"s_add_u32 s{sRB}, s{sRB}, s{sT0}")
        a(f"s_add_u32 s{sRot}, s{sRot}, s{sJ}")
        a(f"s_lshl_b32 s{sRot}, s{sRot}, 2")
    else:
        a(f"s_and_b32 s{sH}, s{sT0}, 1")
        a(f"s_lshr_b32 s{sRB}, s{sT0}, 1")
        a(f"s_lshr_b32 s{sRot}, s{sT1}, 2")
        a(f"s_lshl_b32 s{sT2}, s{sRot}, 2")
        a(f"s_add_u32 s{sRB}, s{sRB}, s{sT2}")
        a(f"s_lshl_b32 s{sRot}, s{sRot}, 1")
        if OPT("ROT", 2) == 2:
            a(f"s_lshl_b32 s{sT2}, s{sJ}, 2")
            a(f"s_add_u32 s{sRot}, s{sRot}, s{sT2}")
    a(f"s_and_b32 s{sRot}, s{sRot}, 15")
    a(f"s_cmp_eq_u32 s{sW}, 4")
    a("s_cbranch_scc1 L_k1_ldc")
    a(f"s_cmp_eq_u32 s{sW}, 5")
    a("s_cbranch_scc1 L_k1_ldx")

    a(f"s_and_b32 s{sWk}, s{sW}, 1")
    a(f"s_lshr_b32 s{sWm}, s{sW}, 1")
    a(f"v_and_b32 v{vT}, 15, v{vLane}")
    a(f"v_lshrrev_b32 v{vT+1}, 4, v{vLane}")
    a(f"s_lshl_b32 s{sT0}, s{sWk}, 2")
    a(f"v_add_u32 v{vT+2}, s{sT0}, v{vT+1}")
    a(f"v_lshrrev_b32 v{vT+3}, 1, v{vT}")
    a(f"v_xor_b32 v{vT+2}, v{vT+2}, v{vT+3}")
    a(f"v_lshlrev_b32 v{vT+2}, 4, v{vT+2}")
    a(f"v_lshl_add_u32 v{vCb0}, v{vT}, 7, v{vT+2}")
    a(f"s_lshl_b32 s{sT0}, s{sWm}, 12")
    a(f"v_add_u32 v{vCb0}, s{sT0}, v{vCb0}")
    a(f"v_lshlrev_b32 v{vT+2}, 3, v{vT+1}")
    a(f"v_lshrrev_b32 v{vT+3}, 2, v{vT}")
    a(f"v_add_u32 v{vT+2}, v{vT+2}, v{vT+3}")
    a(f"s_lshl_b32 s{sT0}, s{sWk}, 5")
    a(f"v_add_u32 v{vT+2}, s{sT0}, v{vT+2}")
    a(f"v_and_b32 v{vT+3}, 1, v{vT+1}")
    a(f"v_lshlrev_b32 v{vT+3}, 2, v{vT+3}")
    a(f"v_add_u32 v{vXb0}, v{vT+2}, v{vT+3}")
    a(f"v_xor_b32 v{vT+3}, 4, v{vT+3}")
    a(f"v_add_u32 v{vXb0+1}, v{vT+2}, v{vT+3}")
    a(f"v_and_b32 v{vT}, 3, v{vT}")
    a(f"v_lshlrev_b32 v{vT}, 3, v{vT}")
    a(f"v_add_u32 v{vT}, {XOFF}, v{vT}")
    a(f"v_mov_b32 v{vT+1}, 224")
    a(f"v_mad_u32_u24 v{vXb0}, v{vXb0}, v{vT+1}, v{vT}")
    a(f"v_mad_u32_u24 v{vXb0+1}, v{vXb0+1}, v{vT+1}, v{vT}")
    for r in range(112):
        a(f"v_mov_b32 v{ACC+r}, 0")
    a("s_waitcnt lgkmcnt(0)")
    srd(a, sWS, 14, WS_BYTES)

    def frag_reads(s, vc, vx):
        ins = []

        def xr(m):
            return [f"ds_read_b64_tr_b16 v[{xfrag(s,m)}:{xfrag(s,m)+1}], v{vx} offset:{m*32}",
                    f"ds_read_b64_tr_b16 v[{xfrag(s,m)+2}:{xfrag(s,m)+3}], v{vx+1} offset:{m*32}"]
        ins += xr(0)
        for n in range(4):
            pq, tl = n >> 1, n & 1
            ins.append(f"ds_read_b128 v[{cfrag(s,n)}:{cfrag(s,n)+3}], v{vc} offset:{pq*8192+tl*2048}")
        for m in range(1, 7):
            ins += xr(m)
        return ins

    def mfmas(s):
        return [f"v_mfma_f32_16x16x32_bf16 v[{acc(m,n)}:{acc(m,n)+3}], v[{xfrag(s,m)}:{xfrag(s,m)+3}], "
                f"v[{cfrag(s,n)}:{cfrag(s,n)+3}], v[{acc(m,n)}:{acc(m,n)+3}]"
                for m in range(7) for n in range(4)]

    def trace():
        if OPT("TRACE"):
            a("s_memtime s[96:97]")
            a("s_waitcnt lgkmcnt(0)")
            a(f"s_mov_b32 m0, s98")
            a("s_add_u32 s98, s98, 1")
            a(f"v_writelane_b32 v{vTr}, s96, m0")

    a(f"s_mov_b32 s{sSlot}, 0")
    a(f"s_mov_b32 s{sIt}, 0")
    if OPT("TRACE"):
        a("s_mov_b32 s98, 5")
    st()
    a("s_barrier")
    st()
    for i in frag_reads(0, vCb0, vXb0):
        a(i)
    nxt = [[f"s_add_u32 s{sSlot}, s{sSlot}, {SLOT}",
            f"s_cmp_eq_u32 s{sSlot}, {SLOT*NSLOT}",
            f"s_cselect_b32 s{sSlot}, 0, s{sSlot}"],
           f"v_add_u32 v{vCb}, s{sSlot}, v{vCb0}",
           f"v_add_u32 v{vXb}, s{sSlot}, v{vXb0}",
           f"v_add_u32 v{vXb+1}, s{sSlot}, v{vXb0+1}"]
    for i in flat(nxt):
        a(i)
    a.label("L_k1_loop")
    for s in range(2):
        a("s_waitcnt lgkmcnt(0)")
        a("s_barrier")
        trace()
        fill = frag_reads(1 - s, vCb, vXb) + nxt
        if s == 1:
            fill += [[f"s_add_u32 s{sIt}, s{sIt}, 1", f"s_cmp_lt_u32 s{sIt}, {NSTAGE//2}"]]
        for i in interleave(mfmas(s), fill, per=OPT("PER", 1)):
            a(i)
    a("s_cbranch_scc1 L_k1_loop")
    st()
    a("s_waitcnt lgkmcnt(0)")
    a("s_barrier")
    a(f"s_mul_i32 s{sT0}, s{sW}, 14336")
    a(f"s_xor_b32 s{sT1}, s{sW}, 1")
    a(f"s_mul_i32 s{sT1}, s{sT1}, 14336")
    a(f"v_lshlrev_b32 v{vT}, 4, v{vLane}")
    a(f"v_add_u32 v{vT+1}, s{sT1}, v{vT}")
    a(f"v_add_u32 v{vT}, s{sT0}, v{vT}")
    a(f"s_cmp_eq_u32 s{sWk}, 0")
    a("s_cbranch_scc0 L_k1_epi1")
    for wk in range(2):
        if wk == 1:
            a.label("L_k1_epi1")
        give, keep = 1 - wk, wk
        idx = 0
        for m in range(7):
            for pq in range(2):
                r = acc(m, pq * 2 + give)
                a(f"ds_write_b128 v{vT}, v[{r}:{r+3}] offset:{idx*1024}")
                idx += 1
        a("s_waitcnt lgkmcnt(0)")
        a("s_barrier")
        idx = 0
        for m in range(7):
            for pq in range(2):
                r = FR + idx * 4
                a(f"ds_read_b128 v[{r}:{r+3}], v{vT+1} offset:{idx*1024}")
                idx += 1
        a(f"s_lshl_b32 s{sT0}, s{sH}, 7")
        a(f"s_lshl_b32 s{sT1}, s{sRB}, 2")
        a(f"s_add_u32 s{sT0}, s{sT0}, s{sT1}")
        a(f"s_lshl_b32 s{sT1}, s{sWm}, 1")
        a(f"s_add_u32 s{sT0}, s{sT0}, s{sT1}")
        a(f"s_add_u32 s{sT0}, s{sT0}, {keep}")
        a(f"s_mul_i32 s{sT0}, s{sT0}, 28")
        a(f"s_mul_i32 s{sT1}, s{sJ}, 7")
        a(f"s_add_u32 s{sT0}, s{sT0}, s{sT1}")
        a(f"s_lshl_b32 s{sT0}, s{sT0}, 10")
        a(f"v_lshlrev_b32 v{vT+2}, 4, v{vLane}")
        a(f"v_add_u32 v{vT+3}, 4096, v{vT+2}")
        idx = 0
        for m in range(7):
            a(f"s_waitcnt lgkmcnt({12-2*m})")
            for pq in range(2):
                r = FR + idx * 4
                ac = acc(m, pq * 2 + keep)
                for k in range(4):
                    a(f"v_add_f32 v{ac+k}, v{ac+k}, v{r+k}")
                idx += 1
            p = acc(m, keep)
            q = acc(m, 2 + keep)
            o = FR + 56 + m * 4
            a(f"v_cvt_pk_bf16_f32 v{o}, v{p}, v{p+1}")
            a(f"v_cvt_pk_bf16_f32 v{o+1}, v{p+2}, v{p+3}")
            a(f"v_cvt_pk_bf16_f32 v{o+2}, v{q}, v{q+1}")
            a(f"v_cvt_pk_bf16_f32 v{o+3}, v{q+2}, v{q+3}")
            vo = vT + 2 if m < 4 else vT + 3
            a(f"buffer_store_dwordx4 v[{o}:{o+3}], v{vo}, s[{sWS}:{sWS+3}], s{sT0} offen offset:{(m%4)*1024}")
        if wk == 0:
            a("s_branch L_k1_epi2")
    a.label("L_k1_epi2")
    st()
    if OPT("STAMP"):
        a("s_waitcnt vmcnt(0)")
    st.dump(sWS, sT0, vT, sW)
    if OPT("TRACE"):
        a(f"v_writelane_b32 v{vTr}, s64, 0")
        a(f"s_lshl_b32 s{sT0}, s2, 2")
        a(f"s_add_u32 s{sT0}, s{sT0}, s{sW}")
        a(f"s_lshl_b32 s{sT0}, s{sT0}, 8")
        a(f"s_add_u32 s{sT0}, s{sT0}, {STAMP_OFF + 3 * (1 << 20)}")
        a(f"v_lshlrev_b32 v{vT}, 2, v{vLane}")
        a(f"buffer_store_dword v{vTr}, v{vT}, s[{sWS}:{sWS+3}], s{sT0} offen")
    a("s_endpgm")

    def loader_loop(tag, n, issue, stepbytes, pre_tail=None, extra=0):
        adv = [f"s_add_u32 s{sRot}, s{sRot}, 1",
               f"s_and_b32 s{sRot}, s{sRot}, 15",
               f"s_mul_i32 s{sOff}, s{sRot}, {stepbytes}",
               f"s_add_u32 s{sOff}, s{sOff}, s{sBase}",
               f"s_add_u32 s{sSlot}, s{sSlot}, {SLOT}",
               f"s_cmp_eq_u32 s{sSlot}, {SLOT*NSLOT}",
               f"s_cselect_b32 s{sSlot}, 0, s{sSlot}"]
        a(f"s_mul_i32 s{sOff}, s{sRot}, {stepbytes}")
        a(f"s_add_u32 s{sOff}, s{sOff}, s{sBase}")
        a(f"s_mov_b32 s{sSlot}, 0")
        a(f"s_mov_b32 s{sIt}, 0")
        a.label(f"L_{tag}_loop")
        a(f"s_cmp_lt_u32 s{sIt}, {PDEPTH}")
        a(f"s_cbranch_scc1 L_{tag}_issue")
        a(f"s_waitcnt vmcnt({(PDEPTH-1)*n})")
        a("s_barrier")
        a.label(f"L_{tag}_issue")
        for i in issue():
            a(i)
        for i in adv:
            a(i)
        a(f"s_add_u32 s{sIt}, s{sIt}, 1")
        a(f"s_cmp_lt_u32 s{sIt}, {NSTAGE}")
        a(f"s_cbranch_scc1 L_{tag}_loop")
        if pre_tail:
            pre_tail()
        for k in range(PDEPTH):
            a(f"s_waitcnt vmcnt({(PDEPTH-1-k)*n+extra})")
            a("s_barrier")
        a("s_barrier")

    a.label("L_k1_ldc")
    a(f"v_lshrrev_b32 v{vT}, 3, v{vLane}")
    a(f"v_lshlrev_b32 v{vT}, 12, v{vT}")
    a(f"v_and_b32 v{vT+1}, 7, v{vLane}")
    a(f"v_lshrrev_b32 v{vT+2}, 4, v{vLane}")
    a(f"v_xor_b32 v{vT+1}, v{vT+1}, v{vT+2}")
    a(f"v_lshl_add_u32 v{vO}, v{vT+1}, 4, v{vT}")
    a(f"v_xor_b32 v{vT+1}, 4, v{vT+1}")
    a(f"v_lshl_add_u32 v{vO+1}, v{vT+1}, 4, v{vT}")
    a(f"v_add_u32 v{vO+1}, {8*4096-1024}, v{vO+1}")
    a(f"v_add_u32 v{vO+2}, {16*4096-2048}, v{vO}")
    a(f"v_add_u32 v{vO+3}, {16*4096-2048}, v{vO+1}")
    a(f"s_lshl_b32 s{sBase}, s{sRB}, 18")
    a(f"s_lshl_b32 s{sT0}, s{sH}, 11")
    a(f"s_add_u32 s{sBase}, s{sBase}, s{sT0}")
    a("s_waitcnt lgkmcnt(0)")
    srd(a, sA, 6, C_BYTES)
    srd(a, sB, 8, C_BYTES)

    def issue_c():
        ins = [f"s_add_u32 s{sOff2}, s{sOff}, {32*4096}"]
        for grp in range(4):
            s_ = sA if grp < 2 else sB
            o_ = sOff if grp % 2 == 0 else sOff2
            ins.append(f"s_add_u32 m0, s{sSlot}, {grp*4096}")
            ins.append("s_nop 0")
            for q in range(4):
                ins.append(f"buffer_load_dwordx4 v{vO+q}, s[{s_}:{s_+3}], s{o_} offen offset:{q*1024} {NTC}lds")
        return ins
    loader_loop("k1c", 16, issue_c, 128)
    a("s_endpgm")

    a.label("L_k1_ldx")
    a(f"s_mov_b32 s{sT1}, 4682")
    for q in range(14):
        if q:
            a(f"v_add_u32 v{vT}, {64*q}, v{vLane}")
            src = vT
        else:
            src = vLane
        a(f"v_mul_lo_u32 v{vT+1}, v{src}, s{sT1}")
        a(f"v_lshrrev_b32 v{vT+1}, 16, v{vT+1}")
        a(f"v_mul_u32_u24 v{vT+2}, 14, v{vT+1}")
        a(f"v_sub_u32 v{vT+2}, v{src}, v{vT+2}")
        a(f"v_lshrrev_b32 v{vT+3}, 1, v{vT+1}")
        a(f"v_and_b32 v{vT+3}, 4, v{vT+3}")
        a(f"v_xor_b32 v{vT+1}, v{vT+1}, v{vT+3}")
        a(f"v_mul_u32_u24 v{vT+1}, 896, v{vT+1}")
        a(f"v_lshl_add_u32 v{vO+q}, v{vT+2}, 4, v{vT+1}")
        if q % 4:
            a(f"v_subrev_u32 v{vO+q}, {1024*(q%4)}, v{vO+q}")
    a(f"s_mul_i32 s{sBase}, s{sH}, {1024*896}")
    a(f"s_mul_i32 s{sT0}, s{sJ}, 224")
    a(f"s_add_u32 s{sBase}, s{sBase}, s{sT0}")
    a("s_waitcnt lgkmcnt(0)")
    srd(a, sA, 4, X_BYTES)
    srd(a, sB, 10, D_BYTES)
    srd(a, sE, 12, D_BYTES)
    srd(a, sWS, 14, WS_BYTES)

    def issue_x():
        ins = []
        for q in range(14):
            if q % 4 == 0:
                ins.append(f"s_add_u32 m0, s{sSlot}, {XOFF + q*1024}")
                ins.append("s_nop 0")
            ins.append(f"buffer_load_dwordx4 v{vO+q}, s[{sA}:{sA+3}], s{sOff} offen offset:{(q%4)*1024} {NTX}lds")
        return ins
    a(f"v_and_b32 v{vT}, 15, v{vLane}")
    a(f"v_mul_u32_u24 v{vT}, 896, v{vT}")
    a(f"v_lshrrev_b32 v{vT+1}, 4, v{vLane}")
    a(f"v_lshl_add_u32 v{vT}, v{vT+1}, 3, v{vT}")
    a(f"v_lshlrev_b32 v{vT+1}, 4, v{vLane}")
    a(f"s_mul_i32 s{sT0}, s2, 9363")
    a(f"s_lshr_b32 s{sT0}, s{sT0}, 16")
    for w in range(256):
        assert (w * 9363) >> 16 == w // 7
    a(f"s_mul_i32 s{sT1}, s{sT0}, 7")
    a(f"s_sub_u32 s{sT1}, s2, s{sT1}")
    a(f"s_mul_i32 s{sT0}, s{sT0}, {16*896}")
    a(f"s_lshl_b32 s{sT1}, s{sT1}, 7")
    a(f"s_add_u32 s{sT0}, s{sT0}, s{sT1}")

    def dprep_loads():
        for i in range(4):
            r = FR + i * 4
            a(f"buffer_load_dwordx2 v[{r}:{r+1}], v{vT}, s[{sB}:{sB+3}], s{sT0} offen offset:{i*32} {NTD}")
            a(f"buffer_load_dwordx2 v[{r+2}:{r+3}], v{vT}, s[{sE}:{sE+3}], s{sT0} offen offset:{i*32} {NTD}")

    def dprep_stores():
        a(f"s_lshl_b32 s{sT0}, s2, 12")
        a(f"s_add_u32 s{sT0}, s{sT0}, {DOFF}")
        for i in range(4):
            r = FR + i * 4
            a(f"v_xor_b32 v{r+2}, 0x80008000, v{r+2}")
            a(f"v_xor_b32 v{r+3}, 0x80008000, v{r+3}")
            a(f"buffer_store_dwordx4 v[{r}:{r+3}], v{vT+1}, s[{sWS}:{sWS+3}], s{sT0} offen offset:{i*1024}")
    dprep_loads()
    loader_loop("k1x", 14, issue_x, 64 * 896, dprep_stores, 4)
    a.label("L_k1_done")
    a("s_endpgm")
    return name, 228, 0, NSLOT * SLOT, 384


def main():
    a = Asm()
    a.raw('.amdgcn_target "amdgcn-amd-amdhsa--gfx950"')
    a.raw(".text")
    ks = [gen_k1(a), G.gen_k2(a)]
    out = HEADER
    for name, nv, na, lds, blk in ks:
        out += f"; @launch kernel={name} grid=(256,1,1) block=({blk},1,1) lds={lds}\n"
    out += a.text()
    out += '.section .rodata,"a"\n'
    for name, nv, na, lds, blk in ks:
        out += G.descriptor(name, nv, na)
    path = sys.argv[1] if len(sys.argv) > 1 else "standalone__spectral_fnet__prompt.s"
    open(path, "w").write(out)


if __name__ == "__main__":
    main()
```

```python
import sys, os, math
import gen as G
from gen import OPT, Asm, Stamps, srd, interleave, flat, X_BYTES, C_BYTES, D_BYTES, DOFF, WS_BYTES, STAMP_OFF, HEADER

NSLOT, SLOT, XOFF, NSTAGE = 5, 30720, 16384, 16
NTC = 'nt ' if OPT('NTC', 1) else ''
NTX = 'nt ' if OPT('NTX', 0) else ''
NTD = 'nt' if OPT('NTD', 1) else ''
MAPB = OPT("MAPB", 1)
PDEPTH = 4


def gen_k1(a):
    name = "fnet_k1_kernel"
    a.raw(f".globl {name}")
    a.raw(".p2align 8")
    a.raw(f".type {name},@function")
    a.label(name)
    sA, sB, sWS, sE = 16, 20, 24, 28
    sW = 36
    sT0, sT1, sT2, sT3 = 37, 38, 39, 40
    sH, sRB, sJ = 41, 42, 43
    sWk, sWm = 44, 45
    sRot = 46
    sBase = 47
    sOff = 48
    sOff2 = 49
    sSlot = 50
    sIt = 51
    sF = 52

    vLane = 1
    vT = 2
    vCb0 = 6
    vXb0 = 7
    vCb = 9
    vXb = 10
    vTr = 12
    vO = 12
    FR = 28
    ACC = 116

    def cfrag(s, n):
        return FR + s * 44 + n * 4

    def xfrag(s, m):
        return FR + s * 44 + 16 + m * 4

    def acc(m, n):
        return ACC + (m * 4 + n) * 4

    st = Stamps(a, 64, 0)
    a("s_cmp_ge_u32 s2, 256")
    a("s_cbranch_scc1 L_k1_done")
    st()
    a("s_load_dwordx8 s[4:11], s[0:1], 0")
    a("s_load_dwordx2 s[12:13], s[0:1], 32")
    a("s_load_dwordx2 s[14:15], s[0:1], 56")
    a(f"v_lshrrev_b32 v{vT}, 6, v0")
    a(f"v_and_b32 v{vLane}, 63, v0")
    a(f"v_readfirstlane_b32 s{sW}, v{vT}")
    a(f"s_and_b32 s{sT0}, s2, 7")
    a(f"s_lshr_b32 s{sT1}, s2, 3")
    a(f"s_and_b32 s{sJ}, s{sT1}, 3")
    if MAPB:
        a(f"s_lshr_b32 s{sH}, s{sT1}, 2")
        a(f"s_and_b32 s{sH}, s{sH}, 1")
        a(f"s_lshr_b32 s{sRot}, s{sT1}, 3")
        a(f"s_lshl_b32 s{sRB}, s{sRot}, 3")
        a(f"s_add_u32 s{sRB}, s{sRB}, s{sT0}")
        a(f"s_add_u32 s{sRot}, s{sRot}, s{sJ}")
        a(f"s_lshl_b32 s{sRot}, s{sRot}, 2")
    else:
        a(f"s_and_b32 s{sH}, s{sT0}, 1")
        a(f"s_lshr_b32 s{sRB}, s{sT0}, 1")
        a(f"s_lshr_b32 s{sRot}, s{sT1}, 2")
        a(f"s_lshl_b32 s{sT2}, s{sRot}, 2")
        a(f"s_add_u32 s{sRB}, s{sRB}, s{sT2}")
        a(f"s_lshl_b32 s{sRot}, s{sRot}, 1")
        if OPT("ROT", 2) == 2:
            a(f"s_lshl_b32 s{sT2}, s{sJ}, 2")
            a(f"s_add_u32 s{sRot}, s{sRot}, s{sT2}")
    a(f"s_and_b32 s{sRot}, s{sRot}, 15")
    a(f"s_cmp_eq_u32 s{sW}, 4")
    a("s_cbranch_scc1 L_k1_ldc")
    a(f"s_cmp_eq_u32 s{sW}, 5")
    a("s_cbranch_scc1 L_k1_ldx")

    a(f"s_and_b32 s{sWk}, s{sW}, 1")
    a(f"s_lshr_b32 s{sWm}, s{sW}, 1")
    a(f"v_and_b32 v{vT}, 15, v{vLane}")
    a(f"v_lshrrev_b32 v{vT+1}, 4, v{vLane}")
    a(f"s_lshl_b32 s{sT0}, s{sWk}, 2")
    a(f"v_add_u32 v{vT+2}, s{sT0}, v{vT+1}")
    a(f"v_lshrrev_b32 v{vT+3}, 1, v{vT}")
    a(f"v_xor_b32 v{vT+2}, v{vT+2}, v{vT+3}")
    a(f"v_lshlrev_b32 v{vT+2}, 4, v{vT+2}")
    a(f"v_lshl_add_u32 v{vCb0}, v{vT}, 7, v{vT+2}")
    a(f"s_lshl_b32 s{sT0}, s{sWm}, 12")
    a(f"v_add_u32 v{vCb0}, s{sT0}, v{vCb0}")
    a(f"v_lshlrev_b32 v{vT+2}, 3, v{vT+1}")
    a(f"v_lshrrev_b32 v{vT+3}, 2, v{vT}")
    a(f"v_add_u32 v{vT+2}, v{vT+2}, v{vT+3}")
    a(f"s_lshl_b32 s{sT0}, s{sWk}, 5")
    a(f"v_add_u32 v{vT+2}, s{sT0}, v{vT+2}")
    a(f"v_and_b32 v{vT+3}, 1, v{vT+1}")
    a(f"v_lshlrev_b32 v{vT+3}, 2, v{vT+3}")
    a(f"v_add_u32 v{vXb0}, v{vT+2}, v{vT+3}")
    a(f"v_xor_b32 v{vT+3}, 4, v{vT+3}")
    a(f"v_add_u32 v{vXb0+1}, v{vT+2}, v{vT+3}")
    a(f"v_and_b32 v{vT}, 3, v{vT}")
    a(f"v_lshlrev_b32 v{vT}, 3, v{vT}")
    a(f"v_add_u32 v{vT}, {XOFF}, v{vT}")
    a(f"v_mov_b32 v{vT+1}, 224")
    a(f"v_mad_u32_u24 v{vXb0}, v{vXb0}, v{vT+1}, v{vT}")
    a(f"v_mad_u32_u24 v{vXb0+1}, v{vXb0+1}, v{vT+1}, v{vT}")
    for r in range(112):
        a(f"v_mov_b32 v{ACC+r}, 0")
    a("s_waitcnt lgkmcnt(0)")
    srd(a, sWS, 14, WS_BYTES)

    def frag_reads(s, vc, vx):
        ins = []

        def xr(m):
            return [f"ds_read_b64_tr_b16 v[{xfrag(s,m)}:{xfrag(s,m)+1}], v{vx} offset:{m*32}",
                    f"ds_read_b64_tr_b16 v[{xfrag(s,m)+2}:{xfrag(s,m)+3}], v{vx+1} offset:{m*32}"]
        ins += xr(0)
        for n in range(4):
            pq, tl = n >> 1, n & 1
            ins.append(f"ds_read_b128 v[{cfrag(s,n)}:{cfrag(s,n)+3}], v{vc} offset:{pq*8192+tl*2048}")
        for m in range(1, 7):
            ins += xr(m)
        return ins

    def mfmas(s):
        return [f"v_mfma_f32_16x16x32_bf16 v[{acc(m,n)}:{acc(m,n)+3}], v[{xfrag(s,m)}:{xfrag(s,m)+3}], "
                f"v[{cfrag(s,n)}:{cfrag(s,n)+3}], v[{acc(m,n)}:{acc(m,n)+3}]"
                for m in range(7) for n in range(4)]

    def trace():
        if OPT("TRACE"):
            a("s_memtime s[96:97]")
            a("s_waitcnt lgkmcnt(0)")
            a(f"s_mov_b32 m0, s98")
            a("s_add_u32 s98, s98, 1")
            a(f"v_writelane_b32 v{vTr}, s96, m0")

    a(f"s_mov_b32 s{sSlot}, 0")
    a(f"s_mov_b32 s{sIt}, 0")
    if OPT("TRACE"):
        a("s_mov_b32 s98, 5")
    st()
    a("s_barrier")
    st()
    for i in frag_reads(0, vCb0, vXb0):
        a(i)
    nxt = [[f"s_add_u32 s{sSlot}, s{sSlot}, {SLOT}",
            f"s_cmp_eq_u32 s{sSlot}, {SLOT*NSLOT}",
            f"s_cselect_b32 s{sSlot}, 0, s{sSlot}"],
           f"v_add_u32 v{vCb}, s{sSlot}, v{vCb0}",
           f"v_add_u32 v{vXb}, s{sSlot}, v{vXb0}",
           f"v_add_u32 v{vXb+1}, s{sSlot}, v{vXb0+1}"]
    for i in flat(nxt):
        a(i)
    a.label("L_k1_loop")
    for s in range(2):
        a("s_waitcnt lgkmcnt(0)")
        a("s_barrier")
        trace()
        fill = frag_reads(1 - s, vCb, vXb) + nxt
        if s == 1:
            fill += [[f"s_add_u32 s{sIt}, s{sIt}, 1", f"s_cmp_lt_u32 s{sIt}, {NSTAGE//2}"]]
        for i in interleave(mfmas(s), fill, per=OPT("PER", 1)):
            a(i)
    a("s_cbranch_scc1 L_k1_loop")
    st()
    a("s_waitcnt lgkmcnt(0)")
    a("s_barrier")
    a(f"s_mul_i32 s{sT0}, s{sW}, 14336")
    a(f"s_xor_b32 s{sT1}, s{sW}, 1")
    a(f"s_mul_i32 s{sT1}, s{sT1}, 14336")
    a(f"v_lshlrev_b32 v{vT}, 4, v{vLane}")
    a(f"v_add_u32 v{vT+1}, s{sT1}, v{vT}")
    a(f"v_add_u32 v{vT}, s{sT0}, v{vT}")
    a(f"s_cmp_eq_u32 s{sWk}, 0")
    a("s_cbranch_scc0 L_k1_epi1")
    for wk in range(2):
        if wk == 1:
            a.label("L_k1_epi1")
        give, keep = 1 - wk, wk
        idx = 0
        for m in range(7):
            for pq in range(2):
                r = acc(m, pq * 2 + give)
                a(f"ds_write_b128 v{vT}, v[{r}:{r+3}] offset:{idx*1024}")
                idx += 1
        a("s_waitcnt lgkmcnt(0)")
        a("s_barrier")
        idx = 0
        for m in range(7):
            for pq in range(2):
                r = FR + idx * 4
                a(f"ds_read_b128 v[{r}:{r+3}], v{vT+1} offset:{idx*1024}")
                idx += 1
        a(f"s_lshl_b32 s{sT0}, s{sH}, 7")
        a(f"s_lshl_b32 s{sT1}, s{sRB}, 2")
        a(f"s_add_u32 s{sT0}, s{sT0}, s{sT1}")
        a(f"s_lshl_b32 s{sT1}, s{sWm}, 1")
        a(f"s_add_u32 s{sT0}, s{sT0}, s{sT1}")
        a(f"s_add_u32 s{sT0}, s{sT0}, {keep}")
        a(f"s_mul_i32 s{sT0}, s{sT0}, 28")
        a(f"s_mul_i32 s{sT1}, s{sJ}, 7")
        a(f"s_add_u32 s{sT0}, s{sT0}, s{sT1}")
        a(f"s_lshl_b32 s{sT0}, s{sT0}, 10")
        a(f"v_lshlrev_b32 v{vT+2}, 4, v{vLane}")
        a(f"v_add_u32 v{vT+3}, 4096, v{vT+2}")
        idx = 0
        for m in range(7):
            a(f"s_waitcnt lgkmcnt({12-2*m})")
            for pq in range(2):
                r = FR + idx * 4
                ac = acc(m, pq * 2 + keep)
                for k in range(4):
                    a(f"v_add_f32 v{ac+k}, v{ac+k}, v{r+k}")
                idx += 1
            p = acc(m, keep)
            q = acc(m, 2 + keep)
            o = FR + 56 + m * 4
            a(f"v_cvt_pk_bf16_f32 v{o}, v{p}, v{p+1}")
            a(f"v_cvt_pk_bf16_f32 v{o+1}, v{p+2}, v{p+3}")
            a(f"v_cvt_pk_bf16_f32 v{o+2}, v{q}, v{q+1}")
            a(f"v_cvt_pk_bf16_f32 v{o+3}, v{q+2}, v{q+3}")
            vo = vT + 2 if m < 4 else vT + 3
            a(f"buffer_store_dwordx4 v[{o}:{o+3}], v{vo}, s[{sWS}:{sWS+3}], s{sT0} offen offset:{(m%4)*1024}")
        if wk == 0:
            a("s_branch L_k1_epi2")
    a.label("L_k1_epi2")
    st()
    if OPT("STAMP"):
        a("s_waitcnt vmcnt(0)")
    st.dump(sWS, sT0, vT, sW)
    if OPT("TRACE"):
        a(f"v_writelane_b32 v{vTr}, s64, 0")
        a(f"s_lshl_b32 s{sT0}, s2, 2")
        a(f"s_add_u32 s{sT0}, s{sT0}, s{sW}")
        a(f"s_lshl_b32 s{sT0}, s{sT0}, 8")
        a(f"s_add_u32 s{sT0}, s{sT0}, {STAMP_OFF + 3 * (1 << 20)}")
        a(f"v_lshlrev_b32 v{vT}, 2, v{vLane}")
        a(f"buffer_store_dword v{vTr}, v{vT}, s[{sWS}:{sWS+3}], s{sT0} offen")
    a("s_endpgm")

    def loader_loop(tag, n, issue, stepbytes, pre_tail=None, extra=0):
        adv = [f"s_add_u32 s{sRot}, s{sRot}, 1",
               f"s_and_b32 s{sRot}, s{sRot}, 15",
               f"s_mul_i32 s{sOff}, s{sRot}, {stepbytes}",
               f"s_add_u32 s{sOff}, s{sOff}, s{sBase}",
               f"s_add_u32 s{sSlot}, s{sSlot}, {SLOT}",
               f"s_cmp_eq_u32 s{sSlot}, {SLOT*NSLOT}",
               f"s_cselect_b32 s{sSlot}, 0, s{sSlot}"]
        a(f"s_mul_i32 s{sOff}, s{sRot}, {stepbytes}")
        a(f"s_add_u32 s{sOff}, s{sOff}, s{sBase}")
        a(f"s_mov_b32 s{sSlot}, 0")
        a(f"s_mov_b32 s{sIt}, 0")
        a.label(f"L_{tag}_loop")
        a(f"s_cmp_lt_u32 s{sIt}, {PDEPTH}")
        a(f"s_cbranch_scc1 L_{tag}_issue")
        a(f"s_waitcnt vmcnt({(PDEPTH-1)*n})")
        a("s_barrier")
        a.label(f"L_{tag}_issue")
        for i in issue():
            a(i)
        for i in adv:
            a(i)
        a(f"s_add_u32 s{sIt}, s{sIt}, 1")
        a(f"s_cmp_lt_u32 s{sIt}, {NSTAGE}")
        a(f"s_cbranch_scc1 L_{tag}_loop")
        if pre_tail:
            pre_tail()
        for k in range(PDEPTH):
            a(f"s_waitcnt vmcnt({(PDEPTH-1-k)*n+extra})")
            a("s_barrier")
        a("s_barrier")

    a.label("L_k1_ldc")
    a(f"v_lshrrev_b32 v{vT}, 3, v{vLane}")
    a(f"v_lshlrev_b32 v{vT}, 12, v{vT}")
    a(f"v_and_b32 v{vT+1}, 7, v{vLane}")
    a(f"v_lshrrev_b32 v{vT+2}, 4, v{vLane}")
    a(f"v_xor_b32 v{vT+1}, v{vT+1}, v{vT+2}")
    a(f"v_lshl_add_u32 v{vO}, v{vT+1}, 4, v{vT}")
    a(f"v_xor_b32 v{vT+1}, 4, v{vT+1}")
    a(f"v_lshl_add_u32 v{vO+1}, v{vT+1}, 4, v{vT}")
    a(f"v_add_u32 v{vO+1}, {8*4096-1024}, v{vO+1}")
    a(f"v_add_u32 v{vO+2}, {16*4096-2048}, v{vO}")
    a(f"v_add_u32 v{vO+3}, {16*4096-2048}, v{vO+1}")
    a(f"s_lshl_b32 s{sBase}, s{sRB}, 18")
    a(f"s_lshl_b32 s{sT0}, s{sH}, 11")
    a(f"s_add_u32 s{sBase}, s{sBase}, s{sT0}")
    a("s_waitcnt lgkmcnt(0)")
    srd(a, sA, 6, C_BYTES)
    srd(a, sB, 8, C_BYTES)

    def issue_c():
        ins = [f"s_add_u32 s{sOff2}, s{sOff}, {32*4096}"]
        for grp in range(4):
            s_ = sA if grp < 2 else sB
            o_ = sOff if grp % 2 == 0 else sOff2
            ins.append(f"s_add_u32 m0, s{sSlot}, {grp*4096}")
            ins.append("s_nop 0")
            for q in range(4):
                ins.append(f"buffer_load_dwordx4 v{vO+q}, s[{s_}:{s_+3}], s{o_} offen offset:{q*1024} {NTC}lds")
        return ins
    loader_loop("k1c", 16, issue_c, 128)
    a("s_endpgm")

    a.label("L_k1_ldx")
    a(f"s_mov_b32 s{sT1}, 4682")
    for q in range(14):
        if q:
            a(f"v_add_u32 v{vT}, {64*q}, v{vLane}")
            src = vT
        else:
            src = vLane
        a(f"v_mul_lo_u32 v{vT+1}, v{src}, s{sT1}")
        a(f"v_lshrrev_b32 v{vT+1}, 16, v{vT+1}")
        a(f"v_mul_u32_u24 v{vT+2}, 14, v{vT+1}")
        a(f"v_sub_u32 v{vT+2}, v{src}, v{vT+2}")
        a(f"v_lshrrev_b32 v{vT+3}, 1, v{vT+1}")
        a(f"v_and_b32 v{vT+3}, 4, v{vT+3}")
        a(f"v_xor_b32 v{vT+1}, v{vT+1}, v{vT+3}")
        a(f"v_mul_u32_u24 v{vT+1}, 896, v{vT+1}")
        a(f"v_lshl_add_u32 v{vO+q}, v{vT+2}, 4, v{vT+1}")
        if q % 4:
            a(f"v_subrev_u32 v{vO+q}, {1024*(q%4)}, v{vO+q}")
    a(f"s_mul_i32 s{sBase}, s{sH}, {1024*896}")
    a(f"s_mul_i32 s{sT0}, s{sJ}, 224")
    a(f"s_add_u32 s{sBase}, s{sBase}, s{sT0}")
    a("s_waitcnt lgkmcnt(0)")
    srd(a, sA, 4, X_BYTES)
    srd(a, sB, 10, D_BYTES)
    srd(a, sE, 12, D_BYTES)
    srd(a, sWS, 14, WS_BYTES)

    def issue_x():
        ins = []
        for q in range(14):
            if q % 4 == 0:
                ins.append(f"s_add_u32 m0, s{sSlot}, {XOFF + q*1024}")
                ins.append("s_nop 0")
            ins.append(f"buffer_load_dwordx4 v{vO+q}, s[{sA}:{sA+3}], s{sOff} offen offset:{(q%4)*1024} {NTX}lds")
        return ins
    a(f"v_and_b32 v{vT}, 15, v{vLane}")
    a(f"v_mul_u32_u24 v{vT}, 896, v{vT}")
    a(f"v_lshrrev_b32 v{vT+1}, 4, v{vLane}")
    a(f"v_lshl_add_u32 v{vT}, v{vT+1}, 3, v{vT}")
    a(f"v_lshlrev_b32 v{vT+1}, 4, v{vLane}")
    a(f"s_mul_i32 s{sT0}, s2, 9363")
    a(f"s_lshr_b32 s{sT0}, s{sT0}, 16")
    for w in range(256):
        assert (w * 9363) >> 16 == w // 7
    a(f"s_mul_i32 s{sT1}, s{sT0}, 7")
    a(f"s_sub_u32 s{sT1}, s2, s{sT1}")
    a(f"s_mul_i32 s{sT0}, s{sT0}, {16*896}")
    a(f"s_lshl_b32 s{sT1}, s{sT1}, 7")
    a(f"s_add_u32 s{sT0}, s{sT0}, s{sT1}")

    def dprep_loads():
        for i in range(4):
            r = FR + i * 4
            a(f"buffer_load_dwordx2 v[{r}:{r+1}], v{vT}, s[{sB}:{sB+3}], s{sT0} offen offset:{i*32} {NTD}")
            a(f"buffer_load_dwordx2 v[{r+2}:{r+3}], v{vT}, s[{sE}:{sE+3}], s{sT0} offen offset:{i*32} {NTD}")

    def dprep_stores():
        a(f"s_lshl_b32 s{sT0}, s2, 12")
        a(f"s_add_u32 s{sT0}, s{sT0}, {DOFF}")
        for i in range(4):
            r = FR + i * 4
            a(f"v_xor_b32 v{r+2}, 0x80008000, v{r+2}")
            a(f"v_xor_b32 v{r+3}, 0x80008000, v{r+3}")
            a(f"buffer_store_dwordx4 v[{r}:{r+3}], v{vT+1}, s[{sWS}:{sWS+3}], s{sT0} offen offset:{i*1024}")
    dprep_loads()
    loader_loop("k1x", 14, issue_x, 64 * 896, dprep_stores, 4)
    a.label("L_k1_done")
    a("s_endpgm")
    return name, 228, 0, NSLOT * SLOT, 384


def main():
    a = Asm()
    a.raw('.amdgcn_target "amdgcn-amd-amdhsa--gfx950"')
    a.raw(".text")
    ks = [gen_k1(a), G.gen_k2(a)]
    seq = os.environ.get("SEQ", "12")
    if "E" in seq:
        a.raw(".globl fnet_e_kernel\n.p2align 8\n.type fnet_e_kernel,@function\nfnet_e_kernel:\n    s_endpgm")
        ks.append(("fnet_e_kernel", 8, 0, 0, 64))
    out = HEADER
    for c in seq:
        name, nv, na, lds, blk = ks[{"1": 0, "2": 1, "E": 2}[c]]
        out += f"; @launch kernel={name} grid=({1 if c == 'E' else 256},1,1) block=({blk},1,1) lds={lds}\n"
    out += a.text()
    out += '.section .rodata,"a"\n'
    for name, nv, na, lds, blk in ks:
        out += G.descriptor(name, nv, na)
    path = sys.argv[1] if len(sys.argv) > 1 else "standalone__spectral_fnet__prompt.s"
    open(path, "w").write(out)


if __name__ == "__main__":
    main()
```

```python
import sys, os
OPT = lambda k, d=0: int(os.environ.get(k, d))

HEADER = """; Kernarg layout for this problem (64 bytes, ptrs only, base s[0:1]):
"""

X_BYTES = 2048 * 448 * 2
C_BYTES = 2048 * 2048 * 2
D_BYTES = 448 * 448 * 2
PQ_BYTES = 2 * 128 * 28 * 1024
DOFF = PQ_BYTES
DF_BYTES = 28 * 28 * 1024
NCOPY = OPT('NCOPY', 1)
NFR = 25 if NCOPY == 8 else 4
WS_BYTES = PQ_BYTES + NCOPY * DF_BYTES


class Asm:
    def __init__(self):
        self.lines = []

    def __call__(self, s):
        self.lines.append("    " + s)

    def label(self, s):
        self.lines.append(s + ":")

    def raw(self, s):
        self.lines.append(s)

    def text(self):
        return "\n".join(self.lines) + "\n"


STAMP_OFF = 64 << 20


class Stamps:
    def __init__(self, a, base, kidx):
        self.a, self.base, self.n, self.kidx = a, base, 0, kidx

    def __call__(self):
        if not (OPT("STAMP") or OPT("DBGSTAMP")):
            return
        a = self.a
        a(f"s_memtime s[{self.base+self.n*4}:{self.base+self.n*4+1}]")
        a(f"s_memrealtime s[{self.base+self.n*4+2}:{self.base+self.n*4+3}]")
        self.n += 1

    def dump(self, sws, stmp, vtmp, swave):
        if OPT("DBGSTAMP"):
            a = self.a
            a("s_waitcnt vmcnt(0)")
            self()
            a(f"s_load_dwordx2 s[{sws}:{sws+1}], s[0:1], 48")
            a("s_waitcnt lgkmcnt(0)")
            a(f"s_and_b32 s{sws+1}, s{sws+1}, 0xffff")
            a(f"s_mov_b32 s{sws+2}, 256")
            a(f"s_xor_b32 s{stmp}, s2, 5")
            a(f"s_add_u32 s{stmp}, s{stmp}, s{swave}")
            a(f"s_lshl_b32 s{stmp}, s{stmp}, 8")
            a(f"v_mov_b32 v{vtmp+1}, 0")
            for i in range(1, self.n):
                a(f"s_sub_u32 s{self.base+i*4}, s{self.base+i*4}, s{self.base}")
                a(f"s_sub_u32 s{self.base+i*4+2}, s{self.base+i*4+2}, s{self.base+2}")
                a(f"v_mov_b32 v{vtmp}, s{self.base+i*4}")
                a(f"buffer_store_dword v{vtmp}, v{vtmp+1}, s[{sws}:{sws+3}], s{stmp} offen offset:{(i-1)*8}")
                a(f"v_mov_b32 v{vtmp}, s{self.base+i*4+2}")
                a(f"buffer_store_dword v{vtmp}, v{vtmp+1}, s[{sws}:{sws+3}], s{stmp} offen offset:{(i-1)*8+4}")
            return
        if not OPT("STAMP"):
            return
        a = self.a
        self()
        a("s_waitcnt lgkmcnt(0)")
        a(f"s_mov_b32 s{sws+2}, 0x8000000")
        a(f"s_lshl_b32 s{stmp}, s2, 2")
        a(f"s_add_u32 s{stmp}, s{stmp}, s{swave}")
        a(f"s_lshl_b32 s{stmp}, s{stmp}, 7")
        a(f"s_add_u32 s{stmp}, s{stmp}, {STAMP_OFF + self.kidx * (1 << 20)}")
        a(f"v_mov_b32 v{vtmp+1}, 0")
        for i in range(self.n):
            a(f"v_mov_b32 v{vtmp}, s{self.base+i*4}")
            a(f"buffer_store_dword v{vtmp}, v{vtmp+1}, s[{sws}:{sws+3}], s{stmp} offen offset:{i*8}")
            a(f"v_mov_b32 v{vtmp}, s{self.base+i*4+2}")
            a(f"buffer_store_dword v{vtmp}, v{vtmp+1}, s[{sws}:{sws+3}], s{stmp} offen offset:{i*8+4}")


def srd(a, d, b, nbytes):
    a(f"s_mov_b32 s{d}, s{b}")
    a(f"s_and_b32 s{d+1}, s{b+1}, 0xffff")
    a(f"s_mov_b32 s{d+2}, {nbytes}")
    a(f"s_mov_b32 s{d+3}, 0x20000")


def interleave(main, fill, per=2):
    out = []
    fi = 0

    def put(x):
        if isinstance(x, list):
            out.extend(x)
        else:
            out.append(x)
    for m in main:
        out.append(m)
        for _ in range(per):
            if fi < len(fill):
                put(fill[fi])
                fi += 1
    for x in fill[fi:]:
        put(x)
    return out


def flat(l):
    out = []
    for x in l:
        if isinstance(x, list):
            out.extend(x)
        else:
            out.append(x)
    return out


NSLOT = 5
NTD = 'nt' if OPT('NTD', 1) else ''
NTS = 'nt' if OPT('NTS', 0) else ''
NT2 = 'nt' if OPT('NT2', 0) else ''
NTC = 'nt ' if OPT('NTC', 1) else ''
NTX = 'nt ' if OPT('NTX', 1) else ''
SLOT = 30720
XOFF = 16384
NSTAGE = 16


def gen_k1(a):
    name = "fnet_k1_kernel"
    a.raw(f".globl {name}")
    a.raw(".p2align 8")
    a.raw(f".type {name},@function")
    a.label(name)
    sX, sC, sWS, sDr, sDi = 16, 20, 24, 28, 32
    sW = 36
    sCo = 37
    sXo = 38
    sM0C = 39
    sSlotW = 40
    sSlotR = 41
    sIt = 42
    sT0 = 43
    sT1 = 44
    sH, sRB, sJ = 45, 46, 47
    sMask = 48
    sWk, sWm = 50, 51
    sF = 52
    sStg = 53
    sCoE, sXoE = 54, 55
    sOOB = 56
    sWC, sWX = 57, 58
    sRot = 59
    sT2, sT3 = 60, 61
    sR0, sWs, sI = 62, 63, 3

    vLane = 1
    vOC = 2
    vOX = 6
    vCb0 = 10
    vXb0 = 11
    vCb = 13
    vXb = 14
    vT = 16
    vDp = 20
    vDo = 24
    FR = 28
    ACC = 116

    def cfrag(s, n):
        b = FR + s * 44 + n * 4
        return b

    def xfrag(s, m):
        b = FR + s * 44 + 16 + m * 4
        return b

    def acc(m, n):
        return ACC + (m * 4 + n) * 4

    st = Stamps(a, 64, 0)
    a("s_cmp_ge_u32 s2, 256")
    a("s_cbranch_scc1 L_k1_done")
    st()
    a("s_load_dwordx8 s[4:11], s[0:1], 0")
    a("s_load_dwordx2 s[12:13], s[0:1], 32")
    a("s_load_dwordx2 s[14:15], s[0:1], 56")
    a(f"v_lshrrev_b32 v{vT}, 6, v0")
    a(f"v_and_b32 v{vLane}, 63, v0")
    a(f"v_readfirstlane_b32 s{sW}, v{vT}")
    a(f"s_and_b32 s{sT0}, s2, 7")
    a(f"s_lshr_b32 s{sT1}, s2, 3")
    if OPT("MAPB"):
        a(f"s_lshr_b32 s{sH}, s{sT1}, 2")
        a(f"s_and_b32 s{sH}, s{sH}, 1")
        a(f"s_lshr_b32 s{sRB}, s{sT1}, 3")
        a(f"s_lshl_b32 s{sRB}, s{sRB}, 3")
        a(f"s_add_u32 s{sRB}, s{sRB}, s{sT0}")
    else:
        a(f"s_and_b32 s{sH}, s{sT0}, 1")
        a(f"s_lshr_b32 s{sRB}, s{sT0}, 1")
        a(f"s_lshr_b32 s{sJ}, s{sT1}, 2")
        a(f"s_lshl_b32 s{sJ}, s{sJ}, 2")
        a(f"s_add_u32 s{sRB}, s{sRB}, s{sJ}")
    a(f"s_and_b32 s{sJ}, s{sT1}, 3")
    a(f"s_and_b32 s{sWk}, s{sW}, 1")
    a(f"s_lshr_b32 s{sWm}, s{sW}, 1")
    a(f"s_lshl_b32 s{sCo}, s{sRB}, 18")
    a(f"s_lshl_b32 s{sT0}, s{sWk}, 17")
    a(f"s_add_u32 s{sCo}, s{sCo}, s{sT0}")
    a(f"s_lshl_b32 s{sT0}, s{sH}, 11")
    a(f"s_add_u32 s{sCo}, s{sCo}, s{sT0}")
    a(f"s_mul_i32 s{sXo}, s{sH}, {1024*896}")
    a(f"s_mul_i32 s{sT0}, s{sJ}, 224")
    a(f"s_add_u32 s{sXo}, s{sXo}, s{sT0}")
    if OPT("ROT", 0):
        if OPT("MAPB"):
            a(f"s_lshr_b32 s{sRot}, s{sT1}, 3")
            a(f"s_lshl_b32 s{sRot}, s{sRot}, 2")
        else:
            a(f"s_lshr_b32 s{sRot}, s{sT1}, 2")
            a(f"s_lshl_b32 s{sRot}, s{sRot}, 1")
        if OPT("ROT", 0) == 3:
            a(f"s_lshr_b32 s{sT0}, s{sT1}, 3")
            a(f"s_add_u32 s{sT0}, s{sT0}, s{sJ}")
            a(f"s_lshl_b32 s{sR0}, s{sT0}, 1")
            a(f"s_and_b32 s{sR0}, s{sR0}, 7")
            a(f"s_lshr_b32 s{sT0}, s{sT1}, 2")
            a(f"s_and_b32 s{sT0}, s{sT0}, 1")
            a(f"s_lshl_b32 s{sWs}, s{sT0}, 3")
            if OPT("MAPB"):
                a(f"s_mov_b32 s{sWs}, 0")
            a(f"s_mov_b32 s{sI}, 0")
            a(f"s_add_u32 s{sRot}, s{sR0}, s{sWs}")
        if OPT("ROT", 0) == 2:
            a(f"s_lshl_b32 s{sT0}, s{sJ}, 2")
            a(f"s_add_u32 s{sRot}, s{sRot}, s{sT0}")
            a(f"s_and_b32 s{sRot}, s{sRot}, 15")
        a(f"s_mov_b32 s{sT2}, s{sCo}")
        a(f"s_mov_b32 s{sT3}, s{sXo}")
        a(f"s_lshl_b32 s{sT0}, s{sRot}, 7")
        a(f"s_add_u32 s{sCo}, s{sCo}, s{sT0}")
        a(f"s_mul_i32 s{sT0}, s{sRot}, {64*896}")
        a(f"s_add_u32 s{sXo}, s{sXo}, s{sT0}")
    a(f"s_lshl_b32 s{sWC}, s{sW}, 12")
    a(f"s_mul_i32 s{sWX}, s{sW}, 3584")
    a(f"s_add_u32 s{sWX}, s{sWX}, {XOFF}")
    a(f"s_mov_b32 s{sMask}, -1")
    a(f"s_mov_b32 s{sMask+1}, 0")
    a(f"s_mov_b32 s{sOOB}, 0x7f000000")
    a(f"v_lshrrev_b32 v{vT}, 3, v{vLane}")
    a(f"v_lshlrev_b32 v{vT}, 12, v{vT}")
    a(f"v_and_b32 v{vT+1}, 7, v{vLane}")
    a(f"v_lshrrev_b32 v{vT+2}, 4, v{vLane}")
    a(f"v_xor_b32 v{vT+1}, v{vT+1}, v{vT+2}")
    a(f"v_lshl_add_u32 v{vOC}, v{vT+1}, 4, v{vT}")
    a(f"v_xor_b32 v{vT+1}, 4, v{vT+1}")
    a(f"v_lshl_add_u32 v{vOC+1}, v{vT+1}, 4, v{vT}")
    a(f"v_add_u32 v{vOC+1}, {8*4096-1024}, v{vOC+1}")
    a(f"v_add_u32 v{vOC+2}, {16*4096-2048}, v{vOC}")
    a(f"v_add_u32 v{vOC+3}, {16*4096-2048}, v{vOC+1}")
    a(f"s_mul_i32 s{sT0}, s{sW}, 224")
    a(f"s_mov_b32 s{sT1}, 4682")
    for q in range(4):
        a(f"v_add_u32 v{vT}, s{sT0}, v{vLane}")
        if q:
            a(f"v_add_u32 v{vT}, {64*q}, v{vT}")
        a(f"v_mul_lo_u32 v{vT+1}, v{vT}, s{sT1}")
        a(f"v_lshrrev_b32 v{vT+1}, 16, v{vT+1}")
        a(f"v_mul_u32_u24 v{vT+2}, 14, v{vT+1}")
        a(f"v_sub_u32 v{vT+2}, v{vT}, v{vT+2}")
        a(f"v_lshrrev_b32 v{vT+3}, 1, v{vT+1}")
        a(f"v_and_b32 v{vT+3}, 4, v{vT+3}")
        a(f"v_xor_b32 v{vT+1}, v{vT+1}, v{vT+3}")
        a(f"v_mul_u32_u24 v{vT+1}, 896, v{vT+1}")
        a(f"v_lshl_add_u32 v{vOX+q}, v{vT+2}, 4, v{vT+1}")
        if q:
            a(f"v_subrev_u32 v{vOX+q}, {1024*q}, v{vOX+q}")
    for c in range(1024):
        assert (c * 4682) >> 16 == c // 14
    a("s_waitcnt lgkmcnt(0)")
    srd(a, sX, 4, X_BYTES)
    a(f"s_cmp_ge_u32 s{sW}, 2")
    a(f"s_cselect_b32 s{sC}, s8, s6")
    a(f"s_cselect_b32 s{sC+1}, s9, s7")
    a(f"s_and_b32 s{sC+1}, s{sC+1}, 0xffff")
    a(f"s_mov_b32 s{sC+2}, {C_BYTES}")
    a(f"s_mov_b32 s{sC+3}, 0x20000")
    srd(a, sWS, 14, WS_BYTES)
    srd(a, sDr, 10, D_BYTES)
    srd(a, sDi, 12, D_BYTES)
    a(f"s_cmp_eq_u32 s{sW}, 4")
    a("s_cbranch_scc1 L_k1_helper")

    def dma_stage(slot_expr, co, xo):
        ins = []
        ins.append(f"s_add_u32 m0, s{slot_expr}, s{sWC}")
        ins.append("s_nop 0")
        if OPT("NOC"):
            co = sOOB
        if OPT("NOX"):
            xo = sOOB
        for q in range(4):
            ins.append(f"buffer_load_dwordx4 v{vOC+q}, s[{sC}:{sC+3}], s{co} offen offset:{q*1024} {NTC}lds")
        ins.append(f"s_add_u32 m0, s{slot_expr}, s{sWX}")
        ins.append("s_nop 0")
        for q in range(3):
            ins.append(f"buffer_load_dwordx4 v{vOX+q}, s[{sX}:{sX+3}], s{xo} offen offset:{q*1024} {NTX}lds")
        ins.append([f"s_mov_b64 exec, s[{sMask}:{sMask+1}]",
                    f"buffer_load_dwordx4 v{vOX+3}, s[{sX}:{sX+3}], s{xo} offen offset:3072 {NTX}lds",
                    "s_mov_b64 exec, -1"])
        return ins

    def advance():
        if OPT("ROT", 0) == 3:
            return [f"s_add_u32 s{sI}, s{sI}, 1",
                    f"s_add_u32 s{sRot}, s{sR0}, s{sI}",
                    f"s_and_b32 s{sRot}, s{sRot}, 7",
                    f"s_xor_b32 s{sCo}, s{sI}, s{sWs}",
                    f"s_and_b32 s{sCo}, s{sCo}, 8",
                    f"s_add_u32 s{sRot}, s{sRot}, s{sCo}",
                    f"s_lshl_b32 s{sCo}, s{sRot}, 7",
                    f"s_add_u32 s{sCo}, s{sCo}, s{sT2}",
                    f"s_mul_i32 s{sXo}, s{sRot}, {64*896}",
                    f"s_add_u32 s{sXo}, s{sXo}, s{sT3}"]
        if OPT("ROT", 0):
            return [f"s_add_u32 s{sRot}, s{sRot}, 1",
                    f"s_and_b32 s{sRot}, s{sRot}, 15",
                    f"s_lshl_b32 s{sCo}, s{sRot}, 7",
                    f"s_add_u32 s{sCo}, s{sCo}, s{sT2}",
                    f"s_mul_i32 s{sXo}, s{sRot}, {64*896}",
                    f"s_add_u32 s{sXo}, s{sXo}, s{sT3}"]
        return [f"s_add_u32 s{sCo}, s{sCo}, 128",
                f"s_add_u32 s{sXo}, s{sXo}, {64*896}"]

    if OPT("PFBAR"):
        a("s_barrier")
    st()
    a(f"s_mov_b32 s{sSlotW}, 0")
    for _stg in range(NSLOT):
        for i in flat(dma_stage(sSlotW, sCo, sXo)):
            a(i)
        for i in flat(advance()):
            a(i)
        a(f"s_add_u32 s{sSlotW}, s{sSlotW}, {SLOT}")
    a(f"s_mov_b32 s{sSlotW}, 0")
    a(f"s_mov_b32 s{sStg}, {NSLOT}")

    NEXTRA = 0

    a(f"v_and_b32 v{vT}, 15, v{vLane}")
    a(f"v_lshrrev_b32 v{vT+1}, 4, v{vLane}")
    a(f"s_lshl_b32 s{sT0}, s{sWk}, 2")
    a(f"v_add_u32 v{vT+2}, s{sT0}, v{vT+1}")
    a(f"v_lshrrev_b32 v{vT+3}, 1, v{vT}")
    a(f"v_xor_b32 v{vT+2}, v{vT+2}, v{vT+3}")
    a(f"v_lshlrev_b32 v{vT+2}, 4, v{vT+2}")
    a(f"v_lshl_add_u32 v{vCb0}, v{vT}, 7, v{vT+2}")
    a(f"s_lshl_b32 s{sT0}, s{sWm}, 12")
    a(f"v_add_u32 v{vCb0}, s{sT0}, v{vCb0}")
    a(f"v_lshlrev_b32 v{vT+2}, 3, v{vT+1}")
    a(f"v_lshrrev_b32 v{vT+3}, 2, v{vT}")
    a(f"v_add_u32 v{vT+2}, v{vT+2}, v{vT+3}")
    a(f"s_lshl_b32 s{sT0}, s{sWk}, 5")
    a(f"v_add_u32 v{vT+2}, s{sT0}, v{vT+2}")
    a(f"v_and_b32 v{vT+3}, 1, v{vT+1}")
    a(f"v_lshlrev_b32 v{vT+3}, 2, v{vT+3}")
    a(f"v_add_u32 v{vXb0}, v{vT+2}, v{vT+3}")
    a(f"v_xor_b32 v{vT+3}, 4, v{vT+3}")
    a(f"v_add_u32 v{vXb0+1}, v{vT+2}, v{vT+3}")
    a(f"v_and_b32 v{vT}, 3, v{vT}")
    a(f"v_lshlrev_b32 v{vT}, 3, v{vT}")
    a(f"v_add_u32 v{vT}, {XOFF}, v{vT}")
    a(f"v_mov_b32 v{vT+1}, 224")
    a(f"v_mad_u32_u24 v{vXb0}, v{vXb0}, v{vT+1}, v{vT}")
    a(f"v_mad_u32_u24 v{vXb0+1}, v{vXb0+1}, v{vT+1}, v{vT}")
    for r in range(112):
        a(f"v_mov_b32 v{ACC+r}, 0")

    def frag_reads(s):
        ins = []
        def xr(m):
            return [f"ds_read_b64_tr_b16 v[{xfrag(s,m)}:{xfrag(s,m)+1}], v{vXb} offset:{m*32}",
                    f"ds_read_b64_tr_b16 v[{xfrag(s,m)+2}:{xfrag(s,m)+3}], v{vXb+1} offset:{m*32}"]
        ins += xr(0)
        for n in range(4):
            pq, tl = n >> 1, n & 1
            ins.append(f"ds_read_b128 v[{cfrag(s,n)}:{cfrag(s,n)+3}], v{vCb} offset:{pq*8192+tl*2048}")
        for m in range(1, 7):
            ins += xr(m)
        return ins

    def set_read_bases(slot_sgpr):
        return [f"v_add_u32 v{vCb}, s{slot_sgpr}, v{vCb0}",
                f"v_add_u32 v{vXb}, s{slot_sgpr}, v{vXb0}",
                f"v_add_u32 v{vXb+1}, s{slot_sgpr}, v{vXb0+1}"]

    def mfmas(s):
        return [f"v_mfma_f32_16x16x32_bf16 v[{acc(m,n)}:{acc(m,n)+3}], v[{xfrag(s,m)}:{xfrag(s,m)+3}], "
                f"v[{cfrag(s,n)}:{cfrag(s,n)+3}], v[{acc(m,n)}:{acc(m,n)+3}]"
                for m in range(7) for n in range(4)]

    a(f"s_mov_b32 s{sSlotR}, 0")
    for i in set_read_bases(sSlotR):
        a(i)
    st()
    a(f"s_waitcnt vmcnt({(NSLOT-1)*8+NEXTRA})")
    st()
    a("s_barrier")
    for i in frag_reads(0):
        a(i)
    a(f"s_mov_b32 s{sIt}, 0")

    a.label("L_k1_loop")
    for s in range(2):
        a(f"s_add_u32 s{sSlotR}, s{sSlotR}, {SLOT}")
        a(f"s_cmp_eq_u32 s{sSlotR}, {SLOT*NSLOT}")
        a(f"s_cselect_b32 s{sSlotR}, 0, s{sSlotR}")
        a(f"s_cmp_lt_u32 s{sStg}, {NSTAGE}")
        a(f"s_cselect_b32 s{sCoE}, s{sCo}, s{sOOB}")
        a(f"s_cselect_b32 s{sXoE}, s{sXo}, s{sOOB}")
        for i in set_read_bases(sSlotR):
            a(i)
        a(f"s_waitcnt vmcnt({(NSLOT-2)*8}) lgkmcnt(0)")
        a("s_barrier")
        if OPT("TRACE"):
            a("s_memtime s[96:97]")
            a("s_waitcnt lgkmcnt(0)")
            a(f"s_mov_b32 s99, m0")
            a(f"s_mov_b32 m0, s{sStg}")
            a("s_nop 0")
            a(f"v_writelane_b32 v{vDo}, s96, m0")
            a(f"s_mov_b32 m0, s99")
        fill = frag_reads(1 - s) + dma_stage(sSlotW, sCoE, sXoE)
        if OPT("NODMA"):
            fill = frag_reads(1 - s)
        if OPT("NOREAD"):
            fill = dma_stage(sSlotW, sCoE, sXoE)
        fill += advance()
        fill += [f"s_add_u32 s{sStg}, s{sStg}, 1",
                 [f"s_add_u32 s{sSlotW}, s{sSlotW}, {SLOT}",
                  f"s_cmp_eq_u32 s{sSlotW}, {SLOT*NSLOT}",
                  f"s_cselect_b32 s{sSlotW}, 0, s{sSlotW}"]]
        for i in interleave(mfmas(s) if not OPT("NOMFMA") else [], fill, per=2):
            a(i)
    a(f"s_add_u32 s{sIt}, s{sIt}, 1")
    a(f"s_cmp_lt_u32 s{sIt}, {NSTAGE//2}")
    a("s_cbranch_scc1 L_k1_loop")

    st()
    a("s_waitcnt vmcnt(0) lgkmcnt(0)")
    a("s_barrier")
    a(f"s_mul_i32 s{sT0}, s{sW}, 14336")
    a(f"s_xor_b32 s{sT1}, s{sW}, 1")
    a(f"s_mul_i32 s{sT1}, s{sT1}, 14336")
    a(f"v_lshlrev_b32 v{vT}, 4, v{vLane}")
    a(f"v_add_u32 v{vT+1}, s{sT1}, v{vT}")
    a(f"v_add_u32 v{vT}, s{sT0}, v{vT}")
    a(f"s_cmp_eq_u32 s{sWk}, 0")
    a("s_cbranch_scc0 L_k1_epi1")
    for wk in range(2):
        if wk == 1:
            a.label("L_k1_epi1")
        give = 1 - wk
        keep = wk
        idx = 0
        for m in range(7):
            for pq in range(2):
                r = acc(m, pq * 2 + give)
                a(f"ds_write_b128 v{vT}, v[{r}:{r+3}] offset:{idx*1024}")
                idx += 1
        a("s_waitcnt lgkmcnt(0)")
        a("s_barrier")
        idx = 0
        for m in range(7):
            for pq in range(2):
                r = FR + idx * 4
                a(f"ds_read_b128 v[{r}:{r+3}], v{vT+1} offset:{idx*1024}")
                idx += 1
        a(f"s_lshl_b32 s{sT0}, s{sH}, 7")
        a(f"s_lshl_b32 s{sT1}, s{sRB}, 2")
        a(f"s_add_u32 s{sT0}, s{sT0}, s{sT1}")
        a(f"s_lshl_b32 s{sT1}, s{sWm}, 1")
        a(f"s_add_u32 s{sT0}, s{sT0}, s{sT1}")
        a(f"s_add_u32 s{sT0}, s{sT0}, {keep}")
        a(f"s_mul_i32 s{sT0}, s{sT0}, 28")
        a(f"s_mul_i32 s{sT1}, s{sJ}, 7")
        a(f"s_add_u32 s{sT0}, s{sT0}, s{sT1}")
        a(f"s_lshl_b32 s{sT0}, s{sT0}, 10")
        a(f"v_lshlrev_b32 v{vT+2}, 4, v{vLane}")
        a(f"v_add_u32 v{vT+3}, 4096, v{vT+2}")
        idx = 0
        for m in range(7):
            a(f"s_waitcnt lgkmcnt({12-2*m})")
            for pq in range(2):
                r = FR + idx * 4
                ac = acc(m, pq * 2 + keep)
                for k in range(4):
                    a(f"v_add_f32 v{ac+k}, v{ac+k}, v{r+k}")
                idx += 1
            p = acc(m, keep)
            q = acc(m, 2 + keep)
            o = FR + 56 + m * 4
            a(f"v_cvt_pk_bf16_f32 v{o}, v{p}, v{p+1}")
            a(f"v_cvt_pk_bf16_f32 v{o+1}, v{p+2}, v{p+3}")
            a(f"v_cvt_pk_bf16_f32 v{o+2}, v{q}, v{q+1}")
            a(f"v_cvt_pk_bf16_f32 v{o+3}, v{q+2}, v{q+3}")
            vo = vT + 2 if m < 4 else vT + 3
            a(f"buffer_store_dwordx4 v[{o}:{o+3}], v{vo}, s[{sWS}:{sWS+3}], s{sT0} offen offset:{(m%4)*1024} {NTS}")
        if wk == 0:
            a("s_branch L_k1_epi2")
    a.label("L_k1_epi2")
    st()
    if OPT("STAMP"):
        a("s_waitcnt vmcnt(0)")
    st.dump(sWS, sT0, vT, sW)
    if OPT("TRACE"):
        a(f"v_writelane_b32 v{vDo}, s64, 0")
        a(f"s_lshl_b32 s{sT0}, s2, 2")
        a(f"s_add_u32 s{sT0}, s{sT0}, s{sW}")
        a(f"s_lshl_b32 s{sT0}, s{sT0}, 8")
        a(f"s_add_u32 s{sT0}, s{sT0}, {STAMP_OFF + 3 * (1 << 20)}")
        a(f"v_lshlrev_b32 v{vT}, 2, v{vLane}")
        a(f"buffer_store_dword v{vDo}, v{vT}, s[{sWS}:{sWS+3}], s{sT0} offen")
    a("s_endpgm")
    a.label("L_k1_helper")
    sCi = 64 if not OPT("STAMP") else 92
    srd(a, sCi, 6, C_BYTES)
    sCrp, sCip = sCi, sC
    ST = OPT("PF_ST", 128)
    CH = OPT("PF_CH", 512)
    LPR = CH // ST
    RPI = 64 // LPR
    NCH = 2048 // CH
    if OPT("PF", 1):
        import math
        a(f"v_lshrrev_b32 v{vT}, {int(math.log2(LPR))}, v{vLane}")
        a(f"v_lshlrev_b32 v{vT}, 12, v{vT}")
        a(f"v_and_b32 v{vT+1}, {LPR-1}, v{vLane}")
        a(f"v_lshlrev_b32 v{vT+1}, {int(math.log2(ST))}, v{vT+1}")
        a(f"v_add_u32 v{vT}, v{vT}, v{vT+1}")
        a(f"v_lshlrev_b32 v{vT+1}, {int(math.log2(ST))}, v{vLane}")
        a(f"s_lshl_b32 s{sT0}, s{sRB}, 18")
        a(f"s_lshl_b32 s{sT1}, s{sJ}, 16")
        a(f"s_add_u32 s{sT0}, s{sT0}, s{sT1}")
        a(f"s_lshl_b32 s{sT1}, s{sH}, 11")
        a(f"s_add_u32 s{sT0}, s{sT0}, s{sT1}")
        xch = (CH // 2) * 896
        if OPT("MAPB"):
            xpart = xch // 16
            a(f"s_lshr_b32 s{sT1}, s2, 6")
            a(f"s_lshl_b32 s{sT1}, s{sT1}, 2")
            a(f"s_add_u32 s{sT1}, s{sT1}, s{sJ}")
        else:
            xpart = xch // 32
            a(f"s_lshr_b32 s{sT1}, s2, 3")
        a(f"s_mul_i32 s{sT1}, s{sT1}, {xpart}")
        a(f"s_mul_i32 s{sT2}, s{sH}, {1024*896}")
        a(f"s_add_u32 s{sT1}, s{sT1}, s{sT2}")
        for c in range(OPT("PF_SKIP", 0), NCH):
            for rg in range(16 // RPI):
                a(f"s_add_u32 s{sT2}, s{sT0}, {c*CH + rg*RPI*4096}")
                a(f"buffer_load_dword v{vT+2}, v{vT}, s[{sCrp}:{sCrp+3}], s{sT2} offen nt")
                a(f"buffer_load_dword v{vT+2}, v{vT}, s[{sCip}:{sCip+3}], s{sT2} offen nt")
            for p in range((xpart + 64*ST - 1) // (64*ST)):
                a(f"s_add_u32 s{sT2}, s{sT1}, {c*xch + p*64*ST}")
                if not OPT("PF_NOX"):
                    a(f"buffer_load_dword v{vT+2}, v{vT+1}, s[{sX}:{sX+3}], s{sT2} offen {NTX}")
    if OPT("STAMP"):
        sth = Stamps(a, 64, 2)
        sth.n = 1
        sth()
        a("s_waitcnt vmcnt(0)")
        if OPT("PFBAR"):
            a("s_barrier")
        a(f"s_mov_b32 s{sW}, 0")
        sth.dump(sWS, sT0, vT, sW)
        a(f"s_mov_b32 s{sWS+2}, {WS_BYTES}")
    a(f"v_and_b32 v{vT}, 15, v{vLane}")
    a(f"v_mul_u32_u24 v{vT}, 896, v{vT}")
    a(f"v_lshrrev_b32 v{vT+1}, 4, v{vLane}")
    a(f"v_lshl_add_u32 v{vT}, v{vT+1}, 3, v{vT}")
    a(f"v_lshlrev_b32 v{vT+1}, 4, v{vLane}")
    if NCOPY == 8:
        a(f"s_lshr_b32 s{sF}, s2, 3")
        a(f"s_mul_i32 s{sF}, s{sF}, 25")
    else:
        a(f"s_lshl_b32 s{sF}, s2, 2")
    for i in range(NFR):
        a(f"s_add_u32 s{sT2}, s{sF}, {i}")
        a(f"s_mul_i32 s{sT0}, s{sT2}, 2341")
        a(f"s_lshr_b32 s{sT0}, s{sT0}, 16")
        a(f"s_mul_i32 s{sT1}, s{sT0}, 28")
        a(f"s_sub_u32 s{sT1}, s{sT2}, s{sT1}")
        a(f"s_mul_i32 s{sT0}, s{sT0}, {16*896}")
        a(f"s_lshl_b32 s{sT1}, s{sT1}, 5")
        a(f"s_add_u32 s{sT0}, s{sT0}, s{sT1}")
        r = FR + i * 4
        a(f"buffer_load_dwordx2 v[{r}:{r+1}], v{vT}, s[{sDr}:{sDr+3}], s{sT0} offen {NTD}")
        a(f"buffer_load_dwordx2 v[{r+2}:{r+3}], v{vT}, s[{sDi}:{sDi+3}], s{sT0} offen {NTD}")
    for f in range(1024):
        assert (f * 2341) >> 16 == f // 28
    a(f"s_and_b32 s{sT0}, s2, {NCOPY-1}")
    a(f"s_mul_i32 s{sT0}, s{sT0}, {DF_BYTES}")
    a(f"s_lshl_b32 s{sT1}, s{sF}, 10")
    a(f"s_add_u32 s{sT0}, s{sT0}, s{sT1}")
    a(f"s_add_u32 s{sT0}, s{sT0}, {DOFF}")
    for i in range(NFR):
        r = FR + i * 4
        a(f"s_add_u32 s{sT2}, s{sF}, {i}")
        a(f"s_cmp_ge_u32 s{sT2}, 784")
        a("s_cbranch_scc1 L_k1_done")
        a(f"s_waitcnt vmcnt({min(63, 2*(NFR-1-i) + i)})")
        a(f"v_xor_b32 v{r+2}, 0x80008000, v{r+2}")
        a(f"v_xor_b32 v{r+3}, 0x80008000, v{r+3}")
        a(f"buffer_store_dwordx4 v[{r}:{r+3}], v{vT+1}, s[{sWS}:{sWS+3}], s{sT0} offen {NTS}")
        a(f"s_add_u32 s{sT0}, s{sT0}, 1024")
    a.label("L_k1_done")
    a("s_endpgm")
    return name, 228, 0, NSLOT * SLOT, 320


def gen_k2(a):
    name = "fnet_k2_kernel"
    a.raw(f".globl {name}")
    a.raw(".p2align 8")
    a.raw(f".type {name},@function")
    a.label(name)
    sWS, sOut = 8, 12
    sW = 16
    sT0, sT1 = 17, 18
    sTB, sJ = 19, 20
    sPQ = 24
    sD = 28
    vLane = 1
    vO = 2
    vT = 4
    PQR = 8
    ACC = 120

    def pq(ml, h, tl):
        return PQR + ((ml * 2 + h) * 2 + tl) * 4

    def df(ml, et):
        return (ml * 7 + et) * 4

    def acc(et, tl):
        return ACC + (et * 2 + tl) * 4

    st = Stamps(a, 64, 1) if OPT("STAMP") else (lambda: None)
    a("s_cmp_ge_u32 s2, 256")
    a("s_cbranch_scc1 L_k2_done")
    st()
    a("s_load_dwordx2 s[4:5], s[0:1], 56")
    a("s_load_dwordx2 s[6:7], s[0:1], 40")
    a(f"v_lshrrev_b32 v{vT}, 6, v0")
    a(f"v_and_b32 v{vLane}, 63, v0")
    a(f"v_readfirstlane_b32 s{sW}, v{vT}")
    a(f"s_and_b32 s{sT0}, s2, 7")
    a(f"s_lshr_b32 s{sT1}, s2, 3")
    a(f"s_lshr_b32 s{sTB}, s{sT1}, 2")
    a(f"s_lshl_b32 s{sTB}, s{sTB}, 3")
    a(f"s_add_u32 s{sTB}, s{sTB}, s{sT0}")
    a(f"s_and_b32 s{sJ}, s{sT1}, 3")
    a(f"v_lshlrev_b32 v{vO}, 4, v{vLane}")
    a(f"v_add_u32 v{vO+1}, 4096, v{vO}")
    a(f"s_mul_i32 s{sT0}, s{sW}, 7")
    a(f"s_mul_i32 s{sT1}, s{sTB}, 56")
    a(f"s_add_u32 s{sT1}, s{sT1}, s{sT0}")
    a(f"s_lshl_b32 s{sT1}, s{sT1}, 10")
    for h in range(2):
        for tl in range(2):
            a(f"s_add_u32 s{sPQ+h*2+tl}, s{sT1}, {(h*128+tl)*28*1024}")
    a(f"s_mul_i32 s{sT1}, s{sJ}, 196")
    a(f"s_add_u32 s{sT1}, s{sT1}, s{sT0}")
    a(f"s_lshl_b32 s{sT1}, s{sT1}, 10")
    a(f"s_and_b32 s{sT0}, s2, {NCOPY-1}")
    a(f"s_mul_i32 s{sT0}, s{sT0}, {DF_BYTES}")
    a(f"s_add_u32 s{sT1}, s{sT1}, s{sT0}")
    for et in range(7):
        a(f"s_add_u32 s{sD+et}, s{sT1}, {DOFF + et*28*1024}")
    a("s_waitcnt lgkmcnt(0)")
    srd(a, sWS, 4, WS_BYTES)
    srd(a, sOut, 6, X_BYTES)

    def loads(ml):
        ins = []
        vo = vO if ml < 4 else vO + 1
        off = (ml % 4) * 1024
        for h in range(2):
            for tl in range(2):
                r = pq(ml, h, tl)
                ins.append(f"buffer_load_dwordx4 v[{r}:{r+3}], v{vo}, s[{sWS}:{sWS+3}], s{sPQ+h*2+tl} offen offset:{off} {NT2}")
        for et in range(7):
            r = df(ml, et)
            ins.append(f"buffer_load_dwordx4 a[{r}:{r+3}], v{vo}, s[{sWS}:{sWS+3}], s{sD+et} offen offset:{off} {NT2}")
        return ins

    def mfmas(ml):
        return [f"v_mfma_f32_16x16x32_bf16 v[{acc(et,tl)}:{acc(et,tl)+3}], a[{df(ml,et)}:{df(ml,et)+3}], "
                f"v[{pq(ml,h,tl)}:{pq(ml,h,tl)+3}], v[{acc(et,tl)}:{acc(et,tl)+3}]"
                for h in range(2) for et in range(7) for tl in range(2)]

    st()
    for ml in range(5):
        for i in loads(ml):
            a(i)
    for r in range(56):
        a(f"v_mov_b32 v{ACC+r}, 0")
    st()
    a("s_waitcnt vmcnt(44)")
    st()
    for i in interleave(mfmas(0), loads(5), per=1):
        a(i)
    a("s_waitcnt vmcnt(44)")
    for i in interleave(mfmas(1), loads(6), per=1):
        a(i)
    for ml in range(2, 7):
        a(f"s_waitcnt vmcnt({(6-ml)*11})")
        for i in mfmas(ml):
            a(i)
    st()
    if OPT("STAMP"):
        a("s_waitcnt lgkmcnt(0)")
    a(f"s_mul_i32 s{sT0}, s{sW}, 14336")
    a(f"v_add_u32 v{vT}, s{sT0}, v{vO}")
    a("s_nop 7")
    for t in range(14):
        a(f"ds_write_b128 v{vT}, v[{ACC+t*4}:{ACC+t*4+3}] offset:{t*1024}")
    a("s_waitcnt lgkmcnt(0)")
    a("s_barrier")
    a(f"s_lshl_b32 s{sT0}, s{sW}, 10")
    a(f"v_add_u32 v{vT}, s{sT0}, v{vO}")
    R = PQR
    for q in range(4):
        for p in range(4):
            r = R + (q * 4 + p) * 4
            a(f"ds_read_b128 v[{r}:{r+3}], v{vT} offset:{p*14336+q*4096}")
    a(f"v_and_b32 v{vT+1}, 15, v{vLane}")
    a(f"v_mul_u32_u24 v{vT+1}, 896, v{vT+1}")
    a(f"v_lshrrev_b32 v{vT+2}, 4, v{vLane}")
    a(f"v_lshl_add_u32 v{vT+1}, v{vT+2}, 3, v{vT+1}")
    a(f"s_and_b32 s{sT0}, s{sW}, 1")
    a(f"s_lshl_b32 s{sT0}, s{sT0}, 4")
    a(f"s_lshl_b32 s{sT1}, s{sTB}, 5")
    a(f"s_add_u32 s{sT0}, s{sT0}, s{sT1}")
    a(f"s_mul_i32 s{sT0}, s{sT0}, 896")
    a(f"s_mul_i32 s{sT1}, s{sJ}, 224")
    a(f"s_add_u32 s{sT0}, s{sT0}, s{sT1}")
    a(f"s_lshr_b32 s{sT1}, s{sW}, 1")
    a(f"s_lshl_b32 s{sT1}, s{sT1}, 5")
    a(f"s_add_u32 s{sT0}, s{sT0}, s{sT1}")
    for q in range(4):
        if q == 3:
            if OPT("STAMP"):
                a("s_waitcnt vmcnt(0)")
                st.dump(sWS, sT1, vT + 2, sW)
            a(f"s_cmp_ge_u32 s{sW}, 2")
            a("s_cbranch_scc1 L_k2_done")
        a(f"s_waitcnt lgkmcnt({12-4*q})")
        r = R + q * 16
        for k in range(4):
            a(f"v_add_f32 v{r+k}, v{r+k}, v{r+4+k}")
            a(f"v_add_f32 v{r+8+k}, v{r+8+k}, v{r+12+k}")
        for k in range(4):
            a(f"v_add_f32 v{r+k}, v{r+k}, v{r+8+k}")
        a(f"v_cvt_pk_bf16_f32 v{r+4}, v{r}, v{r+1}")
        a(f"v_cvt_pk_bf16_f32 v{r+5}, v{r+2}, v{r+3}")
        a(f"buffer_store_dwordx2 v[{r+4}:{r+5}], v{vT+1}, s[{sOut}:{sOut+3}], s{sT0} offen offset:{q*64}")
    a.label("L_k2_done")
    a("s_endpgm")
    return name, 176, 196, 65536, 256


def descriptor(name, nv, na, sgpr=100):
    accum = (nv + 3) // 4 * 4
    nfv = accum + na if na else nv
    return f""".p2align 6
.amdhsa_kernel {name}
  .amdhsa_next_free_vgpr {nfv}
  .amdhsa_next_free_sgpr {sgpr}
  .amdhsa_accum_offset {accum}
  .amdhsa_group_segment_fixed_size 0
  .amdhsa_kernarg_size 64
  .amdhsa_user_sgpr_count 2
  .amdhsa_user_sgpr_kernarg_segment_ptr 1
  .amdhsa_system_sgpr_workgroup_id_x 1
.end_amdhsa_kernel
"""


def main():
    a = Asm()
    a.raw('.amdgcn_target "amdgcn-amd-amdhsa--gfx950"')
    a.raw(".text")
    ks = [gen_k1(a), gen_k2(a)]
    out = HEADER
    if OPT("K1TWICE"):
        name, nv, na, lds, blk = ks[0]
        out += f"; @launch kernel={name} grid=(256,1,1) block=({blk},1,1) lds={lds}\n"
    for name, nv, na, lds, blk in ks:
        out += f"; @launch kernel={name} grid=(256,1,1) block=({blk},1,1) lds={lds}\n"
    if OPT("K2TWICE"):
        name, nv, na, lds, blk = ks[1]
        out += f"; @launch kernel={name} grid=(256,1,1) block=({blk},1,1) lds={lds}\n"
    out += a.text()
    out += '.section .rodata,"a"\n'
    for name, nv, na, lds, blk in ks:
        out += descriptor(name, nv, na)
    path = sys.argv[1] if len(sys.argv) > 1 else "standalone__spectral_fnet__prompt.s"
    open(path, "w").write(out)


if __name__ == "__main__":
    main()
```

```python
import sys, os, math
import gen as G
from gen import OPT, Asm, Stamps, srd, interleave, flat, X_BYTES, C_BYTES, D_BYTES, DOFF, WS_BYTES, STAMP_OFF, HEADER

NSLOT, SLOT, XOFF, NSTAGE = 5, 30720, 16384, 16
NTC = 'nt ' if OPT('NTC', 0) else ''
NTX = 'nt ' if OPT('NTX', 0) else ''
NTD = 'nt' if OPT('NTD', 0) else ''
MAPB = OPT("MAPB", 1)
PDEPTH = 4


def gen_k1(a):
    name = "fnet_k1_kernel"
    a.raw(f".globl {name}")
    a.raw(".p2align 8")
    a.raw(f".type {name},@function")
    a.label(name)
    sA, sB, sWS, sE = 16, 20, 24, 28
    sW = 36
    sT0, sT1, sT2, sT3 = 37, 38, 39, 40
    sH, sRB, sJ = 41, 42, 43
    sWk, sWm = 44, 45
    sRot = 46
    sBase = 47
    sOff = 48
    sOff2 = 49
    sSlot = 50
    sIt = 51
    sF = 52

    vLane = 1
    vT = 2
    vCb0 = 6
    vXb0 = 7
    vCb = 9
    vXb = 10
    vTr = 12
    vO = 12
    FR = 28
    ACC = 116

    def cfrag(s, n):
        return FR + s * 44 + n * 4

    def xfrag(s, m):
        return FR + s * 44 + 16 + m * 4

    def acc(m, n):
        return ACC + (m * 4 + n) * 4

    st = Stamps(a, 64, 0)
    a("s_cmp_ge_u32 s2, 256")
    a("s_cbranch_scc1 L_k1_done")
    st()
    a("s_load_dwordx8 s[4:11], s[0:1], 0")
    a("s_load_dwordx2 s[12:13], s[0:1], 32")
    a("s_load_dwordx2 s[14:15], s[0:1], 56")
    a(f"v_lshrrev_b32 v{vT}, 6, v0")
    a(f"v_and_b32 v{vLane}, 63, v0")
    a(f"v_readfirstlane_b32 s{sW}, v{vT}")
    a(f"s_and_b32 s{sT0}, s2, 7")
    a(f"s_lshr_b32 s{sT1}, s2, 3")
    a(f"s_and_b32 s{sJ}, s{sT1}, 3")
    if MAPB:
        a(f"s_lshr_b32 s{sH}, s{sT1}, 2")
        a(f"s_and_b32 s{sH}, s{sH}, 1")
        a(f"s_lshr_b32 s{sRot}, s{sT1}, 3")
        a(f"s_lshl_b32 s{sRB}, s{sRot}, 3")
        a(f"s_add_u32 s{sRB}, s{sRB}, s{sT0}")
        if OPT("ROT", 2) == 2:
            a(f"s_add_u32 s{sRot}, s{sRot}, s{sJ}")
            a(f"s_lshl_b32 s{sRot}, s{sRot}, 2")
        elif OPT("ROT", 2) == 5:
            a(f"s_lshl_b32 s{sRot}, s{sRot}, 2")
            a(f"s_lshr_b32 s{sT2}, s{sJ}, 1")
            a(f"s_lshl_b32 s{sT2}, s{sT2}, 3")
            a(f"s_add_u32 s{sRot}, s{sRot}, s{sT2}")
        elif OPT("ROT", 2) == 1:
            a(f"s_lshl_b32 s{sRot}, s{sRot}, 2")
        else:
            a(f"s_mov_b32 s{sRot}, 0")
    else:
        a(f"s_and_b32 s{sH}, s{sT0}, 1")
        a(f"s_lshr_b32 s{sRB}, s{sT0}, 1")
        a(f"s_lshr_b32 s{sRot}, s{sT1}, 2")
        a(f"s_lshl_b32 s{sT2}, s{sRot}, 2")
        a(f"s_add_u32 s{sRB}, s{sRB}, s{sT2}")
        a(f"s_lshl_b32 s{sRot}, s{sRot}, 1")
        if OPT("ROT", 2) == 2:
            a(f"s_lshl_b32 s{sT2}, s{sJ}, 2")
            a(f"s_add_u32 s{sRot}, s{sRot}, s{sT2}")
        if OPT("ROT", 2) == 5:
            a(f"s_lshr_b32 s{sT2}, s{sJ}, 1")
            a(f"s_lshl_b32 s{sT2}, s{sT2}, 3")
            a(f"s_add_u32 s{sRot}, s{sRot}, s{sT2}")
        if OPT("ROT", 2) == 0:
            a(f"s_mov_b32 s{sRot}, 0")
    a(f"s_and_b32 s{sRot}, s{sRot}, 15")
    a(f"s_cmp_eq_u32 s{sW}, 4")
    a("s_cbranch_scc1 L_k1_ldc")
    a(f"s_cmp_eq_u32 s{sW}, 5")
    a("s_cbranch_scc1 L_k1_ldx")

    a(f"s_and_b32 s{sWk}, s{sW}, 1")
    a(f"s_lshr_b32 s{sWm}, s{sW}, 1")
    a(f"v_and_b32 v{vT}, 15, v{vLane}")
    a(f"v_lshrrev_b32 v{vT+1}, 4, v{vLane}")
    a(f"s_lshl_b32 s{sT0}, s{sWk}, 2")
    a(f"v_add_u32 v{vT+2}, s{sT0}, v{vT+1}")
    a(f"v_lshrrev_b32 v{vT+3}, 1, v{vT}")
    a(f"v_xor_b32 v{vT+2}, v{vT+2}, v{vT+3}")
    a(f"v_lshlrev_b32 v{vT+2}, 4, v{vT+2}")
    a(f"v_lshl_add_u32 v{vCb0}, v{vT}, 7, v{vT+2}")
    a(f"s_lshl_b32 s{sT0}, s{sWm}, 12")
    a(f"v_add_u32 v{vCb0}, s{sT0}, v{vCb0}")
    a(f"v_lshlrev_b32 v{vT+2}, 3, v{vT+1}")
    a(f"v_lshrrev_b32 v{vT+3}, 2, v{vT}")
    a(f"v_add_u32 v{vT+2}, v{vT+2}, v{vT+3}")
    a(f"s_lshl_b32 s{sT0}, s{sWk}, 5")
    a(f"v_add_u32 v{vT+2}, s{sT0}, v{vT+2}")
    a(f"v_and_b32 v{vT+3}, 1, v{vT+1}")
    a(f"v_lshlrev_b32 v{vT+3}, 2, v{vT+3}")
    a(f"v_add_u32 v{vXb0}, v{vT+2}, v{vT+3}")
    a(f"v_xor_b32 v{vT+3}, 4, v{vT+3}")
    a(f"v_add_u32 v{vXb0+1}, v{vT+2}, v{vT+3}")
    a(f"v_and_b32 v{vT}, 3, v{vT}")
    a(f"v_lshlrev_b32 v{vT}, 3, v{vT}")
    a(f"v_add_u32 v{vT}, {XOFF}, v{vT}")
    a(f"v_mov_b32 v{vT+1}, 224")
    a(f"v_mad_u32_u24 v{vXb0}, v{vXb0}, v{vT+1}, v{vT}")
    a(f"v_mad_u32_u24 v{vXb0+1}, v{vXb0+1}, v{vT+1}, v{vT}")
    for r in range(112):
        a(f"v_mov_b32 v{ACC+r}, 0")
    a("s_waitcnt lgkmcnt(0)")
    srd(a, sWS, 14, WS_BYTES)

    def frag_reads(s, vc, vx):
        ins = []

        def xr(m):
            return [f"ds_read_b64_tr_b16 v[{xfrag(s,m)}:{xfrag(s,m)+1}], v{vx} offset:{m*32}",
                    f"ds_read_b64_tr_b16 v[{xfrag(s,m)+2}:{xfrag(s,m)+3}], v{vx+1} offset:{m*32}"]
        ins += xr(0)
        for n in range(4):
            pq, tl = n >> 1, n & 1
            ins.append(f"ds_read_b128 v[{cfrag(s,n)}:{cfrag(s,n)+3}], v{vc} offset:{pq*8192+tl*2048}")
        for m in range(1, 7):
            ins += xr(m)
        return ins

    def mfmas(s):
        return [f"v_mfma_f32_16x16x32_bf16 v[{acc(m,n)}:{acc(m,n)+3}], v[{xfrag(s,m)}:{xfrag(s,m)+3}], "
                f"v[{cfrag(s,n)}:{cfrag(s,n)+3}], v[{acc(m,n)}:{acc(m,n)+3}]"
                for m in range(7) for n in range(4)]

    def trace():
        if OPT("TRACE"):
            a("s_memtime s[96:97]")
            a("s_waitcnt lgkmcnt(0)")
            a(f"s_mov_b32 m0, s98")
            a("s_add_u32 s98, s98, 1")
            a(f"v_writelane_b32 v{vTr}, s96, m0")

    a(f"s_mov_b32 s{sSlot}, 0")
    a(f"s_mov_b32 s{sIt}, 0")
    if OPT("TRACE"):
        a("s_mov_b32 s98, 5")
    st()
    a("s_barrier")
    st()
    for i in frag_reads(0, vCb0, vXb0):
        a(i)
    nxt = [[f"s_add_u32 s{sSlot}, s{sSlot}, {SLOT}",
            f"s_cmp_eq_u32 s{sSlot}, {SLOT*NSLOT}",
            f"s_cselect_b32 s{sSlot}, 0, s{sSlot}"],
           f"v_add_u32 v{vCb}, s{sSlot}, v{vCb0}",
           f"v_add_u32 v{vXb}, s{sSlot}, v{vXb0}",
           f"v_add_u32 v{vXb+1}, s{sSlot}, v{vXb0+1}"]
    for i in flat(nxt):
        a(i)
    a.label("L_k1_loop")
    for s in range(2):
        a("s_waitcnt lgkmcnt(0)")
        a("s_barrier")
        trace()
        fill = frag_reads(1 - s, vCb, vXb) + nxt
        if s == 1:
            fill += [[f"s_add_u32 s{sIt}, s{sIt}, 1", f"s_cmp_lt_u32 s{sIt}, {NSTAGE//2}"]]
        for i in interleave(mfmas(s), fill, per=OPT("PER", 1)):
            a(i)
    a("s_cbranch_scc1 L_k1_loop")
    st()
    a("s_waitcnt lgkmcnt(0)")
    a("s_barrier")
    a(f"s_mul_i32 s{sT0}, s{sW}, 14336")
    a(f"s_xor_b32 s{sT1}, s{sW}, 1")
    a(f"s_mul_i32 s{sT1}, s{sT1}, 14336")
    a(f"v_lshlrev_b32 v{vT}, 4, v{vLane}")
    a(f"v_add_u32 v{vT+1}, s{sT1}, v{vT}")
    a(f"v_add_u32 v{vT}, s{sT0}, v{vT}")
    a(f"s_cmp_eq_u32 s{sWk}, 0")
    a("s_cbranch_scc0 L_k1_epi1")
    for wk in range(2):
        if wk == 1:
            a.label("L_k1_epi1")
        give, keep = 1 - wk, wk
        idx = 0
        for m in range(7):
            for pq in range(2):
                r = acc(m, pq * 2 + give)
                a(f"ds_write_b128 v{vT}, v[{r}:{r+3}] offset:{idx*1024}")
                idx += 1
        a("s_waitcnt lgkmcnt(0)")
        a("s_barrier")
        idx = 0
        for m in range(7):
            for pq in range(2):
                r = FR + idx * 4
                a(f"ds_read_b128 v[{r}:{r+3}], v{vT+1} offset:{idx*1024}")
                idx += 1
        a(f"s_lshl_b32 s{sT0}, s{sH}, 7")
        a(f"s_lshl_b32 s{sT1}, s{sRB}, 2")
        a(f"s_add_u32 s{sT0}, s{sT0}, s{sT1}")
        a(f"s_lshl_b32 s{sT1}, s{sWm}, 1")
        a(f"s_add_u32 s{sT0}, s{sT0}, s{sT1}")
        a(f"s_add_u32 s{sT0}, s{sT0}, {keep}")
        a(f"s_mul_i32 s{sT0}, s{sT0}, 28")
        a(f"s_mul_i32 s{sT1}, s{sJ}, 7")
        a(f"s_add_u32 s{sT0}, s{sT0}, s{sT1}")
        a(f"s_lshl_b32 s{sT0}, s{sT0}, 10")
        a(f"v_lshlrev_b32 v{vT+2}, 4, v{vLane}")
        a(f"v_add_u32 v{vT+3}, 4096, v{vT+2}")
        idx = 0
        for m in range(7):
            a(f"s_waitcnt lgkmcnt({12-2*m})")
            for pq in range(2):
                r = FR + idx * 4
                ac = acc(m, pq * 2 + keep)
                for k in range(4):
                    a(f"v_add_f32 v{ac+k}, v{ac+k}, v{r+k}")
                idx += 1
            p = acc(m, keep)
            q = acc(m, 2 + keep)
            o = FR + 56 + m * 4
            a(f"v_cvt_pk_bf16_f32 v{o}, v{p}, v{p+1}")
            a(f"v_cvt_pk_bf16_f32 v{o+1}, v{p+2}, v{p+3}")
            a(f"v_cvt_pk_bf16_f32 v{o+2}, v{q}, v{q+1}")
            a(f"v_cvt_pk_bf16_f32 v{o+3}, v{q+2}, v{q+3}")
            vo = vT + 2 if m < 4 else vT + 3
            a(f"buffer_store_dwordx4 v[{o}:{o+3}], v{vo}, s[{sWS}:{sWS+3}], s{sT0} offen offset:{(m%4)*1024}")
        if wk == 0:
            a("s_branch L_k1_epi2")
    a.label("L_k1_epi2")
    st()
    if OPT("STAMP"):
        a("s_waitcnt vmcnt(0)")
    st.dump(sWS, sT0, vT, sW)
    if OPT("TRACE"):
        a(f"v_writelane_b32 v{vTr}, s64, 0")
        a(f"s_lshl_b32 s{sT0}, s2, 2")
        a(f"s_add_u32 s{sT0}, s{sT0}, s{sW}")
        a(f"s_lshl_b32 s{sT0}, s{sT0}, 8")
        a(f"s_add_u32 s{sT0}, s{sT0}, {STAMP_OFF + 3 * (1 << 20)}")
        a(f"v_lshlrev_b32 v{vT}, 2, v{vLane}")
        a(f"buffer_store_dword v{vTr}, v{vT}, s[{sWS}:{sWS+3}], s{sT0} offen")
    a("s_endpgm")

    def loader_loop(tag, n, issue, stepbytes, pre_tail=None, extra=0):
        adv = [f"s_add_u32 s{sRot}, s{sRot}, 1",
               f"s_and_b32 s{sRot}, s{sRot}, 15",
               f"s_mul_i32 s{sOff}, s{sRot}, {stepbytes}",
               f"s_add_u32 s{sOff}, s{sOff}, s{sBase}",
               f"s_add_u32 s{sSlot}, s{sSlot}, {SLOT}",
               f"s_cmp_eq_u32 s{sSlot}, {SLOT*NSLOT}",
               f"s_cselect_b32 s{sSlot}, 0, s{sSlot}"]
        a(f"s_mul_i32 s{sOff}, s{sRot}, {stepbytes}")
        a(f"s_add_u32 s{sOff}, s{sOff}, s{sBase}")
        a(f"s_mov_b32 s{sSlot}, 0")
        a(f"s_mov_b32 s{sIt}, 0")
        a.label(f"L_{tag}_loop")
        a(f"s_cmp_lt_u32 s{sIt}, {PDEPTH}")
        a(f"s_cbranch_scc1 L_{tag}_issue")
        a(f"s_waitcnt vmcnt({(PDEPTH-1)*n})")
        a("s_barrier")
        a.label(f"L_{tag}_issue")
        for i in issue():
            a(i)
        for i in adv:
            a(i)
        a(f"s_add_u32 s{sIt}, s{sIt}, 1")
        a(f"s_cmp_lt_u32 s{sIt}, {NSTAGE}")
        a(f"s_cbranch_scc1 L_{tag}_loop")
        if pre_tail:
            pre_tail()
        for k in range(PDEPTH):
            a(f"s_waitcnt vmcnt({(PDEPTH-1-k)*n+extra})")
            a("s_barrier")
        a("s_barrier")

    a.label("L_k1_ldc")
    a(f"v_lshrrev_b32 v{vT}, 3, v{vLane}")
    a(f"v_lshlrev_b32 v{vT}, 12, v{vT}")
    a(f"v_and_b32 v{vT+1}, 7, v{vLane}")
    a(f"v_lshrrev_b32 v{vT+2}, 4, v{vLane}")
    a(f"v_xor_b32 v{vT+1}, v{vT+1}, v{vT+2}")
    a(f"v_lshl_add_u32 v{vO}, v{vT+1}, 4, v{vT}")
    a(f"v_xor_b32 v{vT+1}, 4, v{vT+1}")
    a(f"v_lshl_add_u32 v{vO+1}, v{vT+1}, 4, v{vT}")
    a(f"v_add_u32 v{vO+1}, {8*4096-1024}, v{vO+1}")
    a(f"v_add_u32 v{vO+2}, {16*4096-2048}, v{vO}")
    a(f"v_add_u32 v{vO+3}, {16*4096-2048}, v{vO+1}")
    a(f"s_lshl_b32 s{sBase}, s{sRB}, 18")
    a(f"s_lshl_b32 s{sT0}, s{sH}, 11")
    a(f"s_add_u32 s{sBase}, s{sBase}, s{sT0}")
    a("s_waitcnt lgkmcnt(0)")
    srd(a, sA, 6, C_BYTES)
    srd(a, sB, 8, C_BYTES)

    def issue_c():
        ins = [f"s_add_u32 s{sOff2}, s{sOff}, {32*4096}"]
        for grp in range(4):
            s_ = sA if grp < 2 else sB
            o_ = sOff if grp % 2 == 0 else sOff2
            ins.append(f"s_add_u32 m0, s{sSlot}, {grp*4096}")
            ins.append("s_nop 0")
            for q in range(4):
                ins.append(f"buffer_load_dwordx4 v{vO+q}, s[{s_}:{s_+3}], s{o_} offen offset:{q*1024} {NTC}lds")
        return ins
    loader_loop("k1c", 16, issue_c, 128)
    a("s_endpgm")

    a.label("L_k1_ldx")
    a(f"s_mov_b32 s{sT1}, 4682")
    for q in range(14):
        if q:
            a(f"v_add_u32 v{vT}, {64*q}, v{vLane}")
            src = vT
        else:
            src = vLane
        a(f"v_mul_lo_u32 v{vT+1}, v{src}, s{sT1}")
        a(f"v_lshrrev_b32 v{vT+1}, 16, v{vT+1}")
        a(f"v_mul_u32_u24 v{vT+2}, 14, v{vT+1}")
        a(f"v_sub_u32 v{vT+2}, v{src}, v{vT+2}")
        a(f"v_lshrrev_b32 v{vT+3}, 1, v{vT+1}")
        a(f"v_and_b32 v{vT+3}, 4, v{vT+3}")
        a(f"v_xor_b32 v{vT+1}, v{vT+1}, v{vT+3}")
        a(f"v_mul_u32_u24 v{vT+1}, 896, v{vT+1}")
        a(f"v_lshl_add_u32 v{vO+q}, v{vT+2}, 4, v{vT+1}")
        if q % 4:
            a(f"v_subrev_u32 v{vO+q}, {1024*(q%4)}, v{vO+q}")
    a(f"s_mul_i32 s{sBase}, s{sH}, {1024*896}")
    a(f"s_mul_i32 s{sT0}, s{sJ}, 224")
    a(f"s_add_u32 s{sBase}, s{sBase}, s{sT0}")
    a("s_waitcnt lgkmcnt(0)")
    srd(a, sA, 4, X_BYTES)
    srd(a, sB, 10, D_BYTES)
    srd(a, sE, 12, D_BYTES)
    srd(a, sWS, 14, WS_BYTES)

    def issue_x():
        ins = []
        for q in range(14):
            if q % 4 == 0:
                ins.append(f"s_add_u32 m0, s{sSlot}, {XOFF + q*1024}")
                ins.append("s_nop 0")
            ins.append(f"buffer_load_dwordx4 v{vO+q}, s[{sA}:{sA+3}], s{sOff} offen offset:{(q%4)*1024} {NTX}lds")
        return ins
    a(f"v_and_b32 v{vT}, 15, v{vLane}")
    a(f"v_mul_u32_u24 v{vT}, 896, v{vT}")
    a(f"v_lshrrev_b32 v{vT+1}, 4, v{vLane}")
    a(f"v_lshl_add_u32 v{vT}, v{vT+1}, 3, v{vT}")
    a(f"v_lshlrev_b32 v{vT+1}, 4, v{vLane}")
    a(f"s_mul_i32 s{sT0}, s2, 9363")
    a(f"s_lshr_b32 s{sT0}, s{sT0}, 16")
    for w in range(256):
        assert (w * 9363) >> 16 == w // 7
    a(f"s_mul_i32 s{sT1}, s{sT0}, 7")
    a(f"s_sub_u32 s{sT1}, s2, s{sT1}")
    a(f"s_mul_i32 s{sT0}, s{sT0}, {16*896}")
    a(f"s_lshl_b32 s{sT1}, s{sT1}, 7")
    a(f"s_add_u32 s{sT0}, s{sT0}, s{sT1}")

    def dprep_loads():
        for i in range(4):
            r = FR + i * 4
            a(f"buffer_load_dwordx2 v[{r}:{r+1}], v{vT}, s[{sB}:{sB+3}], s{sT0} offen offset:{i*32} {NTD}")
            a(f"buffer_load_dwordx2 v[{r+2}:{r+3}], v{vT}, s[{sE}:{sE+3}], s{sT0} offen offset:{i*32} {NTD}")

    def dprep_stores():
        a(f"s_lshl_b32 s{sT0}, s2, 12")
        a(f"s_add_u32 s{sT0}, s{sT0}, {DOFF}")
        for i in range(4):
            r = FR + i * 4
            a(f"v_xor_b32 v{r+2}, 0x80008000, v{r+2}")
            a(f"v_xor_b32 v{r+3}, 0x80008000, v{r+3}")
            a(f"buffer_store_dwordx4 v[{r}:{r+3}], v{vT+1}, s[{sWS}:{sWS+3}], s{sT0} offen offset:{i*1024}")
    dprep_loads()
    loader_loop("k1x", 14, issue_x, 64 * 896, dprep_stores, 4)
    a.label("L_k1_done")
    a("s_endpgm")
    return name, 228, 0, NSLOT * SLOT, 384


def main():
    a = Asm()
    a.raw('.amdgcn_target "amdgcn-amd-amdhsa--gfx950"')
    a.raw(".text")
    ks = [gen_k1(a), G.gen_k2(a)]
    seq = os.environ.get("SEQ", "12")
    if "E" in seq:
        a.raw(".globl fnet_e_kernel\n.p2align 8\n.type fnet_e_kernel,@function\nfnet_e_kernel:\n    s_endpgm")
        ks.append(("fnet_e_kernel", 8, 0, 0, 64))
    out = HEADER
    for c in seq:
        name, nv, na, lds, blk = ks[{"1": 0, "2": 1, "E": 2}[c]]
        out += f"; @launch kernel={name} grid=({1 if c == 'E' else 256},1,1) block=({blk},1,1) lds={lds}\n"
    out += a.text()
    out += '.section .rodata,"a"\n'
    for name, nv, na, lds, blk in ks:
        out += G.descriptor(name, nv, na)
    path = sys.argv[1] if len(sys.argv) > 1 else "standalone__spectral_fnet__prompt.s"
    open(path, "w").write(out)


if __name__ == "__main__":
    main()
```

```python
import sys, os, math
import gen as G
from gen import OPT, Asm, Stamps, srd, interleave, flat, X_BYTES, C_BYTES, D_BYTES, DOFF, WS_BYTES, STAMP_OFF, HEADER

NSLOT, SLOT, XOFF, NSTAGE = 5, 30720, 16384, 16
NTC = 'nt ' if OPT('NTC', 0) else ''
NTX = 'nt ' if OPT('NTX', 0) else ''
NTD = 'nt' if OPT('NTD', 0) else ''
MAPB = OPT("MAPB", 1)
PDEPTH = 4


def gen_k1(a):
    name = "fnet_k1_kernel"
    a.raw(f".globl {name}")
    a.raw(".p2align 8")
    a.raw(f".type {name},@function")
    a.label(name)
    sA, sB, sWS, sE = 16, 20, 24, 28
    sW = 36
    sT0, sT1, sT2, sT3 = 37, 38, 39, 40
    sH, sRB, sJ = 41, 42, 43
    sWk, sWm = 44, 45
    sRot = 46
    sBase = 47
    sOff = 48
    sOff2 = 49
    sSlot = 50
    sIt = 51
    sF = 52

    vLane = 1
    vT = 2
    vCb0 = 6
    vXb0 = 7
    vCb = 9
    vXb = 10
    vTr = 12
    vO = 12
    FR = 28
    ACC = 116

    def cfrag(s, n):
        return FR + s * 44 + n * 4

    def xfrag(s, m):
        return FR + s * 44 + 16 + m * 4

    def acc(m, n):
        return ACC + (m * 4 + n) * 4

    st = Stamps(a, 64, 0)
    a("s_cmp_ge_u32 s2, 256")
    a("s_cbranch_scc1 L_k1_done")
    st()
    a("s_load_dwordx8 s[4:11], s[0:1], 0")
    a("s_load_dwordx2 s[12:13], s[0:1], 32")
    a("s_load_dwordx2 s[14:15], s[0:1], 56")
    a(f"v_lshrrev_b32 v{vT}, 6, v0")
    a(f"v_and_b32 v{vLane}, 63, v0")
    a(f"v_readfirstlane_b32 s{sW}, v{vT}")
    a(f"s_and_b32 s{sT0}, s2, 7")
    a(f"s_lshr_b32 s{sT1}, s2, 3")
    a(f"s_and_b32 s{sJ}, s{sT1}, 3")
    if MAPB:
        a(f"s_lshr_b32 s{sH}, s{sT1}, 2")
        a(f"s_and_b32 s{sH}, s{sH}, 1")
        a(f"s_lshr_b32 s{sRot}, s{sT1}, 3")
        a(f"s_lshl_b32 s{sRB}, s{sRot}, 3")
        a(f"s_add_u32 s{sRB}, s{sRB}, s{sT0}")
        if OPT("ROT", 2) == 2:
            a(f"s_add_u32 s{sRot}, s{sRot}, s{sJ}")
            a(f"s_lshl_b32 s{sRot}, s{sRot}, 2")
        elif OPT("ROT", 2) == 5:
            a(f"s_lshl_b32 s{sRot}, s{sRot}, 2")
            a(f"s_lshr_b32 s{sT2}, s{sJ}, 1")
            a(f"s_lshl_b32 s{sT2}, s{sT2}, 3")
            a(f"s_add_u32 s{sRot}, s{sRot}, s{sT2}")
        elif OPT("ROT", 2) == 1:
            a(f"s_lshl_b32 s{sRot}, s{sRot}, 2")
        else:
            a(f"s_mov_b32 s{sRot}, 0")
    else:
        a(f"s_and_b32 s{sH}, s{sT0}, 1")
        a(f"s_lshr_b32 s{sRB}, s{sT0}, 1")
        a(f"s_lshr_b32 s{sRot}, s{sT1}, 2")
        a(f"s_lshl_b32 s{sT2}, s{sRot}, 2")
        a(f"s_add_u32 s{sRB}, s{sRB}, s{sT2}")
        a(f"s_lshl_b32 s{sRot}, s{sRot}, 1")
        if OPT("ROT", 2) == 2:
            a(f"s_lshl_b32 s{sT2}, s{sJ}, 2")
            a(f"s_add_u32 s{sRot}, s{sRot}, s{sT2}")
        if OPT("ROT", 2) == 5:
            a(f"s_lshr_b32 s{sT2}, s{sJ}, 1")
            a(f"s_lshl_b32 s{sT2}, s{sT2}, 3")
            a(f"s_add_u32 s{sRot}, s{sRot}, s{sT2}")
        if OPT("ROT", 2) == 0:
            a(f"s_mov_b32 s{sRot}, 0")
    a(f"s_and_b32 s{sRot}, s{sRot}, 15")
    a(f"s_cmp_eq_u32 s{sW}, 4")
    a("s_cbranch_scc1 L_k1_ldc")
    a(f"s_cmp_eq_u32 s{sW}, 5")
    a("s_cbranch_scc1 L_k1_ldx")

    a(f"s_and_b32 s{sWk}, s{sW}, 1")
    a(f"s_lshr_b32 s{sWm}, s{sW}, 1")
    a(f"v_and_b32 v{vT}, 15, v{vLane}")
    a(f"v_lshrrev_b32 v{vT+1}, 4, v{vLane}")
    a(f"s_lshl_b32 s{sT0}, s{sWk}, 2")
    a(f"v_add_u32 v{vT+2}, s{sT0}, v{vT+1}")
    a(f"v_lshrrev_b32 v{vT+3}, 1, v{vT}")
    a(f"v_xor_b32 v{vT+2}, v{vT+2}, v{vT+3}")
    a(f"v_lshlrev_b32 v{vT+2}, 4, v{vT+2}")
    a(f"v_lshl_add_u32 v{vCb0}, v{vT}, 7, v{vT+2}")
    a(f"s_lshl_b32 s{sT0}, s{sWm}, 12")
    a(f"v_add_u32 v{vCb0}, s{sT0}, v{vCb0}")
    a(f"v_lshlrev_b32 v{vT+2}, 3, v{vT+1}")
    a(f"v_lshrrev_b32 v{vT+3}, 2, v{vT}")
    a(f"v_add_u32 v{vT+2}, v{vT+2}, v{vT+3}")
    a(f"s_lshl_b32 s{sT0}, s{sWk}, 5")
    a(f"v_add_u32 v{vT+2}, s{sT0}, v{vT+2}")
    a(f"v_and_b32 v{vT+3}, 1, v{vT+1}")
    a(f"v_lshlrev_b32 v{vT+3}, 2, v{vT+3}")
    a(f"v_add_u32 v{vXb0}, v{vT+2}, v{vT+3}")
    a(f"v_xor_b32 v{vT+3}, 4, v{vT+3}")
    a(f"v_add_u32 v{vXb0+1}, v{vT+2}, v{vT+3}")
    a(f"v_and_b32 v{vT}, 3, v{vT}")
    a(f"v_lshlrev_b32 v{vT}, 3, v{vT}")
    a(f"v_add_u32 v{vT}, {XOFF}, v{vT}")
    a(f"v_mov_b32 v{vT+1}, 224")
    a(f"v_mad_u32_u24 v{vXb0}, v{vXb0}, v{vT+1}, v{vT}")
    a(f"v_mad_u32_u24 v{vXb0+1}, v{vXb0+1}, v{vT+1}, v{vT}")
    for r in range(112):
        a(f"v_mov_b32 v{ACC+r}, 0")
    a("s_waitcnt lgkmcnt(0)")
    srd(a, sWS, 14, WS_BYTES)

    def frag_reads(s, vc, vx):
        ins = []

        def xr(m):
            return [f"ds_read_b64_tr_b16 v[{xfrag(s,m)}:{xfrag(s,m)+1}], v{vx} offset:{m*32}",
                    f"ds_read_b64_tr_b16 v[{xfrag(s,m)+2}:{xfrag(s,m)+3}], v{vx+1} offset:{m*32}"]
        ins += xr(0)
        for n in range(4):
            pq, tl = n >> 1, n & 1
            ins.append(f"ds_read_b128 v[{cfrag(s,n)}:{cfrag(s,n)+3}], v{vc} offset:{pq*8192+tl*2048}")
        for m in range(1, 7):
            ins += xr(m)
        return ins

    def mfmas(s):
        return [f"v_mfma_f32_16x16x32_bf16 v[{acc(m,n)}:{acc(m,n)+3}], v[{xfrag(s,m)}:{xfrag(s,m)+3}], "
                f"v[{cfrag(s,n)}:{cfrag(s,n)+3}], v[{acc(m,n)}:{acc(m,n)+3}]"
                for m in range(7) for n in range(4)]

    def trace():
        if OPT("TRACE"):
            a("s_memtime s[96:97]")
            a("s_waitcnt lgkmcnt(0)")
            a(f"s_mov_b32 m0, s98")
            a("s_add_u32 s98, s98, 1")
            a(f"v_writelane_b32 v{vTr}, s96, m0")

    a(f"s_mov_b32 s{sSlot}, 0")
    a(f"s_mov_b32 s{sIt}, 0")
    if OPT("TRACE"):
        a("s_mov_b32 s98, 5")
    st()
    a("s_barrier")
    st()
    for i in frag_reads(0, vCb0, vXb0):
        a(i)
    nxt = [[f"s_add_u32 s{sSlot}, s{sSlot}, {SLOT}",
            f"s_cmp_eq_u32 s{sSlot}, {SLOT*NSLOT}",
            f"s_cselect_b32 s{sSlot}, 0, s{sSlot}"],
           f"v_add_u32 v{vCb}, s{sSlot}, v{vCb0}",
           f"v_add_u32 v{vXb}, s{sSlot}, v{vXb0}",
           f"v_add_u32 v{vXb+1}, s{sSlot}, v{vXb0+1}"]
    for i in flat(nxt):
        a(i)
    a.label("L_k1_loop")
    for s in range(2):
        a("s_waitcnt lgkmcnt(0)")
        a("s_barrier")
        trace()
        fill = frag_reads(1 - s, vCb, vXb) + nxt
        if s == 1:
            fill += [[f"s_add_u32 s{sIt}, s{sIt}, 1", f"s_cmp_lt_u32 s{sIt}, {NSTAGE//2}"]]
        for i in interleave(mfmas(s), fill, per=OPT("PER", 1)):
            a(i)
    a("s_cbranch_scc1 L_k1_loop")
    st()
    a("s_waitcnt lgkmcnt(0)")
    a("s_barrier")
    a(f"s_mul_i32 s{sT0}, s{sW}, 14336")
    a(f"s_xor_b32 s{sT1}, s{sW}, 1")
    a(f"s_mul_i32 s{sT1}, s{sT1}, 14336")
    a(f"v_lshlrev_b32 v{vT}, 4, v{vLane}")
    a(f"v_add_u32 v{vT+1}, s{sT1}, v{vT}")
    a(f"v_add_u32 v{vT}, s{sT0}, v{vT}")
    a(f"s_cmp_eq_u32 s{sWk}, 0")
    a("s_cbranch_scc0 L_k1_epi1")
    for wk in range(2):
        if wk == 1:
            a.label("L_k1_epi1")
        give, keep = 1 - wk, wk
        idx = 0
        for m in range(7):
            for pq in range(2):
                r = acc(m, pq * 2 + give)
                a(f"ds_write_b128 v{vT}, v[{r}:{r+3}] offset:{idx*1024}")
                idx += 1
        a("s_waitcnt lgkmcnt(0)")
        a("s_barrier")
        idx = 0
        for m in range(7):
            for pq in range(2):
                r = FR + idx * 4
                a(f"ds_read_b128 v[{r}:{r+3}], v{vT+1} offset:{idx*1024}")
                idx += 1
        a(f"s_lshl_b32 s{sT0}, s{sH}, 7")
        a(f"s_lshl_b32 s{sT1}, s{sRB}, 2")
        a(f"s_add_u32 s{sT0}, s{sT0}, s{sT1}")
        a(f"s_lshl_b32 s{sT1}, s{sWm}, 1")
        a(f"s_add_u32 s{sT0}, s{sT0}, s{sT1}")
        a(f"s_add_u32 s{sT0}, s{sT0}, {keep}")
        a(f"s_mul_i32 s{sT0}, s{sT0}, 28")
        a(f"s_mul_i32 s{sT1}, s{sJ}, 7")
        a(f"s_add_u32 s{sT0}, s{sT0}, s{sT1}")
        a(f"s_lshl_b32 s{sT0}, s{sT0}, 10")
        a(f"v_lshlrev_b32 v{vT+2}, 4, v{vLane}")
        a(f"v_add_u32 v{vT+3}, 4096, v{vT+2}")
        idx = 0
        for m in range(7):
            a(f"s_waitcnt lgkmcnt({12-2*m})")
            for pq in range(2):
                r = FR + idx * 4
                ac = acc(m, pq * 2 + keep)
                for k in range(4):
                    a(f"v_add_f32 v{ac+k}, v{ac+k}, v{r+k}")
                idx += 1
            p = acc(m, keep)
            q = acc(m, 2 + keep)
            o = FR + 56 + m * 4
            a(f"v_cvt_pk_bf16_f32 v{o}, v{p}, v{p+1}")
            a(f"v_cvt_pk_bf16_f32 v{o+1}, v{p+2}, v{p+3}")
            a(f"v_cvt_pk_bf16_f32 v{o+2}, v{q}, v{q+1}")
            a(f"v_cvt_pk_bf16_f32 v{o+3}, v{q+2}, v{q+3}")
            vo = vT + 2 if m < 4 else vT + 3
            a(f"buffer_store_dwordx4 v[{o}:{o+3}], v{vo}, s[{sWS}:{sWS+3}], s{sT0} offen offset:{(m%4)*1024}")
        if wk == 0:
            a("s_branch L_k1_epi2")
    a.label("L_k1_epi2")
    st()
    if OPT("STAMP"):
        a("s_waitcnt vmcnt(0)")
    st.dump(sWS, sT0, vT, sW)
    if OPT("TRACE"):
        a(f"v_writelane_b32 v{vTr}, s64, 0")
        a(f"s_lshl_b32 s{sT0}, s2, 2")
        a(f"s_add_u32 s{sT0}, s{sT0}, s{sW}")
        a(f"s_lshl_b32 s{sT0}, s{sT0}, 8")
        a(f"s_add_u32 s{sT0}, s{sT0}, {STAMP_OFF + 3 * (1 << 20)}")
        a(f"v_lshlrev_b32 v{vT}, 2, v{vLane}")
        a(f"buffer_store_dword v{vTr}, v{vT}, s[{sWS}:{sWS+3}], s{sT0} offen")
    a("s_endpgm")

    def loader_loop(tag, n, issue, stepbytes, pre_tail=None, extra=0):
        adv = [f"s_add_u32 s{sRot}, s{sRot}, 1",
               f"s_and_b32 s{sRot}, s{sRot}, 15",
               f"s_mul_i32 s{sOff}, s{sRot}, {stepbytes}",
               f"s_add_u32 s{sOff}, s{sOff}, s{sBase}",
               f"s_add_u32 s{sSlot}, s{sSlot}, {SLOT}",
               f"s_cmp_eq_u32 s{sSlot}, {SLOT*NSLOT}",
               f"s_cselect_b32 s{sSlot}, 0, s{sSlot}"]
        a(f"s_mul_i32 s{sOff}, s{sRot}, {stepbytes}")
        a(f"s_add_u32 s{sOff}, s{sOff}, s{sBase}")
        a(f"s_mov_b32 s{sSlot}, 0")
        a(f"s_mov_b32 s{sIt}, 0")
        a.label(f"L_{tag}_loop")
        a(f"s_cmp_lt_u32 s{sIt}, {PDEPTH}")
        a(f"s_cbranch_scc1 L_{tag}_issue")
        a(f"s_waitcnt vmcnt({(PDEPTH-1)*n})")
        a("s_barrier")
        a.label(f"L_{tag}_issue")
        for i in issue():
            a(i)
        for i in adv:
            a(i)
        a(f"s_add_u32 s{sIt}, s{sIt}, 1")
        a(f"s_cmp_lt_u32 s{sIt}, {NSTAGE}")
        a(f"s_cbranch_scc1 L_{tag}_loop")
        if pre_tail:
            pre_tail()
        for k in range(PDEPTH):
            a(f"s_waitcnt vmcnt({(PDEPTH-1-k)*n+extra})")
            a("s_barrier")
        a("s_barrier")

    a.label("L_k1_ldc")
    a(f"v_lshrrev_b32 v{vT}, 3, v{vLane}")
    a(f"v_lshlrev_b32 v{vT}, 12, v{vT}")
    a(f"v_and_b32 v{vT+1}, 7, v{vLane}")
    a(f"v_lshrrev_b32 v{vT+2}, 4, v{vLane}")
    a(f"v_xor_b32 v{vT+1}, v{vT+1}, v{vT+2}")
    a(f"v_lshl_add_u32 v{vO}, v{vT+1}, 4, v{vT}")
    a(f"v_xor_b32 v{vT+1}, 4, v{vT+1}")
    a(f"v_lshl_add_u32 v{vO+1}, v{vT+1}, 4, v{vT}")
    a(f"v_add_u32 v{vO+1}, {8*4096-1024}, v{vO+1}")
    a(f"v_add_u32 v{vO+2}, {16*4096-2048}, v{vO}")
    a(f"v_add_u32 v{vO+3}, {16*4096-2048}, v{vO+1}")
    a(f"s_lshl_b32 s{sBase}, s{sRB}, 18")
    a(f"s_lshl_b32 s{sT0}, s{sH}, 11")
    a(f"s_add_u32 s{sBase}, s{sBase}, s{sT0}")
    a("s_waitcnt lgkmcnt(0)")
    srd(a, sA, 6, C_BYTES)
    srd(a, sB, 8, C_BYTES)

    def issue_c():
        ins = [f"s_add_u32 s{sOff2}, s{sOff}, {32*4096}"]
        for grp in range(4):
            s_ = sA if grp < 2 else sB
            o_ = sOff if grp % 2 == 0 else sOff2
            ins.append(f"s_add_u32 m0, s{sSlot}, {grp*4096}")
            ins.append("s_nop 0")
            for q in range(4):
                ins.append(f"buffer_load_dwordx4 v{vO+q}, s[{s_}:{s_+3}], s{o_} offen offset:{q*1024} {NTC}lds")
        return ins
    loader_loop("k1c", 16, issue_c, 128)
    a("s_endpgm")

    a.label("L_k1_ldx")
    a(f"s_mov_b32 s{sT1}, 4682")
    for q in range(14):
        if q:
            a(f"v_add_u32 v{vT}, {64*q}, v{vLane}")
            src = vT
        else:
            src = vLane
        a(f"v_mul_lo_u32 v{vT+1}, v{src}, s{sT1}")
        a(f"v_lshrrev_b32 v{vT+1}, 16, v{vT+1}")
        a(f"v_mul_u32_u24 v{vT+2}, 14, v{vT+1}")
        a(f"v_sub_u32 v{vT+2}, v{src}, v{vT+2}")
        a(f"v_lshrrev_b32 v{vT+3}, 1, v{vT+1}")
        a(f"v_and_b32 v{vT+3}, 4, v{vT+3}")
        a(f"v_xor_b32 v{vT+1}, v{vT+1}, v{vT+3}")
        a(f"v_mul_u32_u24 v{vT+1}, 896, v{vT+1}")
        a(f"v_lshl_add_u32 v{vO+q}, v{vT+2}, 4, v{vT+1}")
        if q % 4:
            a(f"v_subrev_u32 v{vO+q}, {1024*(q%4)}, v{vO+q}")
    a(f"s_mul_i32 s{sBase}, s{sH}, {1024*896}")
    a(f"s_mul_i32 s{sT0}, s{sJ}, 224")
    a(f"s_add_u32 s{sBase}, s{sBase}, s{sT0}")
    a("s_waitcnt lgkmcnt(0)")
    srd(a, sA, 4, X_BYTES)
    srd(a, sB, 10, D_BYTES)
    srd(a, sE, 12, D_BYTES)
    srd(a, sWS, 14, WS_BYTES)

    def issue_x():
        ins = []
        for q in range(14):
            if q % 4 == 0:
                ins.append(f"s_add_u32 m0, s{sSlot}, {XOFF + q*1024}")
                ins.append("s_nop 0")
            ins.append(f"buffer_load_dwordx4 v{vO+q}, s[{sA}:{sA+3}], s{sOff} offen offset:{(q%4)*1024} {NTX}lds")
        return ins
    a(f"v_and_b32 v{vT}, 15, v{vLane}")
    a(f"v_mul_u32_u24 v{vT}, 896, v{vT}")
    a(f"v_lshrrev_b32 v{vT+1}, 4, v{vLane}")
    a(f"v_lshl_add_u32 v{vT}, v{vT+1}, 3, v{vT}")
    a(f"v_lshlrev_b32 v{vT+1}, 4, v{vLane}")
    a(f"s_mul_i32 s{sT0}, s2, 9363")
    a(f"s_lshr_b32 s{sT0}, s{sT0}, 16")
    for w in range(256):
        assert (w * 9363) >> 16 == w // 7
    a(f"s_mul_i32 s{sT1}, s{sT0}, 7")
    a(f"s_sub_u32 s{sT1}, s2, s{sT1}")
    a(f"s_mul_i32 s{sT0}, s{sT0}, {16*896}")
    a(f"s_lshl_b32 s{sT1}, s{sT1}, 7")
    a(f"s_add_u32 s{sT0}, s{sT0}, s{sT1}")

    def dprep_loads():
        for i in range(4):
            r = FR + i * 4
            a(f"buffer_load_dwordx2 v[{r}:{r+1}], v{vT}, s[{sB}:{sB+3}], s{sT0} offen offset:{i*32} {NTD}")
            a(f"buffer_load_dwordx2 v[{r+2}:{r+3}], v{vT}, s[{sE}:{sE+3}], s{sT0} offen offset:{i*32} {NTD}")

    def dprep_stores():
        a(f"s_lshl_b32 s{sT0}, s2, 12")
        a(f"s_add_u32 s{sT0}, s{sT0}, {DOFF}")
        for i in range(4):
            r = FR + i * 4
            a(f"v_xor_b32 v{r+2}, 0x80008000, v{r+2}")
            a(f"v_xor_b32 v{r+3}, 0x80008000, v{r+3}")
            a(f"buffer_store_dwordx4 v[{r}:{r+3}], v{vT+1}, s[{sWS}:{sWS+3}], s{sT0} offen offset:{i*1024}")
    dprep_loads()
    loader_loop("k1x", 14, issue_x, 64 * 896, dprep_stores, 4)
    a.label("L_k1_done")
    a("s_endpgm")
    return name, 228, 0, NSLOT * SLOT, 384


def main():
    a = Asm()
    a.raw('.amdgcn_target "amdgcn-amd-amdhsa--gfx950"')
    a.raw(".text")
    ks = [gen_k1(a), G.gen_k2(a)]
    seq = os.environ.get("SEQ", "12")
    if "E" in seq:
        a.raw(".globl fnet_e_kernel\n.p2align 8\n.type fnet_e_kernel,@function\nfnet_e_kernel:\n    s_endpgm")
        ks.append(("fnet_e_kernel", 8, 0, 0, 64))
    idx = {"1": 0, "2": 1, "E": 2}
    if "S" in seq:
        a.raw(".globl fnet_s_kernel\n.p2align 8\n.type fnet_s_kernel,@function\nfnet_s_kernel:")
        a("s_mov_b32 s4, 0")
        for r in range(12):
            a(f"v_mov_b32 v{r}, 0")
        a.label("L_s_loop")
        for r in range(8):
            a("v_mfma_f32_16x16x32_bf16 v[0:3], v[4:7], v[8:11], v[0:3]")
        a("s_add_u32 s4, s4, 1")
        a(f"s_cmp_lt_u32 s4, {OPT('SITER', 200)}")
        a("s_cbranch_scc1 L_s_loop")
        a("s_endpgm")
        idx["S"] = len(ks)
        ks.append(("fnet_s_kernel", 16, 0, 0, 256))
    if "F" in seq:
        a.raw(".globl fnet_f_kernel\n.p2align 8\n.type fnet_f_kernel,@function\nfnet_f_kernel:\n    s_endpgm")
        idx["F"] = len(ks)
        ks.append(("fnet_f_kernel", 228, 0, 153600, 384))
    out = HEADER
    for c in seq:
        name, nv, na, lds, blk = ks[idx[c]]
        out += f"; @launch kernel={name} grid=({1 if c == 'E' else 256},1,1) block=({blk},1,1) lds={lds}\n"
    out += a.text()
    out += '.section .rodata,"a"\n'
    for name, nv, na, lds, blk in ks:
        out += G.descriptor(name, nv, na)
    path = sys.argv[1] if len(sys.argv) > 1 else "standalone__spectral_fnet__prompt.s"
    open(path, "w").write(out)


if __name__ == "__main__":
    main()
```

```python
import sys, os
OPT = lambda k, d=0: int(os.environ.get(k, d))

HEADER = """; Kernarg layout for this problem (64 bytes, ptrs only, base s[0:1]):
"""

X_BYTES = 2048 * 448 * 2
C_BYTES = 2048 * 2048 * 2
D_BYTES = 448 * 448 * 2
PQ_BYTES = 2 * 128 * 28 * 1024
DOFF = PQ_BYTES
DF_BYTES = 28 * 28 * 1024
NCOPY = OPT('NCOPY', 1)
NFR = 25 if NCOPY == 8 else 4
WS_BYTES = PQ_BYTES + NCOPY * DF_BYTES


class Asm:
    def __init__(self):
        self.lines = []

    def __call__(self, s):
        self.lines.append("    " + s)

    def label(self, s):
        self.lines.append(s + ":")

    def raw(self, s):
        self.lines.append(s)

    def text(self):
        return "\n".join(self.lines) + "\n"


STAMP_OFF = 64 << 20


class Stamps:
    def __init__(self, a, base, kidx):
        self.a, self.base, self.n, self.kidx = a, base, 0, kidx

    def __call__(self):
        if not (OPT("STAMP") or OPT("DBGSTAMP")):
            return
        a = self.a
        a(f"s_memtime s[{self.base+self.n*4}:{self.base+self.n*4+1}]")
        a(f"s_memrealtime s[{self.base+self.n*4+2}:{self.base+self.n*4+3}]")
        self.n += 1

    def dump(self, sws, stmp, vtmp, swave):
        if OPT("DBGSTAMP"):
            a = self.a
            a("s_waitcnt vmcnt(0)")
            self()
            a(f"s_load_dwordx2 s[{sws}:{sws+1}], s[0:1], 48")
            a("s_waitcnt lgkmcnt(0)")
            a(f"s_and_b32 s{sws+1}, s{sws+1}, 0xffff")
            a(f"s_mov_b32 s{sws+2}, 256")
            a(f"s_xor_b32 s{stmp}, s2, 5")
            a(f"s_add_u32 s{stmp}, s{stmp}, s{swave}")
            a(f"s_lshl_b32 s{stmp}, s{stmp}, 8")
            a(f"v_mov_b32 v{vtmp+1}, 0")
            for i in range(1, self.n):
                a(f"s_sub_u32 s{self.base+i*4}, s{self.base+i*4}, s{self.base}")
                a(f"s_sub_u32 s{self.base+i*4+2}, s{self.base+i*4+2}, s{self.base+2}")
                a(f"v_mov_b32 v{vtmp}, s{self.base+i*4}")
                a(f"buffer_store_dword v{vtmp}, v{vtmp+1}, s[{sws}:{sws+3}], s{stmp} offen offset:{(i-1)*8}")
                a(f"v_mov_b32 v{vtmp}, s{self.base+i*4+2}")
                a(f"buffer_store_dword v{vtmp}, v{vtmp+1}, s[{sws}:{sws+3}], s{stmp} offen offset:{(i-1)*8+4}")
            return
        if not OPT("STAMP"):
            return
        a = self.a
        self()
        a("s_waitcnt lgkmcnt(0)")
        a(f"s_mov_b32 s{sws+2}, 0x8000000")
        a(f"s_lshl_b32 s{stmp}, s2, 2")
        a(f"s_add_u32 s{stmp}, s{stmp}, s{swave}")
        a(f"s_lshl_b32 s{stmp}, s{stmp}, 7")
        a(f"s_add_u32 s{stmp}, s{stmp}, {STAMP_OFF + self.kidx * (1 << 20)}")
        a(f"v_mov_b32 v{vtmp+1}, 0")
        for i in range(self.n):
            a(f"v_mov_b32 v{vtmp}, s{self.base+i*4}")
            a(f"buffer_store_dword v{vtmp}, v{vtmp+1}, s[{sws}:{sws+3}], s{stmp} offen offset:{i*8}")
            a(f"v_mov_b32 v{vtmp}, s{self.base+i*4+2}")
            a(f"buffer_store_dword v{vtmp}, v{vtmp+1}, s[{sws}:{sws+3}], s{stmp} offen offset:{i*8+4}")


def ticket(a, tag, sD, sX, sR, sTry, sA, sLid):
    a(f"s_getreg_b32 s{sX}, hwreg(HW_REG_XCC_ID)")
    a(f"s_and_b32 s{sX}, s{sX}, 7")
    a(f"s_mov_b32 s{sTry}, 0")
    a.label(f"L_{tag}_try")
    a(f"s_lshl_b32 s{sR}, s{sX}, 5")
    a(f"s_add_u32 s{sA}, s{sD}, s{sR}")
    a(f"s_addc_u32 s{sA+1}, s{sD+1}, 0")
    a(f"s_mov_b32 s{sR}, 1")
    a(f"s_atomic_add s{sR}, s[{sA}:{sA+1}], 0 glc")
    a("s_waitcnt lgkmcnt(0)")
    a(f"s_lshl_b32 s{sLid}, s{sR}, 3")
    a(f"s_add_u32 s{sLid}, s{sLid}, s{sX}")
    a(f"s_cmp_lt_u32 s{sR}, 32")
    a(f"s_cbranch_scc1 L_{tag}_got")
    a(f"s_add_u32 s{sX}, s{sX}, 1")
    a(f"s_and_b32 s{sX}, s{sX}, 7")
    a(f"s_add_u32 s{sTry}, s{sTry}, 1")
    a(f"s_cmp_lt_u32 s{sTry}, 8")
    a(f"s_cbranch_scc1 L_{tag}_try")
    a(f"s_mov_b32 s{sLid}, 256")
    a.label(f"L_{tag}_got")


def srd(a, d, b, nbytes):
    a(f"s_mov_b32 s{d}, s{b}")
    a(f"s_and_b32 s{d+1}, s{b+1}, 0xffff")
    a(f"s_mov_b32 s{d+2}, {nbytes}")
    a(f"s_mov_b32 s{d+3}, 0x20000")


def interleave(main, fill, per=2):
    out = []
    fi = 0

    def put(x):
        if isinstance(x, list):
            out.extend(x)
        else:
            out.append(x)
    for m in main:
        out.append(m)
        for _ in range(per):
            if fi < len(fill):
                put(fill[fi])
                fi += 1
    for x in fill[fi:]:
        put(x)
    return out


def flat(l):
    out = []
    for x in l:
        if isinstance(x, list):
            out.extend(x)
        else:
            out.append(x)
    return out


NSLOT = 5
NTD = 'nt' if OPT('NTD', 1) else ''
NTS = 'nt' if OPT('NTS', 0) else ''
NT2 = 'nt' if OPT('NT2', 0) else ''
NTC = 'nt ' if OPT('NTC', 1) else ''
NTX = 'nt ' if OPT('NTX', 1) else ''
SLOT = 30720
XOFF = 16384
NSTAGE = 16


def gen_k1(a):
    name = "fnet_k1_kernel"
    a.raw(f".globl {name}")
    a.raw(".p2align 8")
    a.raw(f".type {name},@function")
    a.label(name)
    sX, sC, sWS, sDr, sDi = 16, 20, 24, 28, 32
    sW = 36
    sCo = 37
    sXo = 38
    sM0C = 39
    sSlotW = 40
    sSlotR = 41
    sIt = 42
    sT0 = 43
    sT1 = 44
    sH, sRB, sJ = 45, 46, 47
    sMask = 48
    sWk, sWm = 50, 51
    sF = 52
    sStg = 53
    sCoE, sXoE = 54, 55
    sOOB = 56
    sWC, sWX = 57, 58
    sRot = 59
    sT2, sT3 = 60, 61
    sR0, sWs, sI = 62, 63, 3

    vLane = 1
    vOC = 2
    vOX = 6
    vCb0 = 10
    vXb0 = 11
    vCb = 13
    vXb = 14
    vT = 16
    vDp = 20
    vDo = 24
    FR = 28
    ACC = 116

    def cfrag(s, n):
        b = FR + s * 44 + n * 4
        return b

    def xfrag(s, m):
        b = FR + s * 44 + 16 + m * 4
        return b

    def acc(m, n):
        return ACC + (m * 4 + n) * 4

    st = Stamps(a, 64, 0)
    a("s_cmp_ge_u32 s2, 256")
    a("s_cbranch_scc1 L_k1_done")
    st()
    a("s_load_dwordx8 s[4:11], s[0:1], 0")
    a("s_load_dwordx2 s[12:13], s[0:1], 32")
    a("s_load_dwordx2 s[14:15], s[0:1], 56")
    a(f"v_lshrrev_b32 v{vT}, 6, v0")
    a(f"v_and_b32 v{vLane}, 63, v0")
    a(f"v_readfirstlane_b32 s{sW}, v{vT}")
    a(f"s_and_b32 s{sT0}, s2, 7")
    a(f"s_lshr_b32 s{sT1}, s2, 3")
    if OPT("MAPB"):
        a(f"s_lshr_b32 s{sH}, s{sT1}, 2")
        a(f"s_and_b32 s{sH}, s{sH}, 1")
        a(f"s_lshr_b32 s{sRB}, s{sT1}, 3")
        a(f"s_lshl_b32 s{sRB}, s{sRB}, 3")
        a(f"s_add_u32 s{sRB}, s{sRB}, s{sT0}")
    else:
        a(f"s_and_b32 s{sH}, s{sT0}, 1")
        a(f"s_lshr_b32 s{sRB}, s{sT0}, 1")
        a(f"s_lshr_b32 s{sJ}, s{sT1}, 2")
        a(f"s_lshl_b32 s{sJ}, s{sJ}, 2")
        a(f"s_add_u32 s{sRB}, s{sRB}, s{sJ}")
    a(f"s_and_b32 s{sJ}, s{sT1}, 3")
    a(f"s_and_b32 s{sWk}, s{sW}, 1")
    a(f"s_lshr_b32 s{sWm}, s{sW}, 1")
    a(f"s_lshl_b32 s{sCo}, s{sRB}, 18")
    a(f"s_lshl_b32 s{sT0}, s{sWk}, 17")
    a(f"s_add_u32 s{sCo}, s{sCo}, s{sT0}")
    a(f"s_lshl_b32 s{sT0}, s{sH}, 11")
    a(f"s_add_u32 s{sCo}, s{sCo}, s{sT0}")
    a(f"s_mul_i32 s{sXo}, s{sH}, {1024*896}")
    a(f"s_mul_i32 s{sT0}, s{sJ}, 224")
    a(f"s_add_u32 s{sXo}, s{sXo}, s{sT0}")
    if OPT("ROT", 0):
        if OPT("MAPB"):
            a(f"s_lshr_b32 s{sRot}, s{sT1}, 3")
            a(f"s_lshl_b32 s{sRot}, s{sRot}, 2")
        else:
            a(f"s_lshr_b32 s{sRot}, s{sT1}, 2")
            a(f"s_lshl_b32 s{sRot}, s{sRot}, 1")
        if OPT("ROT", 0) == 3:
            a(f"s_lshr_b32 s{sT0}, s{sT1}, 3")
            a(f"s_add_u32 s{sT0}, s{sT0}, s{sJ}")
            a(f"s_lshl_b32 s{sR0}, s{sT0}, 1")
            a(f"s_and_b32 s{sR0}, s{sR0}, 7")
            a(f"s_lshr_b32 s{sT0}, s{sT1}, 2")
            a(f"s_and_b32 s{sT0}, s{sT0}, 1")
            a(f"s_lshl_b32 s{sWs}, s{sT0}, 3")
            if OPT("MAPB"):
                a(f"s_mov_b32 s{sWs}, 0")
            a(f"s_mov_b32 s{sI}, 0")
            a(f"s_add_u32 s{sRot}, s{sR0}, s{sWs}")
        if OPT("ROT", 0) == 2:
            a(f"s_lshl_b32 s{sT0}, s{sJ}, 2")
            a(f"s_add_u32 s{sRot}, s{sRot}, s{sT0}")
            a(f"s_and_b32 s{sRot}, s{sRot}, 15")
        a(f"s_mov_b32 s{sT2}, s{sCo}")
        a(f"s_mov_b32 s{sT3}, s{sXo}")
        a(f"s_lshl_b32 s{sT0}, s{sRot}, 7")
        a(f"s_add_u32 s{sCo}, s{sCo}, s{sT0}")
        a(f"s_mul_i32 s{sT0}, s{sRot}, {64*896}")
        a(f"s_add_u32 s{sXo}, s{sXo}, s{sT0}")
    a(f"s_lshl_b32 s{sWC}, s{sW}, 12")
    a(f"s_mul_i32 s{sWX}, s{sW}, 3584")
    a(f"s_add_u32 s{sWX}, s{sWX}, {XOFF}")
    a(f"s_mov_b32 s{sMask}, -1")
    a(f"s_mov_b32 s{sMask+1}, 0")
    a(f"s_mov_b32 s{sOOB}, 0x7f000000")
    a(f"v_lshrrev_b32 v{vT}, 3, v{vLane}")
    a(f"v_lshlrev_b32 v{vT}, 12, v{vT}")
    a(f"v_and_b32 v{vT+1}, 7, v{vLane}")
    a(f"v_lshrrev_b32 v{vT+2}, 4, v{vLane}")
    a(f"v_xor_b32 v{vT+1}, v{vT+1}, v{vT+2}")
    a(f"v_lshl_add_u32 v{vOC}, v{vT+1}, 4, v{vT}")
    a(f"v_xor_b32 v{vT+1}, 4, v{vT+1}")
    a(f"v_lshl_add_u32 v{vOC+1}, v{vT+1}, 4, v{vT}")
    a(f"v_add_u32 v{vOC+1}, {8*4096-1024}, v{vOC+1}")
    a(f"v_add_u32 v{vOC+2}, {16*4096-2048}, v{vOC}")
    a(f"v_add_u32 v{vOC+3}, {16*4096-2048}, v{vOC+1}")
    a(f"s_mul_i32 s{sT0}, s{sW}, 224")
    a(f"s_mov_b32 s{sT1}, 4682")
    for q in range(4):
        a(f"v_add_u32 v{vT}, s{sT0}, v{vLane}")
        if q:
            a(f"v_add_u32 v{vT}, {64*q}, v{vT}")
        a(f"v_mul_lo_u32 v{vT+1}, v{vT}, s{sT1}")
        a(f"v_lshrrev_b32 v{vT+1}, 16, v{vT+1}")
        a(f"v_mul_u32_u24 v{vT+2}, 14, v{vT+1}")
        a(f"v_sub_u32 v{vT+2}, v{vT}, v{vT+2}")
        a(f"v_lshrrev_b32 v{vT+3}, 1, v{vT+1}")
        a(f"v_and_b32 v{vT+3}, 4, v{vT+3}")
        a(f"v_xor_b32 v{vT+1}, v{vT+1}, v{vT+3}")
        a(f"v_mul_u32_u24 v{vT+1}, 896, v{vT+1}")
        a(f"v_lshl_add_u32 v{vOX+q}, v{vT+2}, 4, v{vT+1}")
        if q:
            a(f"v_subrev_u32 v{vOX+q}, {1024*q}, v{vOX+q}")
    for c in range(1024):
        assert (c * 4682) >> 16 == c // 14
    a("s_waitcnt lgkmcnt(0)")
    srd(a, sX, 4, X_BYTES)
    a(f"s_cmp_ge_u32 s{sW}, 2")
    a(f"s_cselect_b32 s{sC}, s8, s6")
    a(f"s_cselect_b32 s{sC+1}, s9, s7")
    a(f"s_and_b32 s{sC+1}, s{sC+1}, 0xffff")
    a(f"s_mov_b32 s{sC+2}, {C_BYTES}")
    a(f"s_mov_b32 s{sC+3}, 0x20000")
    srd(a, sWS, 14, WS_BYTES)
    srd(a, sDr, 10, D_BYTES)
    srd(a, sDi, 12, D_BYTES)
    a(f"s_cmp_eq_u32 s{sW}, 4")
    a("s_cbranch_scc1 L_k1_helper")

    def dma_stage(slot_expr, co, xo):
        ins = []
        ins.append(f"s_add_u32 m0, s{slot_expr}, s{sWC}")
        ins.append("s_nop 0")
        if OPT("NOC"):
            co = sOOB
        if OPT("NOX"):
            xo = sOOB
        for q in range(4):
            ins.append(f"buffer_load_dwordx4 v{vOC+q}, s[{sC}:{sC+3}], s{co} offen offset:{q*1024} {NTC}lds")
        ins.append(f"s_add_u32 m0, s{slot_expr}, s{sWX}")
        ins.append("s_nop 0")
        for q in range(3):
            ins.append(f"buffer_load_dwordx4 v{vOX+q}, s[{sX}:{sX+3}], s{xo} offen offset:{q*1024} {NTX}lds")
        ins.append([f"s_mov_b64 exec, s[{sMask}:{sMask+1}]",
                    f"buffer_load_dwordx4 v{vOX+3}, s[{sX}:{sX+3}], s{xo} offen offset:3072 {NTX}lds",
                    "s_mov_b64 exec, -1"])
        return ins

    def advance():
        if OPT("ROT", 0) == 3:
            return [f"s_add_u32 s{sI}, s{sI}, 1",
                    f"s_add_u32 s{sRot}, s{sR0}, s{sI}",
                    f"s_and_b32 s{sRot}, s{sRot}, 7",
                    f"s_xor_b32 s{sCo}, s{sI}, s{sWs}",
                    f"s_and_b32 s{sCo}, s{sCo}, 8",
                    f"s_add_u32 s{sRot}, s{sRot}, s{sCo}",
                    f"s_lshl_b32 s{sCo}, s{sRot}, 7",
                    f"s_add_u32 s{sCo}, s{sCo}, s{sT2}",
                    f"s_mul_i32 s{sXo}, s{sRot}, {64*896}",
                    f"s_add_u32 s{sXo}, s{sXo}, s{sT3}"]
        if OPT("ROT", 0):
            return [f"s_add_u32 s{sRot}, s{sRot}, 1",
                    f"s_and_b32 s{sRot}, s{sRot}, 15",
                    f"s_lshl_b32 s{sCo}, s{sRot}, 7",
                    f"s_add_u32 s{sCo}, s{sCo}, s{sT2}",
                    f"s_mul_i32 s{sXo}, s{sRot}, {64*896}",
                    f"s_add_u32 s{sXo}, s{sXo}, s{sT3}"]
        return [f"s_add_u32 s{sCo}, s{sCo}, 128",
                f"s_add_u32 s{sXo}, s{sXo}, {64*896}"]

    if OPT("PFBAR"):
        a("s_barrier")
    st()
    a(f"s_mov_b32 s{sSlotW}, 0")
    for _stg in range(NSLOT):
        for i in flat(dma_stage(sSlotW, sCo, sXo)):
            a(i)
        for i in flat(advance()):
            a(i)
        a(f"s_add_u32 s{sSlotW}, s{sSlotW}, {SLOT}")
    a(f"s_mov_b32 s{sSlotW}, 0")
    a(f"s_mov_b32 s{sStg}, {NSLOT}")

    NEXTRA = 0

    a(f"v_and_b32 v{vT}, 15, v{vLane}")
    a(f"v_lshrrev_b32 v{vT+1}, 4, v{vLane}")
    a(f"s_lshl_b32 s{sT0}, s{sWk}, 2")
    a(f"v_add_u32 v{vT+2}, s{sT0}, v{vT+1}")
    a(f"v_lshrrev_b32 v{vT+3}, 1, v{vT}")
    a(f"v_xor_b32 v{vT+2}, v{vT+2}, v{vT+3}")
    a(f"v_lshlrev_b32 v{vT+2}, 4, v{vT+2}")
    a(f"v_lshl_add_u32 v{vCb0}, v{vT}, 7, v{vT+2}")
    a(f"s_lshl_b32 s{sT0}, s{sWm}, 12")
    a(f"v_add_u32 v{vCb0}, s{sT0}, v{vCb0}")
    a(f"v_lshlrev_b32 v{vT+2}, 3, v{vT+1}")
    a(f"v_lshrrev_b32 v{vT+3}, 2, v{vT}")
    a(f"v_add_u32 v{vT+2}, v{vT+2}, v{vT+3}")
    a(f"s_lshl_b32 s{sT0}, s{sWk}, 5")
    a(f"v_add_u32 v{vT+2}, s{sT0}, v{vT+2}")
    a(f"v_and_b32 v{vT+3}, 1, v{vT+1}")
    a(f"v_lshlrev_b32 v{vT+3}, 2, v{vT+3}")
    a(f"v_add_u32 v{vXb0}, v{vT+2}, v{vT+3}")
    a(f"v_xor_b32 v{vT+3}, 4, v{vT+3}")
    a(f"v_add_u32 v{vXb0+1}, v{vT+2}, v{vT+3}")
    a(f"v_and_b32 v{vT}, 3, v{vT}")
    a(f"v_lshlrev_b32 v{vT}, 3, v{vT}")
    a(f"v_add_u32 v{vT}, {XOFF}, v{vT}")
    a(f"v_mov_b32 v{vT+1}, 224")
    a(f"v_mad_u32_u24 v{vXb0}, v{vXb0}, v{vT+1}, v{vT}")
    a(f"v_mad_u32_u24 v{vXb0+1}, v{vXb0+1}, v{vT+1}, v{vT}")
    for r in range(112):
        a(f"v_mov_b32 v{ACC+r}, 0")

    def frag_reads(s):
        ins = []
        def xr(m):
            return [f"ds_read_b64_tr_b16 v[{xfrag(s,m)}:{xfrag(s,m)+1}], v{vXb} offset:{m*32}",
                    f"ds_read_b64_tr_b16 v[{xfrag(s,m)+2}:{xfrag(s,m)+3}], v{vXb+1} offset:{m*32}"]
        ins += xr(0)
        for n in range(4):
            pq, tl = n >> 1, n & 1
            ins.append(f"ds_read_b128 v[{cfrag(s,n)}:{cfrag(s,n)+3}], v{vCb} offset:{pq*8192+tl*2048}")
        for m in range(1, 7):
            ins += xr(m)
        return ins

    def set_read_bases(slot_sgpr):
        return [f"v_add_u32 v{vCb}, s{slot_sgpr}, v{vCb0}",
                f"v_add_u32 v{vXb}, s{slot_sgpr}, v{vXb0}",
                f"v_add_u32 v{vXb+1}, s{slot_sgpr}, v{vXb0+1}"]

    def mfmas(s):
        return [f"v_mfma_f32_16x16x32_bf16 v[{acc(m,n)}:{acc(m,n)+3}], v[{xfrag(s,m)}:{xfrag(s,m)+3}], "
                f"v[{cfrag(s,n)}:{cfrag(s,n)+3}], v[{acc(m,n)}:{acc(m,n)+3}]"
                for m in range(7) for n in range(4)]

    a(f"s_mov_b32 s{sSlotR}, 0")
    for i in set_read_bases(sSlotR):
        a(i)
    st()
    a(f"s_waitcnt vmcnt({(NSLOT-1)*8+NEXTRA})")
    st()
    a("s_barrier")
    for i in frag_reads(0):
        a(i)
    a(f"s_mov_b32 s{sIt}, 0")

    a.label("L_k1_loop")
    for s in range(2):
        a(f"s_add_u32 s{sSlotR}, s{sSlotR}, {SLOT}")
        a(f"s_cmp_eq_u32 s{sSlotR}, {SLOT*NSLOT}")
        a(f"s_cselect_b32 s{sSlotR}, 0, s{sSlotR}")
        a(f"s_cmp_lt_u32 s{sStg}, {NSTAGE}")
        a(f"s_cselect_b32 s{sCoE}, s{sCo}, s{sOOB}")
        a(f"s_cselect_b32 s{sXoE}, s{sXo}, s{sOOB}")
        for i in set_read_bases(sSlotR):
            a(i)
        a(f"s_waitcnt vmcnt({(NSLOT-2)*8}) lgkmcnt(0)")
        a("s_barrier")
        if OPT("TRACE"):
            a("s_memtime s[96:97]")
            a("s_waitcnt lgkmcnt(0)")
            a(f"s_mov_b32 s99, m0")
            a(f"s_mov_b32 m0, s{sStg}")
            a("s_nop 0")
            a(f"v_writelane_b32 v{vDo}, s96, m0")
            a(f"s_mov_b32 m0, s99")
        fill = frag_reads(1 - s) + dma_stage(sSlotW, sCoE, sXoE)
        if OPT("NODMA"):
            fill = frag_reads(1 - s)
        if OPT("NOREAD"):
            fill = dma_stage(sSlotW, sCoE, sXoE)
        fill += advance()
        fill += [f"s_add_u32 s{sStg}, s{sStg}, 1",
                 [f"s_add_u32 s{sSlotW}, s{sSlotW}, {SLOT}",
                  f"s_cmp_eq_u32 s{sSlotW}, {SLOT*NSLOT}",
                  f"s_cselect_b32 s{sSlotW}, 0, s{sSlotW}"]]
        for i in interleave(mfmas(s) if not OPT("NOMFMA") else [], fill, per=2):
            a(i)
    a(f"s_add_u32 s{sIt}, s{sIt}, 1")
    a(f"s_cmp_lt_u32 s{sIt}, {NSTAGE//2}")
    a("s_cbranch_scc1 L_k1_loop")

    st()
    a("s_waitcnt vmcnt(0) lgkmcnt(0)")
    a("s_barrier")
    a(f"s_mul_i32 s{sT0}, s{sW}, 14336")
    a(f"s_xor_b32 s{sT1}, s{sW}, 1")
    a(f"s_mul_i32 s{sT1}, s{sT1}, 14336")
    a(f"v_lshlrev_b32 v{vT}, 4, v{vLane}")
    a(f"v_add_u32 v{vT+1}, s{sT1}, v{vT}")
    a(f"v_add_u32 v{vT}, s{sT0}, v{vT}")
    a(f"s_cmp_eq_u32 s{sWk}, 0")
    a("s_cbranch_scc0 L_k1_epi1")
    for wk in range(2):
        if wk == 1:
            a.label("L_k1_epi1")
        give = 1 - wk
        keep = wk
        idx = 0
        for m in range(7):
            for pq in range(2):
                r = acc(m, pq * 2 + give)
                a(f"ds_write_b128 v{vT}, v[{r}:{r+3}] offset:{idx*1024}")
                idx += 1
        a("s_waitcnt lgkmcnt(0)")
        a("s_barrier")
        idx = 0
        for m in range(7):
            for pq in range(2):
                r = FR + idx * 4
                a(f"ds_read_b128 v[{r}:{r+3}], v{vT+1} offset:{idx*1024}")
                idx += 1
        a(f"s_lshl_b32 s{sT0}, s{sH}, 7")
        a(f"s_lshl_b32 s{sT1}, s{sRB}, 2")
        a(f"s_add_u32 s{sT0}, s{sT0}, s{sT1}")
        a(f"s_lshl_b32 s{sT1}, s{sWm}, 1")
        a(f"s_add_u32 s{sT0}, s{sT0}, s{sT1}")
        a(f"s_add_u32 s{sT0}, s{sT0}, {keep}")
        a(f"s_mul_i32 s{sT0}, s{sT0}, 28")
        a(f"s_mul_i32 s{sT1}, s{sJ}, 7")
        a(f"s_add_u32 s{sT0}, s{sT0}, s{sT1}")
        a(f"s_lshl_b32 s{sT0}, s{sT0}, 10")
        a(f"v_lshlrev_b32 v{vT+2}, 4, v{vLane}")
        a(f"v_add_u32 v{vT+3}, 4096, v{vT+2}")
        idx = 0
        for m in range(7):
            a(f"s_waitcnt lgkmcnt({12-2*m})")
            for pq in range(2):
                r = FR + idx * 4
                ac = acc(m, pq * 2 + keep)
                for k in range(4):
                    a(f"v_add_f32 v{ac+k}, v{ac+k}, v{r+k}")
                idx += 1
            p = acc(m, keep)
            q = acc(m, 2 + keep)
            o = FR + 56 + m * 4
            a(f"v_cvt_pk_bf16_f32 v{o}, v{p}, v{p+1}")
            a(f"v_cvt_pk_bf16_f32 v{o+1}, v{p+2}, v{p+3}")
            a(f"v_cvt_pk_bf16_f32 v{o+2}, v{q}, v{q+1}")
            a(f"v_cvt_pk_bf16_f32 v{o+3}, v{q+2}, v{q+3}")
            vo = vT + 2 if m < 4 else vT + 3
            a(f"buffer_store_dwordx4 v[{o}:{o+3}], v{vo}, s[{sWS}:{sWS+3}], s{sT0} offen offset:{(m%4)*1024} {NTS}")
        if wk == 0:
            a("s_branch L_k1_epi2")
    a.label("L_k1_epi2")
    st()
    if OPT("STAMP"):
        a("s_waitcnt vmcnt(0)")
    st.dump(sWS, sT0, vT, sW)
    if OPT("TRACE"):
        a(f"v_writelane_b32 v{vDo}, s64, 0")
        a(f"s_lshl_b32 s{sT0}, s2, 2")
        a(f"s_add_u32 s{sT0}, s{sT0}, s{sW}")
        a(f"s_lshl_b32 s{sT0}, s{sT0}, 8")
        a(f"s_add_u32 s{sT0}, s{sT0}, {STAMP_OFF + 3 * (1 << 20)}")
        a(f"v_lshlrev_b32 v{vT}, 2, v{vLane}")
        a(f"buffer_store_dword v{vDo}, v{vT}, s[{sWS}:{sWS+3}], s{sT0} offen")
    a("s_endpgm")
    a.label("L_k1_helper")
    sCi = 64 if not OPT("STAMP") else 92
    srd(a, sCi, 6, C_BYTES)
    sCrp, sCip = sCi, sC
    ST = OPT("PF_ST", 128)
    CH = OPT("PF_CH", 512)
    LPR = CH // ST
    RPI = 64 // LPR
    NCH = 2048 // CH
    if OPT("PF", 1):
        import math
        a(f"v_lshrrev_b32 v{vT}, {int(math.log2(LPR))}, v{vLane}")
        a(f"v_lshlrev_b32 v{vT}, 12, v{vT}")
        a(f"v_and_b32 v{vT+1}, {LPR-1}, v{vLane}")
        a(f"v_lshlrev_b32 v{vT+1}, {int(math.log2(ST))}, v{vT+1}")
        a(f"v_add_u32 v{vT}, v{vT}, v{vT+1}")
        a(f"v_lshlrev_b32 v{vT+1}, {int(math.log2(ST))}, v{vLane}")
        a(f"s_lshl_b32 s{sT0}, s{sRB}, 18")
        a(f"s_lshl_b32 s{sT1}, s{sJ}, 16")
        a(f"s_add_u32 s{sT0}, s{sT0}, s{sT1}")
        a(f"s_lshl_b32 s{sT1}, s{sH}, 11")
        a(f"s_add_u32 s{sT0}, s{sT0}, s{sT1}")
        xch = (CH // 2) * 896
        if OPT("MAPB"):
            xpart = xch // 16
            a(f"s_lshr_b32 s{sT1}, s2, 6")
            a(f"s_lshl_b32 s{sT1}, s{sT1}, 2")
            a(f"s_add_u32 s{sT1}, s{sT1}, s{sJ}")
        else:
            xpart = xch // 32
            a(f"s_lshr_b32 s{sT1}, s2, 3")
        a(f"s_mul_i32 s{sT1}, s{sT1}, {xpart}")
        a(f"s_mul_i32 s{sT2}, s{sH}, {1024*896}")
        a(f"s_add_u32 s{sT1}, s{sT1}, s{sT2}")
        for c in range(OPT("PF_SKIP", 0), NCH):
            for rg in range(16 // RPI):
                a(f"s_add_u32 s{sT2}, s{sT0}, {c*CH + rg*RPI*4096}")
                a(f"buffer_load_dword v{vT+2}, v{vT}, s[{sCrp}:{sCrp+3}], s{sT2} offen nt")
                a(f"buffer_load_dword v{vT+2}, v{vT}, s[{sCip}:{sCip+3}], s{sT2} offen nt")
            for p in range((xpart + 64*ST - 1) // (64*ST)):
                a(f"s_add_u32 s{sT2}, s{sT1}, {c*xch + p*64*ST}")
                if not OPT("PF_NOX"):
                    a(f"buffer_load_dword v{vT+2}, v{vT+1}, s[{sX}:{sX+3}], s{sT2} offen {NTX}")
    if OPT("STAMP"):
        sth = Stamps(a, 64, 2)
        sth.n = 1
        sth()
        a("s_waitcnt vmcnt(0)")
        if OPT("PFBAR"):
            a("s_barrier")
        a(f"s_mov_b32 s{sW}, 0")
        sth.dump(sWS, sT0, vT, sW)
        a(f"s_mov_b32 s{sWS+2}, {WS_BYTES}")
    a(f"v_and_b32 v{vT}, 15, v{vLane}")
    a(f"v_mul_u32_u24 v{vT}, 896, v{vT}")
    a(f"v_lshrrev_b32 v{vT+1}, 4, v{vLane}")
    a(f"v_lshl_add_u32 v{vT}, v{vT+1}, 3, v{vT}")
    a(f"v_lshlrev_b32 v{vT+1}, 4, v{vLane}")
    if NCOPY == 8:
        a(f"s_lshr_b32 s{sF}, s2, 3")
        a(f"s_mul_i32 s{sF}, s{sF}, 25")
    else:
        a(f"s_lshl_b32 s{sF}, s2, 2")
    for i in range(NFR):
        a(f"s_add_u32 s{sT2}, s{sF}, {i}")
        a(f"s_mul_i32 s{sT0}, s{sT2}, 2341")
        a(f"s_lshr_b32 s{sT0}, s{sT0}, 16")
        a(f"s_mul_i32 s{sT1}, s{sT0}, 28")
        a(f"s_sub_u32 s{sT1}, s{sT2}, s{sT1}")
        a(f"s_mul_i32 s{sT0}, s{sT0}, {16*896}")
        a(f"s_lshl_b32 s{sT1}, s{sT1}, 5")
        a(f"s_add_u32 s{sT0}, s{sT0}, s{sT1}")
        r = FR + i * 4
        a(f"buffer_load_dwordx2 v[{r}:{r+1}], v{vT}, s[{sDr}:{sDr+3}], s{sT0} offen {NTD}")
        a(f"buffer_load_dwordx2 v[{r+2}:{r+3}], v{vT}, s[{sDi}:{sDi+3}], s{sT0} offen {NTD}")
    for f in range(1024):
        assert (f * 2341) >> 16 == f // 28
    a(f"s_and_b32 s{sT0}, s2, {NCOPY-1}")
    a(f"s_mul_i32 s{sT0}, s{sT0}, {DF_BYTES}")
    a(f"s_lshl_b32 s{sT1}, s{sF}, 10")
    a(f"s_add_u32 s{sT0}, s{sT0}, s{sT1}")
    a(f"s_add_u32 s{sT0}, s{sT0}, {DOFF}")
    for i in range(NFR):
        r = FR + i * 4
        a(f"s_add_u32 s{sT2}, s{sF}, {i}")
        a(f"s_cmp_ge_u32 s{sT2}, 784")
        a("s_cbranch_scc1 L_k1_done")
        a(f"s_waitcnt vmcnt({min(63, 2*(NFR-1-i) + i)})")
        a(f"v_xor_b32 v{r+2}, 0x80008000, v{r+2}")
        a(f"v_xor_b32 v{r+3}, 0x80008000, v{r+3}")
        a(f"buffer_store_dwordx4 v[{r}:{r+3}], v{vT+1}, s[{sWS}:{sWS+3}], s{sT0} offen {NTS}")
        a(f"s_add_u32 s{sT0}, s{sT0}, 1024")
    a.label("L_k1_done")
    a("s_endpgm")
    return name, 228, 0, NSLOT * SLOT, 320


def gen_k2(a):
    name = "fnet_k2_kernel"
    a.raw(f".globl {name}")
    a.raw(".p2align 8")
    a.raw(f".type {name},@function")
    a.label(name)
    sWS, sOut = 8, 12
    sW = 16
    sT0, sT1 = 17, 18
    sTB, sJ = 19, 20
    sPQ = 24
    sD = 28
    vLane = 1
    vO = 2
    vT = 4
    PQR = 8
    ACC = 120

    def pq(ml, h, tl):
        return PQR + ((ml * 2 + h) * 2 + tl) * 4

    def df(ml, et):
        return (ml * 7 + et) * 4

    def acc(et, tl):
        return ACC + (et * 2 + tl) * 4

    st = Stamps(a, 64, 1) if OPT("STAMP") else (lambda: None)
    a("s_cmp_ge_u32 s2, 256")
    a("s_cbranch_scc1 L_k2_done")
    st()
    a("s_load_dwordx2 s[4:5], s[0:1], 56")
    a("s_load_dwordx4 s[40:43], s[0:1], 40")
    a(f"v_lshrrev_b32 v{vT}, 6, v0")
    a(f"v_and_b32 v{vLane}, 63, v0")
    a(f"v_readfirstlane_b32 s{sW}, v{vT}")
    if OPT("TICKET2", 1):
        a(f"v_mov_b32 v{vT+1}, 0")
        a(f"s_cmp_lg_u32 s{sW}, 0")
        a("s_cbranch_scc1 L_k2_wait")
        a("s_waitcnt lgkmcnt(0)")
        ticket(a, "k2", 42, 44, 45, 46, 48, 50)
        a(f"v_mov_b32 v{vT+2}, s50")
        a(f"ds_write_b32 v{vT+1}, v{vT+2}")
        a("s_waitcnt lgkmcnt(0)")
        a.label("L_k2_wait")
        a("s_barrier")
        a(f"ds_read_b32 v{vT+2}, v{vT+1}")
        a("s_waitcnt lgkmcnt(0)")
        a(f"v_readfirstlane_b32 s2, v{vT+2}")
        a("s_nop 3")
        a("s_cmp_ge_u32 s2, 256")
        a("s_cbranch_scc1 L_k2_done")
    a(f"s_and_b32 s{sT0}, s2, 7")
    a(f"s_lshr_b32 s{sT1}, s2, 3")
    a(f"s_lshr_b32 s{sTB}, s{sT1}, 2")
    a(f"s_lshl_b32 s{sTB}, s{sTB}, 3")
    a(f"s_add_u32 s{sTB}, s{sTB}, s{sT0}")
    a(f"s_and_b32 s{sJ}, s{sT1}, 3")
    a(f"v_lshlrev_b32 v{vO}, 4, v{vLane}")
    a(f"v_add_u32 v{vO+1}, 4096, v{vO}")
    a(f"s_mul_i32 s{sT0}, s{sW}, 7")
    a(f"s_mul_i32 s{sT1}, s{sTB}, 56")
    a(f"s_add_u32 s{sT1}, s{sT1}, s{sT0}")
    a(f"s_lshl_b32 s{sT1}, s{sT1}, 10")
    for h in range(2):
        for tl in range(2):
            a(f"s_add_u32 s{sPQ+h*2+tl}, s{sT1}, {(h*128+tl)*28*1024}")
    a(f"s_mul_i32 s{sT1}, s{sJ}, 196")
    a(f"s_add_u32 s{sT1}, s{sT1}, s{sT0}")
    a(f"s_lshl_b32 s{sT1}, s{sT1}, 10")
    a(f"s_and_b32 s{sT0}, s2, {NCOPY-1}")
    a(f"s_mul_i32 s{sT0}, s{sT0}, {DF_BYTES}")
    a(f"s_add_u32 s{sT1}, s{sT1}, s{sT0}")
    for et in range(7):
        a(f"s_add_u32 s{sD+et}, s{sT1}, {DOFF + et*28*1024}")
    a("s_waitcnt lgkmcnt(0)")
    srd(a, sWS, 4, WS_BYTES)
    srd(a, sOut, 40, X_BYTES)

    def loads(ml):
        ins = []
        vo = vO if ml < 4 else vO + 1
        off = (ml % 4) * 1024
        for h in range(2):
            for tl in range(2):
                r = pq(ml, h, tl)
                ins.append(f"buffer_load_dwordx4 v[{r}:{r+3}], v{vo}, s[{sWS}:{sWS+3}], s{sPQ+h*2+tl} offen offset:{off} {NT2}")
        for et in range(7):
            r = df(ml, et)
            ins.append(f"buffer_load_dwordx4 a[{r}:{r+3}], v{vo}, s[{sWS}:{sWS+3}], s{sD+et} offen offset:{off} {NT2}")
        return ins

    def mfmas(ml):
        return [f"v_mfma_f32_16x16x32_bf16 v[{acc(et,tl)}:{acc(et,tl)+3}], a[{df(ml,et)}:{df(ml,et)+3}], "
                f"v[{pq(ml,h,tl)}:{pq(ml,h,tl)+3}], v[{acc(et,tl)}:{acc(et,tl)+3}]"
                for h in range(2) for et in range(7) for tl in range(2)]

    st()
    for ml in range(5):
        for i in loads(ml):
            a(i)
    for r in range(56):
        a(f"v_mov_b32 v{ACC+r}, 0")
    st()
    a("s_waitcnt vmcnt(44)")
    st()
    for i in interleave(mfmas(0), loads(5), per=1):
        a(i)
    a("s_waitcnt vmcnt(44)")
    for i in interleave(mfmas(1), loads(6), per=1):
        a(i)
    for ml in range(2, 7):
        a(f"s_waitcnt vmcnt({(6-ml)*11})")
        for i in mfmas(ml):
            a(i)
    st()
    if OPT("STAMP"):
        a("s_waitcnt lgkmcnt(0)")
    a(f"s_mul_i32 s{sT0}, s{sW}, 14336")
    a(f"v_add_u32 v{vT}, s{sT0}, v{vO}")
    a("s_nop 7")
    for t in range(14):
        a(f"ds_write_b128 v{vT}, v[{ACC+t*4}:{ACC+t*4+3}] offset:{t*1024}")
    a("s_waitcnt lgkmcnt(0)")
    a("s_barrier")
    a(f"s_lshl_b32 s{sT0}, s{sW}, 10")
    a(f"v_add_u32 v{vT}, s{sT0}, v{vO}")
    R = PQR
    for q in range(4):
        for p in range(4):
            r = R + (q * 4 + p) * 4
            a(f"ds_read_b128 v[{r}:{r+3}], v{vT} offset:{p*14336+q*4096}")
    a(f"v_and_b32 v{vT+1}, 15, v{vLane}")
    a(f"v_mul_u32_u24 v{vT+1}, 896, v{vT+1}")
    a(f"v_lshrrev_b32 v{vT+2}, 4, v{vLane}")
    a(f"v_lshl_add_u32 v{vT+1}, v{vT+2}, 3, v{vT+1}")
    a(f"s_and_b32 s{sT0}, s{sW}, 1")
    a(f"s_lshl_b32 s{sT0}, s{sT0}, 4")
    a(f"s_lshl_b32 s{sT1}, s{sTB}, 5")
    a(f"s_add_u32 s{sT0}, s{sT0}, s{sT1}")
    a(f"s_mul_i32 s{sT0}, s{sT0}, 896")
    a(f"s_mul_i32 s{sT1}, s{sJ}, 224")
    a(f"s_add_u32 s{sT0}, s{sT0}, s{sT1}")
    a(f"s_lshr_b32 s{sT1}, s{sW}, 1")
    a(f"s_lshl_b32 s{sT1}, s{sT1}, 5")
    a(f"s_add_u32 s{sT0}, s{sT0}, s{sT1}")
    for q in range(4):
        if q == 3:
            if OPT("STAMP"):
                a("s_waitcnt vmcnt(0)")
                st.dump(sWS, sT1, vT + 2, sW)
            a(f"s_cmp_ge_u32 s{sW}, 2")
            a("s_cbranch_scc1 L_k2_done")
        a(f"s_waitcnt lgkmcnt({12-4*q})")
        r = R + q * 16
        for k in range(4):
            a(f"v_add_f32 v{r+k}, v{r+k}, v{r+4+k}")
            a(f"v_add_f32 v{r+8+k}, v{r+8+k}, v{r+12+k}")
        for k in range(4):
            a(f"v_add_f32 v{r+k}, v{r+k}, v{r+8+k}")
        a(f"v_cvt_pk_bf16_f32 v{r+4}, v{r}, v{r+1}")
        a(f"v_cvt_pk_bf16_f32 v{r+5}, v{r+2}, v{r+3}")
        a(f"buffer_store_dwordx2 v[{r+4}:{r+5}], v{vT+1}, s[{sOut}:{sOut+3}], s{sT0} offen offset:{q*64}")
    a.label("L_k2_done")
    a("s_endpgm")
    return name, 176, 196, 65536, 256


def descriptor(name, nv, na, sgpr=100):
    accum = (nv + 3) // 4 * 4
    nfv = accum + na if na else nv
    return f""".p2align 6
.amdhsa_kernel {name}
  .amdhsa_next_free_vgpr {nfv}
  .amdhsa_next_free_sgpr {sgpr}
  .amdhsa_accum_offset {accum}
  .amdhsa_group_segment_fixed_size 0
  .amdhsa_kernarg_size 64
  .amdhsa_user_sgpr_count 2
  .amdhsa_user_sgpr_kernarg_segment_ptr 1
  .amdhsa_system_sgpr_workgroup_id_x 1
.end_amdhsa_kernel
"""


def main():
    a = Asm()
    a.raw('.amdgcn_target "amdgcn-amd-amdhsa--gfx950"')
    a.raw(".text")
    ks = [gen_k1(a), gen_k2(a)]
    out = HEADER
    if OPT("K1TWICE"):
        name, nv, na, lds, blk = ks[0]
        out += f"; @launch kernel={name} grid=(256,1,1) block=({blk},1,1) lds={lds}\n"
    for name, nv, na, lds, blk in ks:
        out += f"; @launch kernel={name} grid=(256,1,1) block=({blk},1,1) lds={lds}\n"
    if OPT("K2TWICE"):
        name, nv, na, lds, blk = ks[1]
        out += f"; @launch kernel={name} grid=(256,1,1) block=({blk},1,1) lds={lds}\n"
    out += a.text()
    out += '.section .rodata,"a"\n'
    for name, nv, na, lds, blk in ks:
        out += descriptor(name, nv, na)
    path = sys.argv[1] if len(sys.argv) > 1 else "standalone__spectral_fnet__prompt.s"
    open(path, "w").write(out)


if __name__ == "__main__":
    main()
```

```python
import sys, os, math
import gen as G
from gen import ticket, OPT, Asm, Stamps, srd, interleave, flat, X_BYTES, C_BYTES, D_BYTES, DOFF, WS_BYTES, STAMP_OFF, HEADER

NSLOT, SLOT, XOFF, NSTAGE = 5, 30720, 16384, 16
NTC = 'nt ' if OPT('NTC', 0) else ''
NTX = 'nt ' if OPT('NTX', 0) else ''
NTD = 'nt' if OPT('NTD', 0) else ''
MAPB = OPT("MAPB", 1)
PDEPTH = 4


def gen_k1(a):
    name = "fnet_k1_kernel"
    a.raw(f".globl {name}")
    a.raw(".p2align 8")
    a.raw(f".type {name},@function")
    a.label(name)
    sA, sB, sWS, sE = 16, 20, 24, 28
    sW = 36
    sT0, sT1, sT2, sT3 = 37, 38, 39, 40
    sH, sRB, sJ = 41, 42, 43
    sWk, sWm = 44, 45
    sRot = 46
    sBase = 47
    sOff = 48
    sOff2 = 49
    sSlot = 50
    sIt = 51
    sF = 52

    vLane = 1
    vT = 2
    vCb0 = 6
    vXb0 = 7
    vCb = 9
    vXb = 10
    vTr = 12
    vO = 12
    FR = 28
    ACC = 116

    def cfrag(s, n):
        return FR + s * 44 + n * 4

    def xfrag(s, m):
        return FR + s * 44 + 16 + m * 4

    def acc(m, n):
        return ACC + (m * 4 + n) * 4

    st = Stamps(a, 64, 0)
    a("s_cmp_ge_u32 s2, 256")
    a("s_cbranch_scc1 L_k1_done")
    st()
    a("s_load_dwordx8 s[4:11], s[0:1], 0")
    a("s_load_dwordx2 s[12:13], s[0:1], 32")
    a("s_load_dwordx4 s[56:59], s[0:1], 48")
    a(f"v_lshrrev_b32 v{vT}, 6, v0")
    a(f"v_and_b32 v{vLane}, 63, v0")
    a(f"v_readfirstlane_b32 s{sW}, v{vT}")
    if OPT("TICKET1", 1):
        a(f"v_mov_b32 v{vT+1}, {NSLOT*SLOT}")
        a(f"s_cmp_lg_u32 s{sW}, 4")
        a("s_cbranch_scc1 L_k1_wait")
        a("s_waitcnt lgkmcnt(0)")
        ticket(a, "k1", 56, 60, 61, 62, 54, 53)
        a(f"v_mov_b32 v{vT+2}, s53")
        a(f"ds_write_b32 v{vT+1}, v{vT+2}")
        a("s_waitcnt lgkmcnt(0)")
        a.label("L_k1_wait")
        a("s_barrier")
        a(f"ds_read_b32 v{vT+2}, v{vT+1}")
        a("s_waitcnt lgkmcnt(0)")
        a(f"v_readfirstlane_b32 s2, v{vT+2}")
        a("s_nop 3")
        a("s_cmp_ge_u32 s2, 256")
        a("s_cbranch_scc1 L_k1_done")
    a(f"s_and_b32 s{sT0}, s2, 7")
    a(f"s_lshr_b32 s{sT1}, s2, 3")
    a(f"s_and_b32 s{sJ}, s{sT1}, 3")
    if MAPB:
        a(f"s_lshr_b32 s{sH}, s{sT1}, 2")
        a(f"s_and_b32 s{sH}, s{sH}, 1")
        a(f"s_lshr_b32 s{sRot}, s{sT1}, 3")
        a(f"s_lshl_b32 s{sRB}, s{sRot}, 3")
        a(f"s_add_u32 s{sRB}, s{sRB}, s{sT0}")
        if OPT("ROT", 2) == 2:
            a(f"s_add_u32 s{sRot}, s{sRot}, s{sJ}")
            a(f"s_lshl_b32 s{sRot}, s{sRot}, 2")
        elif OPT("ROT", 2) == 5:
            a(f"s_lshl_b32 s{sRot}, s{sRot}, 2")
            a(f"s_lshr_b32 s{sT2}, s{sJ}, 1")
            a(f"s_lshl_b32 s{sT2}, s{sT2}, 3")
            a(f"s_add_u32 s{sRot}, s{sRot}, s{sT2}")
        elif OPT("ROT", 2) == 1:
            a(f"s_lshl_b32 s{sRot}, s{sRot}, 2")
        else:
            a(f"s_mov_b32 s{sRot}, 0")
    else:
        a(f"s_and_b32 s{sH}, s{sT0}, 1")
        a(f"s_lshr_b32 s{sRB}, s{sT0}, 1")
        a(f"s_lshr_b32 s{sRot}, s{sT1}, 2")
        a(f"s_lshl_b32 s{sT2}, s{sRot}, 2")
        a(f"s_add_u32 s{sRB}, s{sRB}, s{sT2}")
        a(f"s_lshl_b32 s{sRot}, s{sRot}, 1")
        if OPT("ROT", 2) == 2:
            a(f"s_lshl_b32 s{sT2}, s{sJ}, 2")
            a(f"s_add_u32 s{sRot}, s{sRot}, s{sT2}")
        if OPT("ROT", 2) == 5:
            a(f"s_lshr_b32 s{sT2}, s{sJ}, 1")
            a(f"s_lshl_b32 s{sT2}, s{sT2}, 3")
            a(f"s_add_u32 s{sRot}, s{sRot}, s{sT2}")
        if OPT("ROT", 2) == 0:
            a(f"s_mov_b32 s{sRot}, 0")
    a(f"s_and_b32 s{sRot}, s{sRot}, 15")
    a(f"s_cmp_eq_u32 s{sW}, 4")
    a("s_cbranch_scc1 L_k1_ldc")
    a(f"s_cmp_eq_u32 s{sW}, 5")
    a("s_cbranch_scc1 L_k1_ldx")

    a(f"s_and_b32 s{sWk}, s{sW}, 1")
    a(f"s_lshr_b32 s{sWm}, s{sW}, 1")
    a(f"v_and_b32 v{vT}, 15, v{vLane}")
    a(f"v_lshrrev_b32 v{vT+1}, 4, v{vLane}")
    a(f"s_lshl_b32 s{sT0}, s{sWk}, 2")
    a(f"v_add_u32 v{vT+2}, s{sT0}, v{vT+1}")
    a(f"v_lshrrev_b32 v{vT+3}, 1, v{vT}")
    a(f"v_xor_b32 v{vT+2}, v{vT+2}, v{vT+3}")
    a(f"v_lshlrev_b32 v{vT+2}, 4, v{vT+2}")
    a(f"v_lshl_add_u32 v{vCb0}, v{vT}, 7, v{vT+2}")
    a(f"s_lshl_b32 s{sT0}, s{sWm}, 12")
    a(f"v_add_u32 v{vCb0}, s{sT0}, v{vCb0}")
    a(f"v_lshlrev_b32 v{vT+2}, 3, v{vT+1}")
    a(f"v_lshrrev_b32 v{vT+3}, 2, v{vT}")
    a(f"v_add_u32 v{vT+2}, v{vT+2}, v{vT+3}")
    a(f"s_lshl_b32 s{sT0}, s{sWk}, 5")
    a(f"v_add_u32 v{vT+2}, s{sT0}, v{vT+2}")
    a(f"v_and_b32 v{vT+3}, 1, v{vT+1}")
    a(f"v_lshlrev_b32 v{vT+3}, 2, v{vT+3}")
    a(f"v_add_u32 v{vXb0}, v{vT+2}, v{vT+3}")
    a(f"v_xor_b32 v{vT+3}, 4, v{vT+3}")
    a(f"v_add_u32 v{vXb0+1}, v{vT+2}, v{vT+3}")
    a(f"v_and_b32 v{vT}, 3, v{vT}")
    a(f"v_lshlrev_b32 v{vT}, 3, v{vT}")
    a(f"v_add_u32 v{vT}, {XOFF}, v{vT}")
    a(f"v_mov_b32 v{vT+1}, 224")
    a(f"v_mad_u32_u24 v{vXb0}, v{vXb0}, v{vT+1}, v{vT}")
    a(f"v_mad_u32_u24 v{vXb0+1}, v{vXb0+1}, v{vT+1}, v{vT}")
    for r in range(112):
        a(f"v_mov_b32 v{ACC+r}, 0")
    a("s_waitcnt lgkmcnt(0)")
    srd(a, sWS, 58, WS_BYTES)

    def frag_reads(s, vc, vx):
        ins = []

        def xr(m):
            return [f"ds_read_b64_tr_b16 v[{xfrag(s,m)}:{xfrag(s,m)+1}], v{vx} offset:{m*32}",
                    f"ds_read_b64_tr_b16 v[{xfrag(s,m)+2}:{xfrag(s,m)+3}], v{vx+1} offset:{m*32}"]
        ins += xr(0)
        for n in range(4):
            pq, tl = n >> 1, n & 1
            ins.append(f"ds_read_b128 v[{cfrag(s,n)}:{cfrag(s,n)+3}], v{vc} offset:{pq*8192+tl*2048}")
        for m in range(1, 7):
            ins += xr(m)
        return ins

    def mfmas(s):
        return [f"v_mfma_f32_16x16x32_bf16 v[{acc(m,n)}:{acc(m,n)+3}], v[{xfrag(s,m)}:{xfrag(s,m)+3}], "
                f"v[{cfrag(s,n)}:{cfrag(s,n)+3}], v[{acc(m,n)}:{acc(m,n)+3}]"
                for m in range(7) for n in range(4)]

    def trace():
        if OPT("TRACE"):
            a("s_memtime s[96:97]")
            a("s_waitcnt lgkmcnt(0)")
            a(f"s_mov_b32 m0, s98")
            a("s_add_u32 s98, s98, 1")
            a(f"v_writelane_b32 v{vTr}, s96, m0")

    a(f"s_mov_b32 s{sSlot}, 0")
    a(f"s_mov_b32 s{sIt}, 0")
    if OPT("TRACE"):
        a("s_mov_b32 s98, 5")
    st()
    a("s_barrier")
    st()
    for i in frag_reads(0, vCb0, vXb0):
        a(i)
    nxt = [[f"s_add_u32 s{sSlot}, s{sSlot}, {SLOT}",
            f"s_cmp_eq_u32 s{sSlot}, {SLOT*NSLOT}",
            f"s_cselect_b32 s{sSlot}, 0, s{sSlot}"],
           f"v_add_u32 v{vCb}, s{sSlot}, v{vCb0}",
           f"v_add_u32 v{vXb}, s{sSlot}, v{vXb0}",
           f"v_add_u32 v{vXb+1}, s{sSlot}, v{vXb0+1}"]
    for i in flat(nxt):
        a(i)
    a.label("L_k1_loop")
    for s in range(2):
        a("s_waitcnt lgkmcnt(0)")
        a("s_barrier")
        trace()
        fill = frag_reads(1 - s, vCb, vXb) + nxt
        if s == 1:
            fill += [[f"s_add_u32 s{sIt}, s{sIt}, 1", f"s_cmp_lt_u32 s{sIt}, {NSTAGE//2}"]]
        for i in interleave(mfmas(s), fill, per=OPT("PER", 1)):
            a(i)
    a("s_cbranch_scc1 L_k1_loop")
    st()
    a("s_waitcnt lgkmcnt(0)")
    a("s_barrier")
    a(f"s_mul_i32 s{sT0}, s{sW}, 14336")
    a(f"s_xor_b32 s{sT1}, s{sW}, 1")
    a(f"s_mul_i32 s{sT1}, s{sT1}, 14336")
    a(f"v_lshlrev_b32 v{vT}, 4, v{vLane}")
    a(f"v_add_u32 v{vT+1}, s{sT1}, v{vT}")
    a(f"v_add_u32 v{vT}, s{sT0}, v{vT}")
    a(f"s_cmp_eq_u32 s{sWk}, 0")
    a("s_cbranch_scc0 L_k1_epi1")
    for wk in range(2):
        if wk == 1:
            a.label("L_k1_epi1")
        give, keep = 1 - wk, wk
        idx = 0
        for m in range(7):
            for pq in range(2):
                r = acc(m, pq * 2 + give)
                a(f"ds_write_b128 v{vT}, v[{r}:{r+3}] offset:{idx*1024}")
                idx += 1
        a("s_waitcnt lgkmcnt(0)")
        a("s_barrier")
        idx = 0
        for m in range(7):
            for pq in range(2):
                r = FR + idx * 4
                a(f"ds_read_b128 v[{r}:{r+3}], v{vT+1} offset:{idx*1024}")
                idx += 1
        a(f"s_lshl_b32 s{sT0}, s{sH}, 7")
        a(f"s_lshl_b32 s{sT1}, s{sRB}, 2")
        a(f"s_add_u32 s{sT0}, s{sT0}, s{sT1}")
        a(f"s_lshl_b32 s{sT1}, s{sWm}, 1")
        a(f"s_add_u32 s{sT0}, s{sT0}, s{sT1}")
        a(f"s_add_u32 s{sT0}, s{sT0}, {keep}")
        a(f"s_mul_i32 s{sT0}, s{sT0}, 28")
        a(f"s_mul_i32 s{sT1}, s{sJ}, 7")
        a(f"s_add_u32 s{sT0}, s{sT0}, s{sT1}")
        a(f"s_lshl_b32 s{sT0}, s{sT0}, 10")
        a(f"v_lshlrev_b32 v{vT+2}, 4, v{vLane}")
        a(f"v_add_u32 v{vT+3}, 4096, v{vT+2}")
        idx = 0
        for m in range(7):
            a(f"s_waitcnt lgkmcnt({12-2*m})")
            for pq in range(2):
                r = FR + idx * 4
                ac = acc(m, pq * 2 + keep)
                for k in range(4):
                    a(f"v_add_f32 v{ac+k}, v{ac+k}, v{r+k}")
                idx += 1
            p = acc(m, keep)
            q = acc(m, 2 + keep)
            o = FR + 56 + m * 4
            a(f"v_cvt_pk_bf16_f32 v{o}, v{p}, v{p+1}")
            a(f"v_cvt_pk_bf16_f32 v{o+1}, v{p+2}, v{p+3}")
            a(f"v_cvt_pk_bf16_f32 v{o+2}, v{q}, v{q+1}")
            a(f"v_cvt_pk_bf16_f32 v{o+3}, v{q+2}, v{q+3}")
            vo = vT + 2 if m < 4 else vT + 3
            a(f"buffer_store_dwordx4 v[{o}:{o+3}], v{vo}, s[{sWS}:{sWS+3}], s{sT0} offen offset:{(m%4)*1024}")
        if wk == 0:
            a("s_branch L_k1_epi2")
    a.label("L_k1_epi2")
    st()
    if OPT("STAMP"):
        a("s_waitcnt vmcnt(0)")
    st.dump(sWS, sT0, vT, sW)
    if OPT("TRACE"):
        a(f"v_writelane_b32 v{vTr}, s64, 0")
        a(f"s_lshl_b32 s{sT0}, s2, 2")
        a(f"s_add_u32 s{sT0}, s{sT0}, s{sW}")
        a(f"s_lshl_b32 s{sT0}, s{sT0}, 8")
        a(f"s_add_u32 s{sT0}, s{sT0}, {STAMP_OFF + 3 * (1 << 20)}")
        a(f"v_lshlrev_b32 v{vT}, 2, v{vLane}")
        a(f"buffer_store_dword v{vTr}, v{vT}, s[{sWS}:{sWS+3}], s{sT0} offen")
    a("s_endpgm")

    def loader_loop(tag, n, issue, stepbytes, pre_tail=None, extra=0):
        adv = [f"s_add_u32 s{sRot}, s{sRot}, 1",
               f"s_and_b32 s{sRot}, s{sRot}, 15",
               f"s_mul_i32 s{sOff}, s{sRot}, {stepbytes}",
               f"s_add_u32 s{sOff}, s{sOff}, s{sBase}",
               f"s_add_u32 s{sSlot}, s{sSlot}, {SLOT}",
               f"s_cmp_eq_u32 s{sSlot}, {SLOT*NSLOT}",
               f"s_cselect_b32 s{sSlot}, 0, s{sSlot}"]
        a(f"s_mul_i32 s{sOff}, s{sRot}, {stepbytes}")
        a(f"s_add_u32 s{sOff}, s{sOff}, s{sBase}")
        a(f"s_mov_b32 s{sSlot}, 0")
        a(f"s_mov_b32 s{sIt}, 0")
        a.label(f"L_{tag}_loop")
        a(f"s_cmp_lt_u32 s{sIt}, {PDEPTH}")
        a(f"s_cbranch_scc1 L_{tag}_issue")
        a(f"s_waitcnt vmcnt({(PDEPTH-1)*n})")
        a("s_barrier")
        a.label(f"L_{tag}_issue")
        for i in issue():
            a(i)
        for i in adv:
            a(i)
        a(f"s_add_u32 s{sIt}, s{sIt}, 1")
        a(f"s_cmp_lt_u32 s{sIt}, {NSTAGE}")
        a(f"s_cbranch_scc1 L_{tag}_loop")
        if pre_tail:
            pre_tail()
        for k in range(PDEPTH):
            a(f"s_waitcnt vmcnt({(PDEPTH-1-k)*n+extra})")
            a("s_barrier")
        a("s_barrier")

    a.label("L_k1_ldc")
    a(f"v_lshrrev_b32 v{vT}, 3, v{vLane}")
    a(f"v_lshlrev_b32 v{vT}, 12, v{vT}")
    a(f"v_and_b32 v{vT+1}, 7, v{vLane}")
    a(f"v_lshrrev_b32 v{vT+2}, 4, v{vLane}")
    a(f"v_xor_b32 v{vT+1}, v{vT+1}, v{vT+2}")
    a(f"v_lshl_add_u32 v{vO}, v{vT+1}, 4, v{vT}")
    a(f"v_xor_b32 v{vT+1}, 4, v{vT+1}")
    a(f"v_lshl_add_u32 v{vO+1}, v{vT+1}, 4, v{vT}")
    a(f"v_add_u32 v{vO+1}, {8*4096-1024}, v{vO+1}")
    a(f"v_add_u32 v{vO+2}, {16*4096-2048}, v{vO}")
    a(f"v_add_u32 v{vO+3}, {16*4096-2048}, v{vO+1}")
    a(f"s_lshl_b32 s{sBase}, s{sRB}, 18")
    a(f"s_lshl_b32 s{sT0}, s{sH}, 11")
    a(f"s_add_u32 s{sBase}, s{sBase}, s{sT0}")
    a("s_waitcnt lgkmcnt(0)")
    srd(a, sA, 6, C_BYTES)
    srd(a, sB, 8, C_BYTES)

    def issue_c():
        ins = [f"s_add_u32 s{sOff2}, s{sOff}, {32*4096}"]
        for grp in range(4):
            s_ = sA if grp < 2 else sB
            o_ = sOff if grp % 2 == 0 else sOff2
            ins.append(f"s_add_u32 m0, s{sSlot}, {grp*4096}")
            ins.append("s_nop 0")
            for q in range(4):
                ins.append(f"buffer_load_dwordx4 v{vO+q}, s[{s_}:{s_+3}], s{o_} offen offset:{q*1024} {NTC}lds")
        return ins
    loader_loop("k1c", 16, issue_c, 128)
    a("s_endpgm")

    a.label("L_k1_ldx")
    a(f"s_mov_b32 s{sT1}, 4682")
    for q in range(14):
        if q:
            a(f"v_add_u32 v{vT}, {64*q}, v{vLane}")
            src = vT
        else:
            src = vLane
        a(f"v_mul_lo_u32 v{vT+1}, v{src}, s{sT1}")
        a(f"v_lshrrev_b32 v{vT+1}, 16, v{vT+1}")
        a(f"v_mul_u32_u24 v{vT+2}, 14, v{vT+1}")
        a(f"v_sub_u32 v{vT+2}, v{src}, v{vT+2}")
        a(f"v_lshrrev_b32 v{vT+3}, 1, v{vT+1}")
        a(f"v_and_b32 v{vT+3}, 4, v{vT+3}")
        a(f"v_xor_b32 v{vT+1}, v{vT+1}, v{vT+3}")
        a(f"v_mul_u32_u24 v{vT+1}, 896, v{vT+1}")
        a(f"v_lshl_add_u32 v{vO+q}, v{vT+2}, 4, v{vT+1}")
        if q % 4:
            a(f"v_subrev_u32 v{vO+q}, {1024*(q%4)}, v{vO+q}")
    a(f"s_mul_i32 s{sBase}, s{sH}, {1024*896}")
    a(f"s_mul_i32 s{sT0}, s{sJ}, 224")
    a(f"s_add_u32 s{sBase}, s{sBase}, s{sT0}")
    a("s_waitcnt lgkmcnt(0)")
    srd(a, sA, 4, X_BYTES)
    srd(a, sB, 10, D_BYTES)
    srd(a, sE, 12, D_BYTES)
    srd(a, sWS, 58, WS_BYTES)

    def issue_x():
        ins = []
        for q in range(14):
            if q % 4 == 0:
                ins.append(f"s_add_u32 m0, s{sSlot}, {XOFF + q*1024}")
                ins.append("s_nop 0")
            ins.append(f"buffer_load_dwordx4 v{vO+q}, s[{sA}:{sA+3}], s{sOff} offen offset:{(q%4)*1024} {NTX}lds")
        return ins
    a(f"v_and_b32 v{vT}, 15, v{vLane}")
    a(f"v_mul_u32_u24 v{vT}, 896, v{vT}")
    a(f"v_lshrrev_b32 v{vT+1}, 4, v{vLane}")
    a(f"v_lshl_add_u32 v{vT}, v{vT+1}, 3, v{vT}")
    a(f"v_lshlrev_b32 v{vT+1}, 4, v{vLane}")
    a(f"s_mul_i32 s{sT0}, s2, 9363")
    a(f"s_lshr_b32 s{sT0}, s{sT0}, 16")
    for w in range(256):
        assert (w * 9363) >> 16 == w // 7
    a(f"s_mul_i32 s{sT1}, s{sT0}, 7")
    a(f"s_sub_u32 s{sT1}, s2, s{sT1}")
    a(f"s_mul_i32 s{sT0}, s{sT0}, {16*896}")
    a(f"s_lshl_b32 s{sT1}, s{sT1}, 7")
    a(f"s_add_u32 s{sT0}, s{sT0}, s{sT1}")

    def dprep_loads():
        for i in range(4):
            r = FR + i * 4
            a(f"buffer_load_dwordx2 v[{r}:{r+1}], v{vT}, s[{sB}:{sB+3}], s{sT0} offen offset:{i*32} {NTD}")
            a(f"buffer_load_dwordx2 v[{r+2}:{r+3}], v{vT}, s[{sE}:{sE+3}], s{sT0} offen offset:{i*32} {NTD}")

    def dprep_stores():
        a(f"s_lshl_b32 s{sT0}, s2, 12")
        a(f"s_add_u32 s{sT0}, s{sT0}, {DOFF}")
        for i in range(4):
            r = FR + i * 4
            a(f"v_xor_b32 v{r+2}, 0x80008000, v{r+2}")
            a(f"v_xor_b32 v{r+3}, 0x80008000, v{r+3}")
            a(f"buffer_store_dwordx4 v[{r}:{r+3}], v{vT+1}, s[{sWS}:{sWS+3}], s{sT0} offen offset:{i*1024}")
    dprep_loads()
    loader_loop("k1x", 14, issue_x, 64 * 896, dprep_stores, 4)
    a.label("L_k1_done")
    a("s_endpgm")
    return name, 228, 0, NSLOT * SLOT + 256, 384


def main():
    a = Asm()
    a.raw('.amdgcn_target "amdgcn-amd-amdhsa--gfx950"')
    a.raw(".text")
    ks = [gen_k1(a), G.gen_k2(a)]
    seq = os.environ.get("SEQ", "12")
    if "E" in seq:
        a.raw(".globl fnet_e_kernel\n.p2align 8\n.type fnet_e_kernel,@function\nfnet_e_kernel:\n    s_endpgm")
        ks.append(("fnet_e_kernel", 8, 0, 0, 64))
    idx = {"1": 0, "2": 1, "E": 2}
    if "S" in seq:
        a.raw(".globl fnet_s_kernel\n.p2align 8\n.type fnet_s_kernel,@function\nfnet_s_kernel:")
        a("s_mov_b32 s4, 0")
        for r in range(12):
            a(f"v_mov_b32 v{r}, 0")
        a.label("L_s_loop")
        for r in range(8):
            a("v_mfma_f32_16x16x32_bf16 v[0:3], v[4:7], v[8:11], v[0:3]")
        a("s_add_u32 s4, s4, 1")
        a(f"s_cmp_lt_u32 s4, {OPT('SITER', 200)}")
        a("s_cbranch_scc1 L_s_loop")
        a("s_endpgm")
        idx["S"] = len(ks)
        ks.append(("fnet_s_kernel", 16, 0, 0, 256))
    if "F" in seq:
        a.raw(".globl fnet_f_kernel\n.p2align 8\n.type fnet_f_kernel,@function\nfnet_f_kernel:\n    s_endpgm")
        idx["F"] = len(ks)
        ks.append(("fnet_f_kernel", 228, 0, 153600, 384))
    out = HEADER
    for c in seq:
        name, nv, na, lds, blk = ks[idx[c]]
        out += f"; @launch kernel={name} grid=({1 if c == 'E' else 256},1,1) block=({blk},1,1) lds={lds}\n"
    out += a.text()
    out += '.section .rodata,"a"\n'
    for name, nv, na, lds, blk in ks:
        out += G.descriptor(name, nv, na)
    path = sys.argv[1] if len(sys.argv) > 1 else "standalone__spectral_fnet__prompt.s"
    open(path, "w").write(out)


if __name__ == "__main__":
    main()
```

```python
import sys, os, math
import gen as G
from gen import ticket, OPT, Asm, Stamps, srd, interleave, flat, X_BYTES, C_BYTES, D_BYTES, DOFF, WS_BYTES, STAMP_OFF, HEADER

NSLOT, SLOT, XOFF, NSTAGE = 5, 30720, 16384, 16
NTC = 'nt ' if OPT('NTC', 0) else ''
NTX = 'nt ' if OPT('NTX', 0) else ''
NTD = 'nt' if OPT('NTD', 0) else ''
MAPB = OPT("MAPB", 1)
PDEPTH = 4


def gen_k1(a):
    name = "fnet_k1_kernel"
    a.raw(f".globl {name}")
    a.raw(".p2align 8")
    a.raw(f".type {name},@function")
    a.label(name)
    sA, sB, sWS, sE = 16, 20, 24, 28
    sW = 36
    sT0, sT1, sT2, sT3 = 37, 38, 39, 40
    sH, sRB, sJ = 41, 42, 43
    sWk, sWm = 44, 45
    sRot = 46
    sBase = 47
    sOff = 48
    sOff2 = 49
    sSlot = 50
    sIt = 51
    sF = 52

    vLane = 1
    vT = 2
    vCb0 = 6
    vXb0 = 7
    vCb = 9
    vXb = 10
    vTr = 12
    vO = 12
    FR = 28
    ACC = 116

    def cfrag(s, n):
        return FR + s * 44 + n * 4

    def xfrag(s, m):
        return FR + s * 44 + 16 + m * 4

    def acc(m, n):
        return ACC + (m * 4 + n) * 4

    st = Stamps(a, 64, 0)
    a("s_cmp_ge_u32 s2, 256")
    a("s_cbranch_scc1 L_k1_done")
    st()
    a("s_load_dwordx8 s[4:11], s[0:1], 0")
    a("s_load_dwordx2 s[12:13], s[0:1], 32")
    a("s_load_dwordx4 s[56:59], s[0:1], 48")
    a(f"v_lshrrev_b32 v{vT}, 6, v0")
    a(f"v_and_b32 v{vLane}, 63, v0")
    a(f"v_readfirstlane_b32 s{sW}, v{vT}")
    if OPT("TICKET1", 1):
        a(f"v_mov_b32 v{vT+1}, {NSLOT*SLOT}")
        a(f"s_cmp_lg_u32 s{sW}, 4")
        a("s_cbranch_scc1 L_k1_wait")
        a("s_waitcnt lgkmcnt(0)")
        ticket(a, "k1", 56, 60, 61, 62, 54, 53)
        a(f"v_mov_b32 v{vT+2}, s53")
        a(f"ds_write_b32 v{vT+1}, v{vT+2}")
        a("s_waitcnt lgkmcnt(0)")
        a.label("L_k1_wait")
        a("s_barrier")
        a(f"ds_read_b32 v{vT+2}, v{vT+1}")
        a("s_waitcnt lgkmcnt(0)")
        a(f"v_readfirstlane_b32 s2, v{vT+2}")
        a("s_nop 3")
        a("s_cmp_ge_u32 s2, 256")
        a("s_cbranch_scc1 L_k1_done")
    a(f"s_and_b32 s{sT0}, s2, 7")
    a(f"s_lshr_b32 s{sT1}, s2, 3")
    a(f"s_and_b32 s{sJ}, s{sT1}, 3")
    if MAPB:
        a(f"s_lshr_b32 s{sH}, s{sT1}, 2")
        a(f"s_and_b32 s{sH}, s{sH}, 1")
        a(f"s_lshr_b32 s{sRot}, s{sT1}, 3")
        a(f"s_lshl_b32 s{sRB}, s{sRot}, 3")
        a(f"s_add_u32 s{sRB}, s{sRB}, s{sT0}")
        if OPT("ROT", 2) == 2:
            a(f"s_add_u32 s{sRot}, s{sRot}, s{sJ}")
            a(f"s_lshl_b32 s{sRot}, s{sRot}, 2")
        elif OPT("ROT", 2) == 5:
            a(f"s_lshl_b32 s{sRot}, s{sRot}, 2")
            a(f"s_lshr_b32 s{sT2}, s{sJ}, 1")
            a(f"s_lshl_b32 s{sT2}, s{sT2}, 3")
            a(f"s_add_u32 s{sRot}, s{sRot}, s{sT2}")
        elif OPT("ROT", 2) == 1:
            a(f"s_lshl_b32 s{sRot}, s{sRot}, 2")
        else:
            a(f"s_mov_b32 s{sRot}, 0")
    else:
        a(f"s_and_b32 s{sH}, s{sT0}, 1")
        a(f"s_lshr_b32 s{sRB}, s{sT0}, 1")
        a(f"s_lshr_b32 s{sRot}, s{sT1}, 2")
        a(f"s_lshl_b32 s{sT2}, s{sRot}, 2")
        a(f"s_add_u32 s{sRB}, s{sRB}, s{sT2}")
        a(f"s_lshl_b32 s{sRot}, s{sRot}, 1")
        if OPT("ROT", 2) == 2:
            a(f"s_lshl_b32 s{sT2}, s{sJ}, 2")
            a(f"s_add_u32 s{sRot}, s{sRot}, s{sT2}")
        if OPT("ROT", 2) == 5:
            a(f"s_lshr_b32 s{sT2}, s{sJ}, 1")
            a(f"s_lshl_b32 s{sT2}, s{sT2}, 3")
            a(f"s_add_u32 s{sRot}, s{sRot}, s{sT2}")
        if OPT("ROT", 2) == 0:
            a(f"s_mov_b32 s{sRot}, 0")
    a(f"s_and_b32 s{sRot}, s{sRot}, 15")
    a(f"s_cmp_eq_u32 s{sW}, 4")
    a("s_cbranch_scc1 L_k1_ldc")
    a(f"s_cmp_eq_u32 s{sW}, 5")
    a("s_cbranch_scc1 L_k1_ldx")

    a(f"s_and_b32 s{sWk}, s{sW}, 1")
    a(f"s_lshr_b32 s{sWm}, s{sW}, 1")
    a(f"v_and_b32 v{vT}, 15, v{vLane}")
    a(f"v_lshrrev_b32 v{vT+1}, 4, v{vLane}")
    a(f"s_lshl_b32 s{sT0}, s{sWk}, 2")
    a(f"v_add_u32 v{vT+2}, s{sT0}, v{vT+1}")
    a(f"v_lshrrev_b32 v{vT+3}, 1, v{vT}")
    a(f"v_xor_b32 v{vT+2}, v{vT+2}, v{vT+3}")
    a(f"v_lshlrev_b32 v{vT+2}, 4, v{vT+2}")
    a(f"v_lshl_add_u32 v{vCb0}, v{vT}, 7, v{vT+2}")
    a(f"s_lshl_b32 s{sT0}, s{sWm}, 12")
    a(f"v_add_u32 v{vCb0}, s{sT0}, v{vCb0}")
    a(f"v_lshlrev_b32 v{vT+2}, 3, v{vT+1}")
    a(f"v_lshrrev_b32 v{vT+3}, 2, v{vT}")
    a(f"v_add_u32 v{vT+2}, v{vT+2}, v{vT+3}")
    a(f"s_lshl_b32 s{sT0}, s{sWk}, 5")
    a(f"v_add_u32 v{vT+2}, s{sT0}, v{vT+2}")
    a(f"v_and_b32 v{vT+3}, 1, v{vT+1}")
    a(f"v_lshlrev_b32 v{vT+3}, 2, v{vT+3}")
    a(f"v_add_u32 v{vXb0}, v{vT+2}, v{vT+3}")
    a(f"v_xor_b32 v{vT+3}, 4, v{vT+3}")
    a(f"v_add_u32 v{vXb0+1}, v{vT+2}, v{vT+3}")
    a(f"v_and_b32 v{vT}, 3, v{vT}")
    a(f"v_lshlrev_b32 v{vT}, 3, v{vT}")
    a(f"v_add_u32 v{vT}, {XOFF}, v{vT}")
    a(f"v_mov_b32 v{vT+1}, 224")
    a(f"v_mad_u32_u24 v{vXb0}, v{vXb0}, v{vT+1}, v{vT}")
    a(f"v_mad_u32_u24 v{vXb0+1}, v{vXb0+1}, v{vT+1}, v{vT}")
    for r in range(112):
        a(f"v_mov_b32 v{ACC+r}, 0")
    a("s_waitcnt lgkmcnt(0)")
    srd(a, sWS, 58, WS_BYTES)

    def frag_reads(s, vc, vx):
        ins = []

        def xr(m):
            return [f"ds_read_b64_tr_b16 v[{xfrag(s,m)}:{xfrag(s,m)+1}], v{vx} offset:{m*32}",
                    f"ds_read_b64_tr_b16 v[{xfrag(s,m)+2}:{xfrag(s,m)+3}], v{vx+1} offset:{m*32}"]
        ins += xr(0)
        for n in range(4):
            pq, tl = n >> 1, n & 1
            ins.append(f"ds_read_b128 v[{cfrag(s,n)}:{cfrag(s,n)+3}], v{vc} offset:{pq*8192+tl*2048}")
        for m in range(1, 7):
            ins += xr(m)
        return ins

    def mfmas(s):
        return [f"v_mfma_f32_16x16x32_bf16 v[{acc(m,n)}:{acc(m,n)+3}], v[{xfrag(s,m)}:{xfrag(s,m)+3}], "
                f"v[{cfrag(s,n)}:{cfrag(s,n)+3}], v[{acc(m,n)}:{acc(m,n)+3}]"
                for m in range(7) for n in range(4)]

    def trace():
        if OPT("TRACE"):
            a("s_memtime s[96:97]")
            a("s_waitcnt lgkmcnt(0)")
            a(f"s_mov_b32 m0, s98")
            a("s_add_u32 s98, s98, 1")
            a(f"v_writelane_b32 v{vTr}, s96, m0")

    a(f"s_mov_b32 s{sSlot}, 0")
    a(f"s_mov_b32 s{sIt}, 0")
    if OPT("TRACE"):
        a("s_mov_b32 s98, 5")
    st()
    a("s_barrier")
    st()
    for i in frag_reads(0, vCb0, vXb0):
        a(i)
    nxt = [[f"s_add_u32 s{sSlot}, s{sSlot}, {SLOT}",
            f"s_cmp_eq_u32 s{sSlot}, {SLOT*NSLOT}",
            f"s_cselect_b32 s{sSlot}, 0, s{sSlot}"],
           f"v_add_u32 v{vCb}, s{sSlot}, v{vCb0}",
           f"v_add_u32 v{vXb}, s{sSlot}, v{vXb0}",
           f"v_add_u32 v{vXb+1}, s{sSlot}, v{vXb0+1}"]
    for i in flat(nxt):
        a(i)
    a.label("L_k1_loop")
    for s in range(2):
        a("s_waitcnt lgkmcnt(0)")
        a("s_barrier")
        trace()
        fill = frag_reads(1 - s, vCb, vXb) + nxt
        if s == 1:
            fill += [[f"s_add_u32 s{sIt}, s{sIt}, 1", f"s_cmp_lt_u32 s{sIt}, {NSTAGE//2}"]]
        for i in interleave(mfmas(s), fill, per=OPT("PER", 1)):
            a(i)
    a("s_cbranch_scc1 L_k1_loop")
    st()
    a("s_waitcnt lgkmcnt(0)")
    a("s_barrier")
    a(f"s_mul_i32 s{sT0}, s{sW}, 14336")
    a(f"s_xor_b32 s{sT1}, s{sW}, 1")
    a(f"s_mul_i32 s{sT1}, s{sT1}, 14336")
    a(f"v_lshlrev_b32 v{vT}, 4, v{vLane}")
    a(f"v_add_u32 v{vT+1}, s{sT1}, v{vT}")
    a(f"v_add_u32 v{vT}, s{sT0}, v{vT}")
    a(f"s_cmp_eq_u32 s{sWk}, 0")
    a("s_cbranch_scc0 L_k1_epi1")
    for wk in range(2):
        if wk == 1:
            a.label("L_k1_epi1")
        give, keep = 1 - wk, wk
        idx = 0
        for m in range(7):
            for pq in range(2):
                r = acc(m, pq * 2 + give)
                a(f"ds_write_b128 v{vT}, v[{r}:{r+3}] offset:{idx*1024}")
                idx += 1
        a("s_waitcnt lgkmcnt(0)")
        a("s_barrier")
        idx = 0
        for m in range(7):
            for pq in range(2):
                r = FR + idx * 4
                a(f"ds_read_b128 v[{r}:{r+3}], v{vT+1} offset:{idx*1024}")
                idx += 1
        a(f"s_lshl_b32 s{sT0}, s{sH}, 7")
        a(f"s_lshl_b32 s{sT1}, s{sRB}, 2")
        a(f"s_add_u32 s{sT0}, s{sT0}, s{sT1}")
        a(f"s_lshl_b32 s{sT1}, s{sWm}, 1")
        a(f"s_add_u32 s{sT0}, s{sT0}, s{sT1}")
        a(f"s_add_u32 s{sT0}, s{sT0}, {keep}")
        a(f"s_mul_i32 s{sT0}, s{sT0}, 28")
        a(f"s_mul_i32 s{sT1}, s{sJ}, 7")
        a(f"s_add_u32 s{sT0}, s{sT0}, s{sT1}")
        a(f"s_lshl_b32 s{sT0}, s{sT0}, 10")
        a(f"v_lshlrev_b32 v{vT+2}, 4, v{vLane}")
        a(f"v_add_u32 v{vT+3}, 4096, v{vT+2}")
        idx = 0
        for m in range(7):
            a(f"s_waitcnt lgkmcnt({12-2*m})")
            for pq in range(2):
                r = FR + idx * 4
                ac = acc(m, pq * 2 + keep)
                for k in range(4):
                    a(f"v_add_f32 v{ac+k}, v{ac+k}, v{r+k}")
                idx += 1
            p = acc(m, keep)
            q = acc(m, 2 + keep)
            o = FR + 56 + m * 4
            a(f"v_cvt_pk_bf16_f32 v{o}, v{p}, v{p+1}")
            a(f"v_cvt_pk_bf16_f32 v{o+1}, v{p+2}, v{p+3}")
            a(f"v_cvt_pk_bf16_f32 v{o+2}, v{q}, v{q+1}")
            a(f"v_cvt_pk_bf16_f32 v{o+3}, v{q+2}, v{q+3}")
            vo = vT + 2 if m < 4 else vT + 3
            a(f"buffer_store_dwordx4 v[{o}:{o+3}], v{vo}, s[{sWS}:{sWS+3}], s{sT0} offen offset:{(m%4)*1024}")
        if wk == 0:
            a("s_branch L_k1_epi2")
    a.label("L_k1_epi2")
    st()
    if OPT("STAMP"):
        a("s_waitcnt vmcnt(0)")
    st.dump(sWS, sT0, vT, sW)
    if OPT("TRACE"):
        a(f"v_writelane_b32 v{vTr}, s64, 0")
        a(f"s_lshl_b32 s{sT0}, s2, 2")
        a(f"s_add_u32 s{sT0}, s{sT0}, s{sW}")
        a(f"s_lshl_b32 s{sT0}, s{sT0}, 8")
        a(f"s_add_u32 s{sT0}, s{sT0}, {STAMP_OFF + 3 * (1 << 20)}")
        a(f"v_lshlrev_b32 v{vT}, 2, v{vLane}")
        a(f"buffer_store_dword v{vTr}, v{vT}, s[{sWS}:{sWS+3}], s{sT0} offen")
    a("s_endpgm")

    def loader_loop(tag, n, issue, stepbytes, pre_tail=None, extra=0):
        adv = [f"s_add_u32 s{sRot}, s{sRot}, 1",
               f"s_and_b32 s{sRot}, s{sRot}, 15",
               f"s_mul_i32 s{sOff}, s{sRot}, {stepbytes}",
               f"s_add_u32 s{sOff}, s{sOff}, s{sBase}",
               f"s_add_u32 s{sSlot}, s{sSlot}, {SLOT}",
               f"s_cmp_eq_u32 s{sSlot}, {SLOT*NSLOT}",
               f"s_cselect_b32 s{sSlot}, 0, s{sSlot}"]
        a(f"s_mul_i32 s{sOff}, s{sRot}, {stepbytes}")
        a(f"s_add_u32 s{sOff}, s{sOff}, s{sBase}")
        a(f"s_mov_b32 s{sSlot}, 0")
        a(f"s_mov_b32 s{sIt}, 0")
        a.label(f"L_{tag}_loop")
        a(f"s_cmp_lt_u32 s{sIt}, {PDEPTH}")
        a(f"s_cbranch_scc1 L_{tag}_issue")
        a(f"s_waitcnt vmcnt({(PDEPTH-1)*n})")
        a("s_barrier")
        a.label(f"L_{tag}_issue")
        for i in issue():
            a(i)
        for i in adv:
            a(i)
        a(f"s_add_u32 s{sIt}, s{sIt}, 1")
        a(f"s_cmp_lt_u32 s{sIt}, {NSTAGE}")
        a(f"s_cbranch_scc1 L_{tag}_loop")
        if pre_tail:
            pre_tail()
        for k in range(PDEPTH):
            a(f"s_waitcnt vmcnt({(PDEPTH-1-k)*n+extra})")
            a("s_barrier")
        a("s_barrier")

    a.label("L_k1_ldc")
    a(f"v_lshrrev_b32 v{vT}, 3, v{vLane}")
    a(f"v_lshlrev_b32 v{vT}, 12, v{vT}")
    a(f"v_and_b32 v{vT+1}, 7, v{vLane}")
    a(f"v_lshrrev_b32 v{vT+2}, 4, v{vLane}")
    a(f"v_xor_b32 v{vT+1}, v{vT+1}, v{vT+2}")
    a(f"v_lshl_add_u32 v{vO}, v{vT+1}, 4, v{vT}")
    a(f"v_xor_b32 v{vT+1}, 4, v{vT+1}")
    a(f"v_lshl_add_u32 v{vO+1}, v{vT+1}, 4, v{vT}")
    a(f"v_add_u32 v{vO+1}, {8*4096-1024}, v{vO+1}")
    a(f"v_add_u32 v{vO+2}, {16*4096-2048}, v{vO}")
    a(f"v_add_u32 v{vO+3}, {16*4096-2048}, v{vO+1}")
    a(f"s_lshl_b32 s{sBase}, s{sRB}, 18")
    a(f"s_lshl_b32 s{sT0}, s{sH}, 11")
    a(f"s_add_u32 s{sBase}, s{sBase}, s{sT0}")
    a("s_waitcnt lgkmcnt(0)")
    srd(a, sA, 6, C_BYTES)
    srd(a, sB, 8, C_BYTES)

    def issue_c():
        ins = [f"s_add_u32 s{sOff2}, s{sOff}, {32*4096}"]
        for grp in range(4):
            s_ = sA if grp < 2 else sB
            o_ = sOff if grp % 2 == 0 else sOff2
            ins.append(f"s_add_u32 m0, s{sSlot}, {grp*4096}")
            ins.append("s_nop 0")
            for q in range(4):
                ins.append(f"buffer_load_dwordx4 v{vO+q}, s[{s_}:{s_+3}], s{o_} offen offset:{q*1024} {NTC}lds")
        return ins
    loader_loop("k1c", 16, issue_c, 128)
    a("s_endpgm")

    a.label("L_k1_ldx")
    a(f"s_mov_b32 s{sT1}, 4682")
    for q in range(14):
        if q:
            a(f"v_add_u32 v{vT}, {64*q}, v{vLane}")
            src = vT
        else:
            src = vLane
        a(f"v_mul_lo_u32 v{vT+1}, v{src}, s{sT1}")
        a(f"v_lshrrev_b32 v{vT+1}, 16, v{vT+1}")
        a(f"v_mul_u32_u24 v{vT+2}, 14, v{vT+1}")
        a(f"v_sub_u32 v{vT+2}, v{src}, v{vT+2}")
        a(f"v_lshrrev_b32 v{vT+3}, 1, v{vT+1}")
        a(f"v_and_b32 v{vT+3}, 4, v{vT+3}")
        a(f"v_xor_b32 v{vT+1}, v{vT+1}, v{vT+3}")
        a(f"v_mul_u32_u24 v{vT+1}, 896, v{vT+1}")
        a(f"v_lshl_add_u32 v{vO+q}, v{vT+2}, 4, v{vT+1}")
        if q % 4:
            a(f"v_subrev_u32 v{vO+q}, {1024*(q%4)}, v{vO+q}")
    a(f"s_mul_i32 s{sBase}, s{sH}, {1024*896}")
    a(f"s_mul_i32 s{sT0}, s{sJ}, 224")
    a(f"s_add_u32 s{sBase}, s{sBase}, s{sT0}")
    a("s_waitcnt lgkmcnt(0)")
    srd(a, sA, 4, X_BYTES)
    srd(a, sB, 10, D_BYTES)
    srd(a, sE, 12, D_BYTES)
    srd(a, sWS, 58, WS_BYTES)

    def issue_x():
        ins = []
        for q in range(14):
            if q % 4 == 0:
                ins.append(f"s_add_u32 m0, s{sSlot}, {XOFF + q*1024}")
                ins.append("s_nop 0")
            ins.append(f"buffer_load_dwordx4 v{vO+q}, s[{sA}:{sA+3}], s{sOff} offen offset:{(q%4)*1024} {NTX}lds")
        return ins
    a(f"v_and_b32 v{vT}, 15, v{vLane}")
    a(f"v_mul_u32_u24 v{vT}, 896, v{vT}")
    a(f"v_lshrrev_b32 v{vT+1}, 4, v{vLane}")
    a(f"v_lshl_add_u32 v{vT}, v{vT+1}, 3, v{vT}")
    a(f"v_lshlrev_b32 v{vT+1}, 4, v{vLane}")
    a(f"s_mul_i32 s{sT0}, s2, 9363")
    a(f"s_lshr_b32 s{sT0}, s{sT0}, 16")
    for w in range(256):
        assert (w * 9363) >> 16 == w // 7
    a(f"s_mul_i32 s{sT1}, s{sT0}, 7")
    a(f"s_sub_u32 s{sT1}, s2, s{sT1}")
    a(f"s_mul_i32 s{sT0}, s{sT0}, {16*896}")
    a(f"s_lshl_b32 s{sT1}, s{sT1}, 7")
    a(f"s_add_u32 s{sT0}, s{sT0}, s{sT1}")

    def dprep_loads():
        for i in range(4):
            r = FR + i * 4
            a(f"buffer_load_dwordx2 v[{r}:{r+1}], v{vT}, s[{sB}:{sB+3}], s{sT0} offen offset:{i*32} {NTD}")
            a(f"buffer_load_dwordx2 v[{r+2}:{r+3}], v{vT}, s[{sE}:{sE+3}], s{sT0} offen offset:{i*32} {NTD}")

    def dprep_stores():
        a(f"s_lshl_b32 s{sT0}, s2, 12")
        a(f"s_add_u32 s{sT0}, s{sT0}, {DOFF}")
        for i in range(4):
            r = FR + i * 4
            a(f"v_xor_b32 v{r+2}, 0x80008000, v{r+2}")
            a(f"v_xor_b32 v{r+3}, 0x80008000, v{r+3}")
            a(f"buffer_store_dwordx4 v[{r}:{r+3}], v{vT+1}, s[{sWS}:{sWS+3}], s{sT0} offen offset:{i*1024}")
    dprep_loads()
    loader_loop("k1x", 14, issue_x, 64 * 896, dprep_stores, 4)
    a.label("L_k1_done")
    a("s_endpgm")
    return name, 228, 0, NSLOT * SLOT + 256, 384


def main():
    a = Asm()
    a.raw('.amdgcn_target "amdgcn-amd-amdhsa--gfx950"')
    a.raw(".text")
    ks = [gen_k1(a), G.gen_k2(a)]
    seq = os.environ.get("SEQ", "12")
    if "E" in seq:
        a.raw(".globl fnet_e_kernel\n.p2align 8\n.type fnet_e_kernel,@function\nfnet_e_kernel:\n    s_endpgm")
        ks.append(("fnet_e_kernel", 8, 0, 0, 64))
    idx = {"1": 0, "2": 1, "E": 2}
    if "S" in seq:
        a.raw(".globl fnet_s_kernel\n.p2align 8\n.type fnet_s_kernel,@function\nfnet_s_kernel:")
        a("s_mov_b32 s4, 0")
        for r in range(12):
            a(f"v_mov_b32 v{r}, 0")
        a.label("L_s_loop")
        for r in range(8):
            a("v_mfma_f32_16x16x32_bf16 v[0:3], v[4:7], v[8:11], v[0:3]")
        a("s_add_u32 s4, s4, 1")
        a(f"s_cmp_lt_u32 s4, {OPT('SITER', 200)}")
        a("s_cbranch_scc1 L_s_loop")
        a("s_endpgm")
        idx["S"] = len(ks)
        ks.append(("fnet_s_kernel", 16, 0, 0, 256))
    for tag, order, reps in (("L", "lin", 1), ("R", "row", 1), ("H", "lin", 8), ("G", "row", 8)):
        if tag not in seq:
            continue
        nm = f"fnet_r{tag}_kernel"
        a.raw(f".globl {nm}\n.p2align 8\n.type {nm},@function\n{nm}:")
        a("s_cmp_ge_u32 s2, 256")
        a(f"s_cbranch_scc1 L_{nm}_end")
        a("s_load_dwordx4 s[4:7], s[0:1], 8")
        a("v_lshrrev_b32 v2, 6, v0")
        a("v_and_b32 v1, 63, v0")
        a("v_readfirstlane_b32 s20, v2")
        a("s_waitcnt lgkmcnt(0)")
        a("s_cmp_ge_u32 s2, 128")
        a("s_cselect_b32 s8, s6, s4")
        a("s_cselect_b32 s9, s7, s5")
        a("s_and_b32 s9, s9, 0xffff")
        a(f"s_mov_b32 s10, {C_BYTES}")
        a("s_mov_b32 s11, 0x20000")
        a("s_and_b32 s21, s2, 127")
        a("s_lshl_b32 s27, s20, 14")
        if order == "lin":
            a("s_lshl_b32 s23, s21, 16")
            a("s_lshl_b32 s24, s20, 14")
            a("s_add_u32 s23, s23, s24")
            a("v_lshlrev_b32 v3, 4, v1")
            offs = [i * 1024 for i in range(16)]
        else:
            a("s_lshr_b32 s23, s21, 3")
            a("s_lshl_b32 s23, s23, 19")
            a("s_and_b32 s24, s21, 7")
            a("s_lshl_b32 s24, s24, 9")
            a("s_add_u32 s23, s23, s24")
            a("s_lshl_b32 s24, s20, 17")
            a("s_add_u32 s23, s23, s24")
            a("v_lshrrev_b32 v3, 3, v1")
            a("v_lshlrev_b32 v3, 12, v3")
            a("v_and_b32 v4, 7, v1")
            a("v_lshl_add_u32 v3, v4, 4, v3")
            offs = [st_ * 128 + q * 8 * 4096 for st_ in range(4) for q in range(4)]
        a("s_mov_b32 s26, 0")
        a.label(f"L_{nm}_loop")
        for i, o in enumerate(offs):
            a(f"s_add_u32 s28, s23, {o}")
            a(f"s_add_u32 m0, s27, {i*1024}")
            a("s_nop 0")
            a("buffer_load_dwordx4 v3, s[8:11], s28 offen lds")
        a("s_waitcnt vmcnt(16)")
        a("s_add_u32 s26, s26, 1")
        a(f"s_cmp_lt_u32 s26, {reps}")
        a(f"s_cbranch_scc1 L_{nm}_loop")
        a("s_waitcnt vmcnt(0)")
        a.label(f"L_{nm}_end")
        a("s_endpgm")
        idx[tag] = len(ks)
        ks.append((nm, 16, 0, 131072, 256))
    if "F" in seq:
        a.raw(".globl fnet_f_kernel\n.p2align 8\n.type fnet_f_kernel,@function\nfnet_f_kernel:\n    s_endpgm")
        idx["F"] = len(ks)
        ks.append(("fnet_f_kernel", 228, 0, 153600, 384))
    out = HEADER
    for c in seq:
        name, nv, na, lds, blk = ks[idx[c]]
        out += f"; @launch kernel={name} grid=({1 if c == 'E' else 256},1,1) block=({blk},1,1) lds={lds}\n"
    out += a.text()
    out += '.section .rodata,"a"\n'
    for name, nv, na, lds, blk in ks:
        out += G.descriptor(name, nv, na)
    path = sys.argv[1] if len(sys.argv) > 1 else "standalone__spectral_fnet__prompt.s"
    open(path, "w").write(out)


if __name__ == "__main__":
    main()
```

```python
import sys, os
OPT = lambda k, d=0: int(os.environ.get(k, d))

HEADER = """; Kernarg layout for this problem (64 bytes, ptrs only, base s[0:1]):
"""

X_BYTES = 2048 * 448 * 2
C_BYTES = 2048 * 2048 * 2
D_BYTES = 448 * 448 * 2
PQ_BYTES = 2 * 128 * 28 * 1024
DOFF = PQ_BYTES
DF_BYTES = 28 * 28 * 1024
NCOPY = OPT('NCOPY', 1)
NFR = 25 if NCOPY == 8 else 4
WS_BYTES = PQ_BYTES + NCOPY * DF_BYTES


class Asm:
    def __init__(self):
        self.lines = []

    def __call__(self, s):
        self.lines.append("    " + s)

    def label(self, s):
        self.lines.append(s + ":")

    def raw(self, s):
        self.lines.append(s)

    def text(self):
        return "\n".join(self.lines) + "\n"


STAMP_OFF = 64 << 20


class Stamps:
    def __init__(self, a, base, kidx):
        self.a, self.base, self.n, self.kidx = a, base, 0, kidx

    def __call__(self):
        if not (OPT("STAMP") or OPT("DBGSTAMP")):
            return
        a = self.a
        a(f"s_memtime s[{self.base+self.n*4}:{self.base+self.n*4+1}]")
        a(f"s_memrealtime s[{self.base+self.n*4+2}:{self.base+self.n*4+3}]")
        self.n += 1

    def dump(self, sws, stmp, vtmp, swave):
        if OPT("DBGSTAMP"):
            a = self.a
            a("s_waitcnt vmcnt(0)")
            self()
            a(f"s_load_dwordx2 s[{sws}:{sws+1}], s[0:1], 48")
            a("s_waitcnt lgkmcnt(0)")
            a(f"s_and_b32 s{sws+1}, s{sws+1}, 0xffff")
            a(f"s_mov_b32 s{sws+2}, 256")
            a(f"s_xor_b32 s{stmp}, s2, 5")
            a(f"s_add_u32 s{stmp}, s{stmp}, s{swave}")
            a(f"s_lshl_b32 s{stmp}, s{stmp}, 8")
            a(f"v_mov_b32 v{vtmp+1}, 0")
            for i in range(1, self.n):
                a(f"s_sub_u32 s{self.base+i*4}, s{self.base+i*4}, s{self.base}")
                a(f"s_sub_u32 s{self.base+i*4+2}, s{self.base+i*4+2}, s{self.base+2}")
                a(f"v_mov_b32 v{vtmp}, s{self.base+i*4}")
                a(f"buffer_store_dword v{vtmp}, v{vtmp+1}, s[{sws}:{sws+3}], s{stmp} offen offset:{(i-1)*8}")
                a(f"v_mov_b32 v{vtmp}, s{self.base+i*4+2}")
                a(f"buffer_store_dword v{vtmp}, v{vtmp+1}, s[{sws}:{sws+3}], s{stmp} offen offset:{(i-1)*8+4}")
            return
        if not OPT("STAMP"):
            return
        a = self.a
        self()
        a("s_waitcnt lgkmcnt(0)")
        a(f"s_mov_b32 s{sws+2}, 0x8000000")
        a(f"s_lshl_b32 s{stmp}, s2, 2")
        a(f"s_add_u32 s{stmp}, s{stmp}, s{swave}")
        a(f"s_lshl_b32 s{stmp}, s{stmp}, 7")
        a(f"s_add_u32 s{stmp}, s{stmp}, {STAMP_OFF + self.kidx * (1 << 20)}")
        a(f"v_mov_b32 v{vtmp+1}, 0")
        for i in range(self.n):
            a(f"v_mov_b32 v{vtmp}, s{self.base+i*4}")
            a(f"buffer_store_dword v{vtmp}, v{vtmp+1}, s[{sws}:{sws+3}], s{stmp} offen offset:{i*8}")
            a(f"v_mov_b32 v{vtmp}, s{self.base+i*4+2}")
            a(f"buffer_store_dword v{vtmp}, v{vtmp+1}, s[{sws}:{sws+3}], s{stmp} offen offset:{i*8+4}")


def ticket(a, tag, sD, sX, sR, sTry, sA, sLid):
    a(f"s_getreg_b32 s{sX}, hwreg(HW_REG_XCC_ID)")
    a(f"s_and_b32 s{sX}, s{sX}, 7")
    a(f"s_mov_b32 s{sTry}, 0")
    a.label(f"L_{tag}_try")
    a(f"s_lshl_b32 s{sR}, s{sX}, 5")
    a(f"s_add_u32 s{sA}, s{sD}, s{sR}")
    a(f"s_addc_u32 s{sA+1}, s{sD+1}, 0")
    a(f"s_mov_b32 s{sR}, 1")
    a(f"s_atomic_add s{sR}, s[{sA}:{sA+1}], 0 glc")
    a("s_waitcnt lgkmcnt(0)")
    a(f"s_lshl_b32 s{sLid}, s{sR}, 3")
    a(f"s_add_u32 s{sLid}, s{sLid}, s{sX}")
    a(f"s_cmp_lt_u32 s{sR}, 32")
    a(f"s_cbranch_scc1 L_{tag}_got")
    a(f"s_add_u32 s{sX}, s{sX}, 1")
    a(f"s_and_b32 s{sX}, s{sX}, 7")
    a(f"s_add_u32 s{sTry}, s{sTry}, 1")
    a(f"s_cmp_lt_u32 s{sTry}, 8")
    a(f"s_cbranch_scc1 L_{tag}_try")
    a(f"s_mov_b32 s{sLid}, 256")
    a.label(f"L_{tag}_got")


def srd(a, d, b, nbytes):
    a(f"s_mov_b32 s{d}, s{b}")
    a(f"s_and_b32 s{d+1}, s{b+1}, 0xffff")
    a(f"s_mov_b32 s{d+2}, {nbytes}")
    a(f"s_mov_b32 s{d+3}, 0x20000")


def interleave(main, fill, per=2):
    out = []
    fi = 0

    def put(x):
        if isinstance(x, list):
            out.extend(x)
        else:
            out.append(x)
    for m in main:
        out.append(m)
        for _ in range(per):
            if fi < len(fill):
                put(fill[fi])
                fi += 1
    for x in fill[fi:]:
        put(x)
    return out


def flat(l):
    out = []
    for x in l:
        if isinstance(x, list):
            out.extend(x)
        else:
            out.append(x)
    return out


NSLOT = 5
NTD = 'nt' if OPT('NTD', 1) else ''
NTS = 'nt' if OPT('NTS', 0) else ''
NT2 = 'nt' if OPT('NT2', 0) else ''
NTC = 'nt ' if OPT('NTC', 1) else ''
NTX = 'nt ' if OPT('NTX', 1) else ''
SLOT = 30720
XOFF = 16384
NSTAGE = 16


def gen_k1(a):
    name = "fnet_k1_kernel"
    a.raw(f".globl {name}")
    a.raw(".p2align 8")
    a.raw(f".type {name},@function")
    a.label(name)
    sX, sC, sWS, sDr, sDi = 16, 20, 24, 28, 32
    sW = 36
    sCo = 37
    sXo = 38
    sM0C = 39
    sSlotW = 40
    sSlotR = 41
    sIt = 42
    sT0 = 43
    sT1 = 44
    sH, sRB, sJ = 45, 46, 47
    sMask = 48
    sWk, sWm = 50, 51
    sF = 52
    sStg = 53
    sCoE, sXoE = 54, 55
    sOOB = 56
    sWC, sWX = 57, 58
    sRot = 59
    sT2, sT3 = 60, 61
    sR0, sWs, sI = 62, 63, 3

    vLane = 1
    vOC = 2
    vOX = 6
    vCb0 = 10
    vXb0 = 11
    vCb = 13
    vXb = 14
    vT = 16
    vDp = 20
    vDo = 24
    FR = 28
    ACC = 116

    def cfrag(s, n):
        b = FR + s * 44 + n * 4
        return b

    def xfrag(s, m):
        b = FR + s * 44 + 16 + m * 4
        return b

    def acc(m, n):
        return ACC + (m * 4 + n) * 4

    st = Stamps(a, 64, 0)
    a("s_cmp_ge_u32 s2, 256")
    a("s_cbranch_scc1 L_k1_done")
    st()
    a("s_load_dwordx8 s[4:11], s[0:1], 0")
    a("s_load_dwordx2 s[12:13], s[0:1], 32")
    a("s_load_dwordx2 s[14:15], s[0:1], 56")
    a(f"v_lshrrev_b32 v{vT}, 6, v0")
    a(f"v_and_b32 v{vLane}, 63, v0")
    a(f"v_readfirstlane_b32 s{sW}, v{vT}")
    a(f"s_and_b32 s{sT0}, s2, 7")
    a(f"s_lshr_b32 s{sT1}, s2, 3")
    if OPT("MAPB"):
        a(f"s_lshr_b32 s{sH}, s{sT1}, 2")
        a(f"s_and_b32 s{sH}, s{sH}, 1")
        a(f"s_lshr_b32 s{sRB}, s{sT1}, 3")
        a(f"s_lshl_b32 s{sRB}, s{sRB}, 3")
        a(f"s_add_u32 s{sRB}, s{sRB}, s{sT0}")
    else:
        a(f"s_and_b32 s{sH}, s{sT0}, 1")
        a(f"s_lshr_b32 s{sRB}, s{sT0}, 1")
        a(f"s_lshr_b32 s{sJ}, s{sT1}, 2")
        a(f"s_lshl_b32 s{sJ}, s{sJ}, 2")
        a(f"s_add_u32 s{sRB}, s{sRB}, s{sJ}")
    a(f"s_and_b32 s{sJ}, s{sT1}, 3")
    a(f"s_and_b32 s{sWk}, s{sW}, 1")
    a(f"s_lshr_b32 s{sWm}, s{sW}, 1")
    a(f"s_lshl_b32 s{sCo}, s{sRB}, 18")
    a(f"s_lshl_b32 s{sT0}, s{sWk}, 17")
    a(f"s_add_u32 s{sCo}, s{sCo}, s{sT0}")
    a(f"s_lshl_b32 s{sT0}, s{sH}, 11")
    a(f"s_add_u32 s{sCo}, s{sCo}, s{sT0}")
    a(f"s_mul_i32 s{sXo}, s{sH}, {1024*896}")
    a(f"s_mul_i32 s{sT0}, s{sJ}, 224")
    a(f"s_add_u32 s{sXo}, s{sXo}, s{sT0}")
    if OPT("ROT", 0):
        if OPT("MAPB"):
            a(f"s_lshr_b32 s{sRot}, s{sT1}, 3")
            a(f"s_lshl_b32 s{sRot}, s{sRot}, 2")
        else:
            a(f"s_lshr_b32 s{sRot}, s{sT1}, 2")
            a(f"s_lshl_b32 s{sRot}, s{sRot}, 1")
        if OPT("ROT", 0) == 3:
            a(f"s_lshr_b32 s{sT0}, s{sT1}, 3")
            a(f"s_add_u32 s{sT0}, s{sT0}, s{sJ}")
            a(f"s_lshl_b32 s{sR0}, s{sT0}, 1")
            a(f"s_and_b32 s{sR0}, s{sR0}, 7")
            a(f"s_lshr_b32 s{sT0}, s{sT1}, 2")
            a(f"s_and_b32 s{sT0}, s{sT0}, 1")
            a(f"s_lshl_b32 s{sWs}, s{sT0}, 3")
            if OPT("MAPB"):
                a(f"s_mov_b32 s{sWs}, 0")
            a(f"s_mov_b32 s{sI}, 0")
            a(f"s_add_u32 s{sRot}, s{sR0}, s{sWs}")
        if OPT("ROT", 0) == 2:
            a(f"s_lshl_b32 s{sT0}, s{sJ}, 2")
            a(f"s_add_u32 s{sRot}, s{sRot}, s{sT0}")
            a(f"s_and_b32 s{sRot}, s{sRot}, 15")
        a(f"s_mov_b32 s{sT2}, s{sCo}")
        a(f"s_mov_b32 s{sT3}, s{sXo}")
        a(f"s_lshl_b32 s{sT0}, s{sRot}, 7")
        a(f"s_add_u32 s{sCo}, s{sCo}, s{sT0}")
        a(f"s_mul_i32 s{sT0}, s{sRot}, {64*896}")
        a(f"s_add_u32 s{sXo}, s{sXo}, s{sT0}")
    a(f"s_lshl_b32 s{sWC}, s{sW}, 12")
    a(f"s_mul_i32 s{sWX}, s{sW}, 3584")
    a(f"s_add_u32 s{sWX}, s{sWX}, {XOFF}")
    a(f"s_mov_b32 s{sMask}, -1")
    a(f"s_mov_b32 s{sMask+1}, 0")
    a(f"s_mov_b32 s{sOOB}, 0x7f000000")
    a(f"v_lshrrev_b32 v{vT}, 3, v{vLane}")
    a(f"v_lshlrev_b32 v{vT}, 12, v{vT}")
    a(f"v_and_b32 v{vT+1}, 7, v{vLane}")
    a(f"v_lshrrev_b32 v{vT+2}, 4, v{vLane}")
    a(f"v_xor_b32 v{vT+1}, v{vT+1}, v{vT+2}")
    a(f"v_lshl_add_u32 v{vOC}, v{vT+1}, 4, v{vT}")
    a(f"v_xor_b32 v{vT+1}, 4, v{vT+1}")
    a(f"v_lshl_add_u32 v{vOC+1}, v{vT+1}, 4, v{vT}")
    a(f"v_add_u32 v{vOC+1}, {8*4096-1024}, v{vOC+1}")
    a(f"v_add_u32 v{vOC+2}, {16*4096-2048}, v{vOC}")
    a(f"v_add_u32 v{vOC+3}, {16*4096-2048}, v{vOC+1}")
    a(f"s_mul_i32 s{sT0}, s{sW}, 224")
    a(f"s_mov_b32 s{sT1}, 4682")
    for q in range(4):
        a(f"v_add_u32 v{vT}, s{sT0}, v{vLane}")
        if q:
            a(f"v_add_u32 v{vT}, {64*q}, v{vT}")
        a(f"v_mul_lo_u32 v{vT+1}, v{vT}, s{sT1}")
        a(f"v_lshrrev_b32 v{vT+1}, 16, v{vT+1}")
        a(f"v_mul_u32_u24 v{vT+2}, 14, v{vT+1}")
        a(f"v_sub_u32 v{vT+2}, v{vT}, v{vT+2}")
        a(f"v_lshrrev_b32 v{vT+3}, 1, v{vT+1}")
        a(f"v_and_b32 v{vT+3}, 4, v{vT+3}")
        a(f"v_xor_b32 v{vT+1}, v{vT+1}, v{vT+3}")
        a(f"v_mul_u32_u24 v{vT+1}, 896, v{vT+1}")
        a(f"v_lshl_add_u32 v{vOX+q}, v{vT+2}, 4, v{vT+1}")
        if q:
            a(f"v_subrev_u32 v{vOX+q}, {1024*q}, v{vOX+q}")
    for c in range(1024):
        assert (c * 4682) >> 16 == c // 14
    a("s_waitcnt lgkmcnt(0)")
    srd(a, sX, 4, X_BYTES)
    a(f"s_cmp_ge_u32 s{sW}, 2")
    a(f"s_cselect_b32 s{sC}, s8, s6")
    a(f"s_cselect_b32 s{sC+1}, s9, s7")
    a(f"s_and_b32 s{sC+1}, s{sC+1}, 0xffff")
    a(f"s_mov_b32 s{sC+2}, {C_BYTES}")
    a(f"s_mov_b32 s{sC+3}, 0x20000")
    srd(a, sWS, 14, WS_BYTES)
    srd(a, sDr, 10, D_BYTES)
    srd(a, sDi, 12, D_BYTES)
    a(f"s_cmp_eq_u32 s{sW}, 4")
    a("s_cbranch_scc1 L_k1_helper")

    def dma_stage(slot_expr, co, xo):
        ins = []
        ins.append(f"s_add_u32 m0, s{slot_expr}, s{sWC}")
        ins.append("s_nop 0")
        if OPT("NOC"):
            co = sOOB
        if OPT("NOX"):
            xo = sOOB
        for q in range(4):
            ins.append(f"buffer_load_dwordx4 v{vOC+q}, s[{sC}:{sC+3}], s{co} offen offset:{q*1024} {NTC}lds")
        ins.append(f"s_add_u32 m0, s{slot_expr}, s{sWX}")
        ins.append("s_nop 0")
        for q in range(3):
            ins.append(f"buffer_load_dwordx4 v{vOX+q}, s[{sX}:{sX+3}], s{xo} offen offset:{q*1024} {NTX}lds")
        ins.append([f"s_mov_b64 exec, s[{sMask}:{sMask+1}]",
                    f"buffer_load_dwordx4 v{vOX+3}, s[{sX}:{sX+3}], s{xo} offen offset:3072 {NTX}lds",
                    "s_mov_b64 exec, -1"])
        return ins

    def advance():
        if OPT("ROT", 0) == 3:
            return [f"s_add_u32 s{sI}, s{sI}, 1",
                    f"s_add_u32 s{sRot}, s{sR0}, s{sI}",
                    f"s_and_b32 s{sRot}, s{sRot}, 7",
                    f"s_xor_b32 s{sCo}, s{sI}, s{sWs}",
                    f"s_and_b32 s{sCo}, s{sCo}, 8",
                    f"s_add_u32 s{sRot}, s{sRot}, s{sCo}",
                    f"s_lshl_b32 s{sCo}, s{sRot}, 7",
                    f"s_add_u32 s{sCo}, s{sCo}, s{sT2}",
                    f"s_mul_i32 s{sXo}, s{sRot}, {64*896}",
                    f"s_add_u32 s{sXo}, s{sXo}, s{sT3}"]
        if OPT("ROT", 0):
            return [f"s_add_u32 s{sRot}, s{sRot}, 1",
                    f"s_and_b32 s{sRot}, s{sRot}, 15",
                    f"s_lshl_b32 s{sCo}, s{sRot}, 7",
                    f"s_add_u32 s{sCo}, s{sCo}, s{sT2}",
                    f"s_mul_i32 s{sXo}, s{sRot}, {64*896}",
                    f"s_add_u32 s{sXo}, s{sXo}, s{sT3}"]
        return [f"s_add_u32 s{sCo}, s{sCo}, 128",
                f"s_add_u32 s{sXo}, s{sXo}, {64*896}"]

    if OPT("PFBAR"):
        a("s_barrier")
    st()
    a(f"s_mov_b32 s{sSlotW}, 0")
    for _stg in range(NSLOT):
        for i in flat(dma_stage(sSlotW, sCo, sXo)):
            a(i)
        for i in flat(advance()):
            a(i)
        a(f"s_add_u32 s{sSlotW}, s{sSlotW}, {SLOT}")
    a(f"s_mov_b32 s{sSlotW}, 0")
    a(f"s_mov_b32 s{sStg}, {NSLOT}")

    NEXTRA = 0

    a(f"v_and_b32 v{vT}, 15, v{vLane}")
    a(f"v_lshrrev_b32 v{vT+1}, 4, v{vLane}")
    a(f"s_lshl_b32 s{sT0}, s{sWk}, 2")
    a(f"v_add_u32 v{vT+2}, s{sT0}, v{vT+1}")
    a(f"v_lshrrev_b32 v{vT+3}, 1, v{vT}")
    a(f"v_xor_b32 v{vT+2}, v{vT+2}, v{vT+3}")
    a(f"v_lshlrev_b32 v{vT+2}, 4, v{vT+2}")
    a(f"v_lshl_add_u32 v{vCb0}, v{vT}, 7, v{vT+2}")
    a(f"s_lshl_b32 s{sT0}, s{sWm}, 12")
    a(f"v_add_u32 v{vCb0}, s{sT0}, v{vCb0}")
    a(f"v_lshlrev_b32 v{vT+2}, 3, v{vT+1}")
    a(f"v_lshrrev_b32 v{vT+3}, 2, v{vT}")
    a(f"v_add_u32 v{vT+2}, v{vT+2}, v{vT+3}")
    a(f"s_lshl_b32 s{sT0}, s{sWk}, 5")
    a(f"v_add_u32 v{vT+2}, s{sT0}, v{vT+2}")
    a(f"v_and_b32 v{vT+3}, 1, v{vT+1}")
    a(f"v_lshlrev_b32 v{vT+3}, 2, v{vT+3}")
    a(f"v_add_u32 v{vXb0}, v{vT+2}, v{vT+3}")
    a(f"v_xor_b32 v{vT+3}, 4, v{vT+3}")
    a(f"v_add_u32 v{vXb0+1}, v{vT+2}, v{vT+3}")
    a(f"v_and_b32 v{vT}, 3, v{vT}")
    a(f"v_lshlrev_b32 v{vT}, 3, v{vT}")
    a(f"v_add_u32 v{vT}, {XOFF}, v{vT}")
    a(f"v_mov_b32 v{vT+1}, 224")
    a(f"v_mad_u32_u24 v{vXb0}, v{vXb0}, v{vT+1}, v{vT}")
    a(f"v_mad_u32_u24 v{vXb0+1}, v{vXb0+1}, v{vT+1}, v{vT}")
    for r in range(112):
        a(f"v_mov_b32 v{ACC+r}, 0")

    def frag_reads(s):
        ins = []
        def xr(m):
            return [f"ds_read_b64_tr_b16 v[{xfrag(s,m)}:{xfrag(s,m)+1}], v{vXb} offset:{m*32}",
                    f"ds_read_b64_tr_b16 v[{xfrag(s,m)+2}:{xfrag(s,m)+3}], v{vXb+1} offset:{m*32}"]
        ins += xr(0)
        for n in range(4):
            pq, tl = n >> 1, n & 1
            ins.append(f"ds_read_b128 v[{cfrag(s,n)}:{cfrag(s,n)+3}], v{vCb} offset:{pq*8192+tl*2048}")
        for m in range(1, 7):
            ins += xr(m)
        return ins

    def set_read_bases(slot_sgpr):
        return [f"v_add_u32 v{vCb}, s{slot_sgpr}, v{vCb0}",
                f"v_add_u32 v{vXb}, s{slot_sgpr}, v{vXb0}",
                f"v_add_u32 v{vXb+1}, s{slot_sgpr}, v{vXb0+1}"]

    def mfmas(s):
        return [f"v_mfma_f32_16x16x32_bf16 v[{acc(m,n)}:{acc(m,n)+3}], v[{xfrag(s,m)}:{xfrag(s,m)+3}], "
                f"v[{cfrag(s,n)}:{cfrag(s,n)+3}], v[{acc(m,n)}:{acc(m,n)+3}]"
                for m in range(7) for n in range(4)]

    a(f"s_mov_b32 s{sSlotR}, 0")
    for i in set_read_bases(sSlotR):
        a(i)
    st()
    a(f"s_waitcnt vmcnt({(NSLOT-1)*8+NEXTRA})")
    st()
    a("s_barrier")
    for i in frag_reads(0):
        a(i)
    a(f"s_mov_b32 s{sIt}, 0")

    a.label("L_k1_loop")
    for s in range(2):
        a(f"s_add_u32 s{sSlotR}, s{sSlotR}, {SLOT}")
        a(f"s_cmp_eq_u32 s{sSlotR}, {SLOT*NSLOT}")
        a(f"s_cselect_b32 s{sSlotR}, 0, s{sSlotR}")
        a(f"s_cmp_lt_u32 s{sStg}, {NSTAGE}")
        a(f"s_cselect_b32 s{sCoE}, s{sCo}, s{sOOB}")
        a(f"s_cselect_b32 s{sXoE}, s{sXo}, s{sOOB}")
        for i in set_read_bases(sSlotR):
            a(i)
        a(f"s_waitcnt vmcnt({(NSLOT-2)*8}) lgkmcnt(0)")
        a("s_barrier")
        if OPT("TRACE"):
            a("s_memtime s[96:97]")
            a("s_waitcnt lgkmcnt(0)")
            a(f"s_mov_b32 s99, m0")
            a(f"s_mov_b32 m0, s{sStg}")
            a("s_nop 0")
            a(f"v_writelane_b32 v{vDo}, s96, m0")
            a(f"s_mov_b32 m0, s99")
        fill = frag_reads(1 - s) + dma_stage(sSlotW, sCoE, sXoE)
        if OPT("NODMA"):
            fill = frag_reads(1 - s)
        if OPT("NOREAD"):
            fill = dma_stage(sSlotW, sCoE, sXoE)
        fill += advance()
        fill += [f"s_add_u32 s{sStg}, s{sStg}, 1",
                 [f"s_add_u32 s{sSlotW}, s{sSlotW}, {SLOT}",
                  f"s_cmp_eq_u32 s{sSlotW}, {SLOT*NSLOT}",
                  f"s_cselect_b32 s{sSlotW}, 0, s{sSlotW}"]]
        for i in interleave(mfmas(s) if not OPT("NOMFMA") else [], fill, per=2):
            a(i)
    a(f"s_add_u32 s{sIt}, s{sIt}, 1")
    a(f"s_cmp_lt_u32 s{sIt}, {NSTAGE//2}")
    a("s_cbranch_scc1 L_k1_loop")

    st()
    a("s_waitcnt vmcnt(0) lgkmcnt(0)")
    a("s_barrier")
    a(f"s_mul_i32 s{sT0}, s{sW}, 14336")
    a(f"s_xor_b32 s{sT1}, s{sW}, 1")
    a(f"s_mul_i32 s{sT1}, s{sT1}, 14336")
    a(f"v_lshlrev_b32 v{vT}, 4, v{vLane}")
    a(f"v_add_u32 v{vT+1}, s{sT1}, v{vT}")
    a(f"v_add_u32 v{vT}, s{sT0}, v{vT}")
    a(f"s_cmp_eq_u32 s{sWk}, 0")
    a("s_cbranch_scc0 L_k1_epi1")
    for wk in range(2):
        if wk == 1:
            a.label("L_k1_epi1")
        give = 1 - wk
        keep = wk
        idx = 0
        for m in range(7):
            for pq in range(2):
                r = acc(m, pq * 2 + give)
                a(f"ds_write_b128 v{vT}, v[{r}:{r+3}] offset:{idx*1024}")
                idx += 1
        a("s_waitcnt lgkmcnt(0)")
        a("s_barrier")
        idx = 0
        for m in range(7):
            for pq in range(2):
                r = FR + idx * 4
                a(f"ds_read_b128 v[{r}:{r+3}], v{vT+1} offset:{idx*1024}")
                idx += 1
        a(f"s_lshl_b32 s{sT0}, s{sH}, 7")
        a(f"s_lshl_b32 s{sT1}, s{sRB}, 2")
        a(f"s_add_u32 s{sT0}, s{sT0}, s{sT1}")
        a(f"s_lshl_b32 s{sT1}, s{sWm}, 1")
        a(f"s_add_u32 s{sT0}, s{sT0}, s{sT1}")
        a(f"s_add_u32 s{sT0}, s{sT0}, {keep}")
        a(f"s_mul_i32 s{sT0}, s{sT0}, 28")
        a(f"s_mul_i32 s{sT1}, s{sJ}, 7")
        a(f"s_add_u32 s{sT0}, s{sT0}, s{sT1}")
        a(f"s_lshl_b32 s{sT0}, s{sT0}, 10")
        a(f"v_lshlrev_b32 v{vT+2}, 4, v{vLane}")
        a(f"v_add_u32 v{vT+3}, 4096, v{vT+2}")
        idx = 0
        for m in range(7):
            a(f"s_waitcnt lgkmcnt({12-2*m})")
            for pq in range(2):
                r = FR + idx * 4
                ac = acc(m, pq * 2 + keep)
                for k in range(4):
                    a(f"v_add_f32 v{ac+k}, v{ac+k}, v{r+k}")
                idx += 1
            p = acc(m, keep)
            q = acc(m, 2 + keep)
            o = FR + 56 + m * 4
            a(f"v_cvt_pk_bf16_f32 v{o}, v{p}, v{p+1}")
            a(f"v_cvt_pk_bf16_f32 v{o+1}, v{p+2}, v{p+3}")
            a(f"v_cvt_pk_bf16_f32 v{o+2}, v{q}, v{q+1}")
            a(f"v_cvt_pk_bf16_f32 v{o+3}, v{q+2}, v{q+3}")
            vo = vT + 2 if m < 4 else vT + 3
            a(f"buffer_store_dwordx4 v[{o}:{o+3}], v{vo}, s[{sWS}:{sWS+3}], s{sT0} offen offset:{(m%4)*1024} {NTS}")
        if wk == 0:
            a("s_branch L_k1_epi2")
    a.label("L_k1_epi2")
    st()
    if OPT("STAMP"):
        a("s_waitcnt vmcnt(0)")
    st.dump(sWS, sT0, vT, sW)
    if OPT("TRACE"):
        a(f"v_writelane_b32 v{vDo}, s64, 0")
        a(f"s_lshl_b32 s{sT0}, s2, 2")
        a(f"s_add_u32 s{sT0}, s{sT0}, s{sW}")
        a(f"s_lshl_b32 s{sT0}, s{sT0}, 8")
        a(f"s_add_u32 s{sT0}, s{sT0}, {STAMP_OFF + 3 * (1 << 20)}")
        a(f"v_lshlrev_b32 v{vT}, 2, v{vLane}")
        a(f"buffer_store_dword v{vDo}, v{vT}, s[{sWS}:{sWS+3}], s{sT0} offen")
    a("s_endpgm")
    a.label("L_k1_helper")
    sCi = 64 if not OPT("STAMP") else 92
    srd(a, sCi, 6, C_BYTES)
    sCrp, sCip = sCi, sC
    ST = OPT("PF_ST", 128)
    CH = OPT("PF_CH", 512)
    LPR = CH // ST
    RPI = 64 // LPR
    NCH = 2048 // CH
    if OPT("PF", 1):
        import math
        a(f"v_lshrrev_b32 v{vT}, {int(math.log2(LPR))}, v{vLane}")
        a(f"v_lshlrev_b32 v{vT}, 12, v{vT}")
        a(f"v_and_b32 v{vT+1}, {LPR-1}, v{vLane}")
        a(f"v_lshlrev_b32 v{vT+1}, {int(math.log2(ST))}, v{vT+1}")
        a(f"v_add_u32 v{vT}, v{vT}, v{vT+1}")
        a(f"v_lshlrev_b32 v{vT+1}, {int(math.log2(ST))}, v{vLane}")
        a(f"s_lshl_b32 s{sT0}, s{sRB}, 18")
        a(f"s_lshl_b32 s{sT1}, s{sJ}, 16")
        a(f"s_add_u32 s{sT0}, s{sT0}, s{sT1}")
        a(f"s_lshl_b32 s{sT1}, s{sH}, 11")
        a(f"s_add_u32 s{sT0}, s{sT0}, s{sT1}")
        xch = (CH // 2) * 896
        if OPT("MAPB"):
            xpart = xch // 16
            a(f"s_lshr_b32 s{sT1}, s2, 6")
            a(f"s_lshl_b32 s{sT1}, s{sT1}, 2")
            a(f"s_add_u32 s{sT1}, s{sT1}, s{sJ}")
        else:
            xpart = xch // 32
            a(f"s_lshr_b32 s{sT1}, s2, 3")
        a(f"s_mul_i32 s{sT1}, s{sT1}, {xpart}")
        a(f"s_mul_i32 s{sT2}, s{sH}, {1024*896}")
        a(f"s_add_u32 s{sT1}, s{sT1}, s{sT2}")
        for c in range(OPT("PF_SKIP", 0), NCH):
            for rg in range(16 // RPI):
                a(f"s_add_u32 s{sT2}, s{sT0}, {c*CH + rg*RPI*4096}")
                a(f"buffer_load_dword v{vT+2}, v{vT}, s[{sCrp}:{sCrp+3}], s{sT2} offen nt")
                a(f"buffer_load_dword v{vT+2}, v{vT}, s[{sCip}:{sCip+3}], s{sT2} offen nt")
            for p in range((xpart + 64*ST - 1) // (64*ST)):
                a(f"s_add_u32 s{sT2}, s{sT1}, {c*xch + p*64*ST}")
                if not OPT("PF_NOX"):
                    a(f"buffer_load_dword v{vT+2}, v{vT+1}, s[{sX}:{sX+3}], s{sT2} offen {NTX}")
    if OPT("STAMP"):
        sth = Stamps(a, 64, 2)
        sth.n = 1
        sth()
        a("s_waitcnt vmcnt(0)")
        if OPT("PFBAR"):
            a("s_barrier")
        a(f"s_mov_b32 s{sW}, 0")
        sth.dump(sWS, sT0, vT, sW)
        a(f"s_mov_b32 s{sWS+2}, {WS_BYTES}")
    a(f"v_and_b32 v{vT}, 15, v{vLane}")
    a(f"v_mul_u32_u24 v{vT}, 896, v{vT}")
    a(f"v_lshrrev_b32 v{vT+1}, 4, v{vLane}")
    a(f"v_lshl_add_u32 v{vT}, v{vT+1}, 3, v{vT}")
    a(f"v_lshlrev_b32 v{vT+1}, 4, v{vLane}")
    if NCOPY == 8:
        a(f"s_lshr_b32 s{sF}, s2, 3")
        a(f"s_mul_i32 s{sF}, s{sF}, 25")
    else:
        a(f"s_lshl_b32 s{sF}, s2, 2")
    for i in range(NFR):
        a(f"s_add_u32 s{sT2}, s{sF}, {i}")
        a(f"s_mul_i32 s{sT0}, s{sT2}, 2341")
        a(f"s_lshr_b32 s{sT0}, s{sT0}, 16")
        a(f"s_mul_i32 s{sT1}, s{sT0}, 28")
        a(f"s_sub_u32 s{sT1}, s{sT2}, s{sT1}")
        a(f"s_mul_i32 s{sT0}, s{sT0}, {16*896}")
        a(f"s_lshl_b32 s{sT1}, s{sT1}, 5")
        a(f"s_add_u32 s{sT0}, s{sT0}, s{sT1}")
        r = FR + i * 4
        a(f"buffer_load_dwordx2 v[{r}:{r+1}], v{vT}, s[{sDr}:{sDr+3}], s{sT0} offen {NTD}")
        a(f"buffer_load_dwordx2 v[{r+2}:{r+3}], v{vT}, s[{sDi}:{sDi+3}], s{sT0} offen {NTD}")
    for f in range(1024):
        assert (f * 2341) >> 16 == f // 28
    a(f"s_and_b32 s{sT0}, s2, {NCOPY-1}")
    a(f"s_mul_i32 s{sT0}, s{sT0}, {DF_BYTES}")
    a(f"s_lshl_b32 s{sT1}, s{sF}, 10")
    a(f"s_add_u32 s{sT0}, s{sT0}, s{sT1}")
    a(f"s_add_u32 s{sT0}, s{sT0}, {DOFF}")
    for i in range(NFR):
        r = FR + i * 4
        a(f"s_add_u32 s{sT2}, s{sF}, {i}")
        a(f"s_cmp_ge_u32 s{sT2}, 784")
        a("s_cbranch_scc1 L_k1_done")
        a(f"s_waitcnt vmcnt({min(63, 2*(NFR-1-i) + i)})")
        a(f"v_xor_b32 v{r+2}, 0x80008000, v{r+2}")
        a(f"v_xor_b32 v{r+3}, 0x80008000, v{r+3}")
        a(f"buffer_store_dwordx4 v[{r}:{r+3}], v{vT+1}, s[{sWS}:{sWS+3}], s{sT0} offen {NTS}")
        a(f"s_add_u32 s{sT0}, s{sT0}, 1024")
    a.label("L_k1_done")
    a("s_endpgm")
    return name, 228, 0, NSLOT * SLOT, 320


def gen_k2(a):
    name = "fnet_k2_kernel"
    a.raw(f".globl {name}")
    a.raw(".p2align 8")
    a.raw(f".type {name},@function")
    a.label(name)
    sWS, sOut = 8, 12
    sW = 16
    sT0, sT1 = 17, 18
    sTB, sJ = 19, 20
    sPQ = 24
    sD = 28
    vLane = 1
    vO = 2
    vT = 4
    PQR = 8
    ACC = 120

    def pq(ml, h, tl):
        return PQR + ((ml * 2 + h) * 2 + tl) * 4

    def df(ml, et):
        return (ml * 7 + et) * 4

    def acc(et, tl):
        return ACC + (et * 2 + tl) * 4

    st = Stamps(a, 64, 1) if OPT("STAMP") else (lambda: None)
    a("s_cmp_ge_u32 s2, 256")
    a("s_cbranch_scc1 L_k2_done")
    st()
    a("s_load_dwordx2 s[4:5], s[0:1], 56")
    a("s_load_dwordx4 s[40:43], s[0:1], 40")
    a(f"v_lshrrev_b32 v{vT}, 6, v0")
    a(f"v_and_b32 v{vLane}, 63, v0")
    a(f"v_readfirstlane_b32 s{sW}, v{vT}")
    if OPT("TICKET2", 1):
        a(f"v_mov_b32 v{vT+1}, 0")
        a(f"s_cmp_lg_u32 s{sW}, 0")
        a("s_cbranch_scc1 L_k2_wait")
        a("s_waitcnt lgkmcnt(0)")
        ticket(a, "k2", 42, 44, 45, 46, 48, 50)
        a(f"v_mov_b32 v{vT+2}, s50")
        a(f"ds_write_b32 v{vT+1}, v{vT+2}")
        a("s_waitcnt lgkmcnt(0)")
        a.label("L_k2_wait")
        a("s_barrier")
        a(f"ds_read_b32 v{vT+2}, v{vT+1}")
        a("s_waitcnt lgkmcnt(0)")
        a(f"v_readfirstlane_b32 s2, v{vT+2}")
        a("s_nop 3")
        a("s_cmp_ge_u32 s2, 256")
        a("s_cbranch_scc1 L_k2_done")
    a(f"s_and_b32 s{sT0}, s2, 7")
    a(f"s_lshr_b32 s{sT1}, s2, 3")
    a(f"s_lshr_b32 s{sTB}, s{sT1}, 2")
    a(f"s_lshl_b32 s{sTB}, s{sTB}, 3")
    a(f"s_add_u32 s{sTB}, s{sTB}, s{sT0}")
    a(f"s_and_b32 s{sJ}, s{sT1}, 3")
    a(f"v_lshlrev_b32 v{vO}, 4, v{vLane}")
    a(f"v_add_u32 v{vO+1}, 4096, v{vO}")
    a(f"s_mul_i32 s{sT0}, s{sW}, 7")
    a(f"s_mul_i32 s{sT1}, s{sTB}, 56")
    a(f"s_add_u32 s{sT1}, s{sT1}, s{sT0}")
    a(f"s_lshl_b32 s{sT1}, s{sT1}, 10")
    for h in range(2):
        for tl in range(2):
            a(f"s_add_u32 s{sPQ+h*2+tl}, s{sT1}, {(h*128+tl)*28*1024}")
    a(f"s_mul_i32 s{sT1}, s{sJ}, 196")
    a(f"s_add_u32 s{sT1}, s{sT1}, s{sT0}")
    a(f"s_lshl_b32 s{sT1}, s{sT1}, 10")
    a(f"s_and_b32 s{sT0}, s2, {NCOPY-1}")
    a(f"s_mul_i32 s{sT0}, s{sT0}, {DF_BYTES}")
    a(f"s_add_u32 s{sT1}, s{sT1}, s{sT0}")
    for et in range(7):
        a(f"s_add_u32 s{sD+et}, s{sT1}, {DOFF + et*28*1024}")
    a("s_waitcnt lgkmcnt(0)")
    srd(a, sWS, 4, WS_BYTES)
    srd(a, sOut, 40, X_BYTES)

    def loads(ml):
        ins = []
        vo = vO if ml < 4 else vO + 1
        off = (ml % 4) * 1024
        for h in range(2):
            for tl in range(2):
                r = pq(ml, h, tl)
                ins.append(f"buffer_load_dwordx4 v[{r}:{r+3}], v{vo}, s[{sWS}:{sWS+3}], s{sPQ+h*2+tl} offen offset:{off} {NT2}")
        for et in range(7):
            r = df(ml, et)
            ins.append(f"buffer_load_dwordx4 a[{r}:{r+3}], v{vo}, s[{sWS}:{sWS+3}], s{sD+et} offen offset:{off} {NT2}")
        return ins

    def mfmas(ml):
        return [f"v_mfma_f32_16x16x32_bf16 v[{acc(et,tl)}:{acc(et,tl)+3}], a[{df(ml,et)}:{df(ml,et)+3}], "
                f"v[{pq(ml,h,tl)}:{pq(ml,h,tl)+3}], v[{acc(et,tl)}:{acc(et,tl)+3}]"
                for h in range(2) for et in range(7) for tl in range(2)]

    st()
    for ml in range(5):
        for i in loads(ml):
            a(i)
    for r in range(56):
        a(f"v_mov_b32 v{ACC+r}, 0")
    st()
    a("s_waitcnt vmcnt(44)")
    st()
    for i in interleave(mfmas(0), loads(5), per=1):
        a(i)
    a("s_waitcnt vmcnt(44)")
    for i in interleave(mfmas(1), loads(6), per=1):
        a(i)
    for ml in range(2, 7):
        a(f"s_waitcnt vmcnt({(6-ml)*11})")
        for i in mfmas(ml):
            a(i)
    st()
    if OPT("STAMP"):
        a("s_waitcnt lgkmcnt(0)")
    a(f"s_mul_i32 s{sT0}, s{sW}, 14336")
    a(f"v_add_u32 v{vT}, s{sT0}, v{vO}")
    a("s_nop 7")
    for t in range(14):
        a(f"ds_write_b128 v{vT}, v[{ACC+t*4}:{ACC+t*4+3}] offset:{t*1024}")
    a("s_waitcnt lgkmcnt(0)")
    a("s_barrier")
    a(f"s_lshl_b32 s{sT0}, s{sW}, 10")
    a(f"v_add_u32 v{vT}, s{sT0}, v{vO}")
    R = PQR
    for q in range(4):
        for p in range(4):
            r = R + (q * 4 + p) * 4
            a(f"ds_read_b128 v[{r}:{r+3}], v{vT} offset:{p*14336+q*4096}")
    a(f"v_and_b32 v{vT+1}, 15, v{vLane}")
    a(f"v_mul_u32_u24 v{vT+1}, 896, v{vT+1}")
    a(f"v_lshrrev_b32 v{vT+2}, 4, v{vLane}")
    a(f"v_lshl_add_u32 v{vT+1}, v{vT+2}, 3, v{vT+1}")
    a(f"s_and_b32 s{sT0}, s{sW}, 1")
    a(f"s_lshl_b32 s{sT0}, s{sT0}, 4")
    a(f"s_lshl_b32 s{sT1}, s{sTB}, 5")
    a(f"s_add_u32 s{sT0}, s{sT0}, s{sT1}")
    a(f"s_mul_i32 s{sT0}, s{sT0}, 896")
    a(f"s_mul_i32 s{sT1}, s{sJ}, 224")
    a(f"s_add_u32 s{sT0}, s{sT0}, s{sT1}")
    a(f"s_lshr_b32 s{sT1}, s{sW}, 1")
    a(f"s_lshl_b32 s{sT1}, s{sT1}, 5")
    a(f"s_add_u32 s{sT0}, s{sT0}, s{sT1}")
    for q in range(4):
        if q == 3:
            if OPT("STAMP"):
                a("s_waitcnt vmcnt(0)")
                st.dump(sWS, sT1, vT + 2, sW)
            if OPT("RELAY"):
                a(f"v_lshlrev_b32 v{vT+2}, 3, v{vLane}")
                a(f"v_add_u32 v{vT+2}, 4, v{vT+2}")
                a(f"s_mov_b32 s{sT1}, {STAMP_OFF + 5*4*128}")
                a(f"buffer_load_dword v{vT+3}, v{vT+2}, s[{sWS}:{sWS+3}], s{sT1} offen")
                a("s_waitcnt vmcnt(0)")
                a(f"v_writelane_b32 v{vT+3}, s66, 8")
                a(f"v_writelane_b32 v{vT+3}, s{64+(st.n-1)*4+2}, 9")
                a(f"v_readlane_b32 s{sT1}, v{vT+3}, 0")
                a("s_nop 3")
                a(f"v_subrev_u32 v{vT+3}, s{sT1}, v{vT+3}")
                a(f"s_mov_b32 s{sWS}, s42")
                a(f"s_and_b32 s{sWS+1}, s43, 0xffff")
                a(f"s_mov_b32 s{sWS+2}, 64")
                a(f"s_xor_b32 s{sT1}, s2, 5")
                a(f"s_add_u32 s{sT1}, s{sT1}, s{sW}")
                a(f"s_lshl_b32 s{sT1}, s{sT1}, 8")
                a(f"v_lshlrev_b32 v{vT+2}, 2, v{vLane}")
                a(f"buffer_store_dword v{vT+3}, v{vT+2}, s[{sWS}:{sWS+3}], s{sT1} offen")
            a(f"s_cmp_ge_u32 s{sW}, 2")
            a("s_cbranch_scc1 L_k2_done")
        a(f"s_waitcnt lgkmcnt({12-4*q})")
        r = R + q * 16
        for k in range(4):
            a(f"v_add_f32 v{r+k}, v{r+k}, v{r+4+k}")
            a(f"v_add_f32 v{r+8+k}, v{r+8+k}, v{r+12+k}")
        for k in range(4):
            a(f"v_add_f32 v{r+k}, v{r+k}, v{r+8+k}")
        a(f"v_cvt_pk_bf16_f32 v{r+4}, v{r}, v{r+1}")
        a(f"v_cvt_pk_bf16_f32 v{r+5}, v{r+2}, v{r+3}")
        a(f"buffer_store_dwordx2 v[{r+4}:{r+5}], v{vT+1}, s[{sOut}:{sOut+3}], s{sT0} offen offset:{q*64}")
    a.label("L_k2_done")
    a("s_endpgm")
    return name, 176, 196, 65536, 256


def descriptor(name, nv, na, sgpr=100):
    accum = (nv + 3) // 4 * 4
    nfv = accum + na if na else nv
    return f""".p2align 6
.amdhsa_kernel {name}
  .amdhsa_next_free_vgpr {nfv}
  .amdhsa_next_free_sgpr {sgpr}
  .amdhsa_accum_offset {accum}
  .amdhsa_group_segment_fixed_size 0
  .amdhsa_kernarg_size 64
  .amdhsa_user_sgpr_count 2
  .amdhsa_user_sgpr_kernarg_segment_ptr 1
  .amdhsa_system_sgpr_workgroup_id_x 1
.end_amdhsa_kernel
"""


def main():
    a = Asm()
    a.raw('.amdgcn_target "amdgcn-amd-amdhsa--gfx950"')
    a.raw(".text")
    ks = [gen_k1(a), gen_k2(a)]
    out = HEADER
    if OPT("K1TWICE"):
        name, nv, na, lds, blk = ks[0]
        out += f"; @launch kernel={name} grid=(256,1,1) block=({blk},1,1) lds={lds}\n"
    for name, nv, na, lds, blk in ks:
        out += f"; @launch kernel={name} grid=(256,1,1) block=({blk},1,1) lds={lds}\n"
    if OPT("K2TWICE"):
        name, nv, na, lds, blk = ks[1]
        out += f"; @launch kernel={name} grid=(256,1,1) block=({blk},1,1) lds={lds}\n"
    out += a.text()
    out += '.section .rodata,"a"\n'
    for name, nv, na, lds, blk in ks:
        out += descriptor(name, nv, na)
    path = sys.argv[1] if len(sys.argv) > 1 else "standalone__spectral_fnet__prompt.s"
    open(path, "w").write(out)


if __name__ == "__main__":
    main()
```

```python
import sys, os, math
import gen as G
from gen import ticket, OPT, Asm, Stamps, srd, interleave, flat, X_BYTES, C_BYTES, D_BYTES, DOFF, WS_BYTES, STAMP_OFF, HEADER

NSLOT, SLOT, XOFF, NSTAGE = 5, 30720, 16384, 16
NTC = 'nt ' if OPT('NTC', 0) else ''
NTX = 'nt ' if OPT('NTX', 0) else ''
NTD = 'nt' if OPT('NTD', 0) else ''
MAPB = OPT("MAPB", 1)
PDEPTH = 4


def gen_k1(a):
    name = "fnet_k1_kernel"
    a.raw(f".globl {name}")
    a.raw(".p2align 8")
    a.raw(f".type {name},@function")
    a.label(name)
    sA, sB, sWS, sE = 16, 20, 24, 28
    sW = 36
    sT0, sT1, sT2, sT3 = 37, 38, 39, 40
    sH, sRB, sJ = 41, 42, 43
    sWk, sWm = 44, 45
    sRot = 46
    sBase = 47
    sOff = 48
    sOff2 = 49
    sSlot = 50
    sIt = 51
    sF = 52

    vLane = 1
    vT = 2
    vCb0 = 6
    vXb0 = 7
    vCb = 9
    vXb = 10
    vTr = 12
    vO = 12
    FR = 28
    ACC = 116

    def cfrag(s, n):
        return FR + s * 44 + n * 4

    def xfrag(s, m):
        return FR + s * 44 + 16 + m * 4

    def acc(m, n):
        return ACC + (m * 4 + n) * 4

    st = Stamps(a, 64, 0)
    a("s_cmp_ge_u32 s2, 256")
    a("s_cbranch_scc1 L_k1_done")
    st()
    a("s_load_dwordx8 s[4:11], s[0:1], 0")
    a("s_load_dwordx2 s[12:13], s[0:1], 32")
    a("s_load_dwordx4 s[56:59], s[0:1], 48")
    a(f"v_lshrrev_b32 v{vT}, 6, v0")
    a(f"v_and_b32 v{vLane}, 63, v0")
    a(f"v_readfirstlane_b32 s{sW}, v{vT}")
    if OPT("TICKET1", 1):
        a(f"v_mov_b32 v{vT+1}, {NSLOT*SLOT}")
        a(f"s_cmp_lg_u32 s{sW}, 4")
        a("s_cbranch_scc1 L_k1_wait")
        a("s_waitcnt lgkmcnt(0)")
        ticket(a, "k1", 56, 60, 61, 62, 54, 53)
        a(f"v_mov_b32 v{vT+2}, s53")
        a(f"ds_write_b32 v{vT+1}, v{vT+2}")
        a("s_waitcnt lgkmcnt(0)")
        a.label("L_k1_wait")
        a("s_barrier")
        a(f"ds_read_b32 v{vT+2}, v{vT+1}")
        a("s_waitcnt lgkmcnt(0)")
        a(f"v_readfirstlane_b32 s2, v{vT+2}")
        a("s_nop 3")
        a("s_cmp_ge_u32 s2, 256")
        a("s_cbranch_scc1 L_k1_done")
    a(f"s_and_b32 s{sT0}, s2, 7")
    a(f"s_lshr_b32 s{sT1}, s2, 3")
    a(f"s_and_b32 s{sJ}, s{sT1}, 3")
    if MAPB:
        a(f"s_lshr_b32 s{sH}, s{sT1}, 2")
        a(f"s_and_b32 s{sH}, s{sH}, 1")
        a(f"s_lshr_b32 s{sRot}, s{sT1}, 3")
        a(f"s_lshl_b32 s{sRB}, s{sRot}, 3")
        a(f"s_add_u32 s{sRB}, s{sRB}, s{sT0}")
        if OPT("ROT", 2) == 2:
            a(f"s_add_u32 s{sRot}, s{sRot}, s{sJ}")
            a(f"s_lshl_b32 s{sRot}, s{sRot}, 2")
        elif OPT("ROT", 2) == 5:
            a(f"s_lshl_b32 s{sRot}, s{sRot}, 2")
            a(f"s_lshr_b32 s{sT2}, s{sJ}, 1")
            a(f"s_lshl_b32 s{sT2}, s{sT2}, 3")
            a(f"s_add_u32 s{sRot}, s{sRot}, s{sT2}")
        elif OPT("ROT", 2) == 1:
            a(f"s_lshl_b32 s{sRot}, s{sRot}, 2")
        else:
            a(f"s_mov_b32 s{sRot}, 0")
    else:
        a(f"s_and_b32 s{sH}, s{sT0}, 1")
        a(f"s_lshr_b32 s{sRB}, s{sT0}, 1")
        a(f"s_lshr_b32 s{sRot}, s{sT1}, 2")
        a(f"s_lshl_b32 s{sT2}, s{sRot}, 2")
        a(f"s_add_u32 s{sRB}, s{sRB}, s{sT2}")
        a(f"s_lshl_b32 s{sRot}, s{sRot}, 1")
        if OPT("ROT", 2) == 2:
            a(f"s_lshl_b32 s{sT2}, s{sJ}, 2")
            a(f"s_add_u32 s{sRot}, s{sRot}, s{sT2}")
        if OPT("ROT", 2) == 5:
            a(f"s_lshr_b32 s{sT2}, s{sJ}, 1")
            a(f"s_lshl_b32 s{sT2}, s{sT2}, 3")
            a(f"s_add_u32 s{sRot}, s{sRot}, s{sT2}")
        if OPT("ROT", 2) == 0:
            a(f"s_mov_b32 s{sRot}, 0")
    a(f"s_and_b32 s{sRot}, s{sRot}, 15")
    a(f"s_cmp_eq_u32 s{sW}, 4")
    a("s_cbranch_scc1 L_k1_ldc")
    a(f"s_cmp_eq_u32 s{sW}, 5")
    a("s_cbranch_scc1 L_k1_ldx")

    a(f"s_and_b32 s{sWk}, s{sW}, 1")
    a(f"s_lshr_b32 s{sWm}, s{sW}, 1")
    a(f"v_and_b32 v{vT}, 15, v{vLane}")
    a(f"v_lshrrev_b32 v{vT+1}, 4, v{vLane}")
    a(f"s_lshl_b32 s{sT0}, s{sWk}, 2")
    a(f"v_add_u32 v{vT+2}, s{sT0}, v{vT+1}")
    a(f"v_lshrrev_b32 v{vT+3}, 1, v{vT}")
    a(f"v_xor_b32 v{vT+2}, v{vT+2}, v{vT+3}")
    a(f"v_lshlrev_b32 v{vT+2}, 4, v{vT+2}")
    a(f"v_lshl_add_u32 v{vCb0}, v{vT}, 7, v{vT+2}")
    a(f"s_lshl_b32 s{sT0}, s{sWm}, 12")
    a(f"v_add_u32 v{vCb0}, s{sT0}, v{vCb0}")
    a(f"v_lshlrev_b32 v{vT+2}, 3, v{vT+1}")
    a(f"v_lshrrev_b32 v{vT+3}, 2, v{vT}")
    a(f"v_add_u32 v{vT+2}, v{vT+2}, v{vT+3}")
    a(f"s_lshl_b32 s{sT0}, s{sWk}, 5")
    a(f"v_add_u32 v{vT+2}, s{sT0}, v{vT+2}")
    a(f"v_and_b32 v{vT+3}, 1, v{vT+1}")
    a(f"v_lshlrev_b32 v{vT+3}, 2, v{vT+3}")
    a(f"v_add_u32 v{vXb0}, v{vT+2}, v{vT+3}")
    a(f"v_xor_b32 v{vT+3}, 4, v{vT+3}")
    a(f"v_add_u32 v{vXb0+1}, v{vT+2}, v{vT+3}")
    a(f"v_and_b32 v{vT}, 3, v{vT}")
    a(f"v_lshlrev_b32 v{vT}, 3, v{vT}")
    a(f"v_add_u32 v{vT}, {XOFF}, v{vT}")
    a(f"v_mov_b32 v{vT+1}, 224")
    a(f"v_mad_u32_u24 v{vXb0}, v{vXb0}, v{vT+1}, v{vT}")
    a(f"v_mad_u32_u24 v{vXb0+1}, v{vXb0+1}, v{vT+1}, v{vT}")
    for r in range(112):
        a(f"v_mov_b32 v{ACC+r}, 0")
    a("s_waitcnt lgkmcnt(0)")
    srd(a, sWS, 58, WS_BYTES)

    def frag_reads(s, vc, vx):
        ins = []

        def xr(m):
            return [f"ds_read_b64_tr_b16 v[{xfrag(s,m)}:{xfrag(s,m)+1}], v{vx} offset:{m*32}",
                    f"ds_read_b64_tr_b16 v[{xfrag(s,m)+2}:{xfrag(s,m)+3}], v{vx+1} offset:{m*32}"]
        ins += xr(0)
        for n in range(4):
            pq, tl = n >> 1, n & 1
            ins.append(f"ds_read_b128 v[{cfrag(s,n)}:{cfrag(s,n)+3}], v{vc} offset:{pq*8192+tl*2048}")
        for m in range(1, 7):
            ins += xr(m)
        return ins

    def mfmas(s):
        return [f"v_mfma_f32_16x16x32_bf16 v[{acc(m,n)}:{acc(m,n)+3}], v[{xfrag(s,m)}:{xfrag(s,m)+3}], "
                f"v[{cfrag(s,n)}:{cfrag(s,n)+3}], v[{acc(m,n)}:{acc(m,n)+3}]"
                for m in range(7) for n in range(4)]

    def trace():
        if OPT("TRACE"):
            a("s_memtime s[96:97]")
            a("s_waitcnt lgkmcnt(0)")
            a(f"s_mov_b32 m0, s98")
            a("s_add_u32 s98, s98, 1")
            a(f"v_writelane_b32 v{vTr}, s96, m0")

    a(f"s_mov_b32 s{sSlot}, 0")
    a(f"s_mov_b32 s{sIt}, 0")
    if OPT("TRACE"):
        a("s_mov_b32 s98, 5")
    st()
    a("s_barrier")
    st()
    for i in frag_reads(0, vCb0, vXb0):
        a(i)
    nxt = [[f"s_add_u32 s{sSlot}, s{sSlot}, {SLOT}",
            f"s_cmp_eq_u32 s{sSlot}, {SLOT*NSLOT}",
            f"s_cselect_b32 s{sSlot}, 0, s{sSlot}"],
           f"v_add_u32 v{vCb}, s{sSlot}, v{vCb0}",
           f"v_add_u32 v{vXb}, s{sSlot}, v{vXb0}",
           f"v_add_u32 v{vXb+1}, s{sSlot}, v{vXb0+1}"]
    for i in flat(nxt):
        a(i)
    a.label("L_k1_loop")
    for s in range(2):
        a("s_waitcnt lgkmcnt(0)")
        a("s_barrier")
        trace()
        fill = frag_reads(1 - s, vCb, vXb) + nxt
        if s == 1:
            fill += [[f"s_add_u32 s{sIt}, s{sIt}, 1", f"s_cmp_lt_u32 s{sIt}, {NSTAGE//2}"]]
        for i in interleave(mfmas(s), fill, per=OPT("PER", 1)):
            a(i)
    a("s_cbranch_scc1 L_k1_loop")
    st()
    a("s_waitcnt lgkmcnt(0)")
    a("s_barrier")
    a(f"s_mul_i32 s{sT0}, s{sW}, 14336")
    a(f"s_xor_b32 s{sT1}, s{sW}, 1")
    a(f"s_mul_i32 s{sT1}, s{sT1}, 14336")
    a(f"v_lshlrev_b32 v{vT}, 4, v{vLane}")
    a(f"v_add_u32 v{vT+1}, s{sT1}, v{vT}")
    a(f"v_add_u32 v{vT}, s{sT0}, v{vT}")
    a(f"s_cmp_eq_u32 s{sWk}, 0")
    a("s_cbranch_scc0 L_k1_epi1")
    for wk in range(2):
        if wk == 1:
            a.label("L_k1_epi1")
        give, keep = 1 - wk, wk
        idx = 0
        for m in range(7):
            for pq in range(2):
                r = acc(m, pq * 2 + give)
                a(f"ds_write_b128 v{vT}, v[{r}:{r+3}] offset:{idx*1024}")
                idx += 1
        a("s_waitcnt lgkmcnt(0)")
        a("s_barrier")
        idx = 0
        for m in range(7):
            for pq in range(2):
                r = FR + idx * 4
                a(f"ds_read_b128 v[{r}:{r+3}], v{vT+1} offset:{idx*1024}")
                idx += 1
        a(f"s_lshl_b32 s{sT0}, s{sH}, 7")
        a(f"s_lshl_b32 s{sT1}, s{sRB}, 2")
        a(f"s_add_u32 s{sT0}, s{sT0}, s{sT1}")
        a(f"s_lshl_b32 s{sT1}, s{sWm}, 1")
        a(f"s_add_u32 s{sT0}, s{sT0}, s{sT1}")
        a(f"s_add_u32 s{sT0}, s{sT0}, {keep}")
        a(f"s_mul_i32 s{sT0}, s{sT0}, 28")
        a(f"s_mul_i32 s{sT1}, s{sJ}, 7")
        a(f"s_add_u32 s{sT0}, s{sT0}, s{sT1}")
        a(f"s_lshl_b32 s{sT0}, s{sT0}, 10")
        a(f"v_lshlrev_b32 v{vT+2}, 4, v{vLane}")
        a(f"v_add_u32 v{vT+3}, 4096, v{vT+2}")
        idx = 0
        for m in range(7):
            a(f"s_waitcnt lgkmcnt({12-2*m})")
            for pq in range(2):
                r = FR + idx * 4
                ac = acc(m, pq * 2 + keep)
                for k in range(4):
                    a(f"v_add_f32 v{ac+k}, v{ac+k}, v{r+k}")
                idx += 1
            p = acc(m, keep)
            q = acc(m, 2 + keep)
            o = FR + 56 + m * 4
            a(f"v_cvt_pk_bf16_f32 v{o}, v{p}, v{p+1}")
            a(f"v_cvt_pk_bf16_f32 v{o+1}, v{p+2}, v{p+3}")
            a(f"v_cvt_pk_bf16_f32 v{o+2}, v{q}, v{q+1}")
            a(f"v_cvt_pk_bf16_f32 v{o+3}, v{q+2}, v{q+3}")
            vo = vT + 2 if m < 4 else vT + 3
            a(f"buffer_store_dwordx4 v[{o}:{o+3}], v{vo}, s[{sWS}:{sWS+3}], s{sT0} offen offset:{(m%4)*1024}")
        if wk == 0:
            a("s_branch L_k1_epi2")
    a.label("L_k1_epi2")
    st()
    if OPT("STAMP"):
        a("s_waitcnt vmcnt(0)")
    st.dump(sWS, sT0, vT, sW)
    if OPT("TRACE"):
        a(f"v_writelane_b32 v{vTr}, s64, 0")
        a(f"s_lshl_b32 s{sT0}, s2, 2")
        a(f"s_add_u32 s{sT0}, s{sT0}, s{sW}")
        a(f"s_lshl_b32 s{sT0}, s{sT0}, 8")
        a(f"s_add_u32 s{sT0}, s{sT0}, {STAMP_OFF + 3 * (1 << 20)}")
        a(f"v_lshlrev_b32 v{vT}, 2, v{vLane}")
        a(f"buffer_store_dword v{vTr}, v{vT}, s[{sWS}:{sWS+3}], s{sT0} offen")
    a("s_endpgm")

    def loader_loop(tag, n, issue, stepbytes, pre_tail=None, extra=0):
        adv = [f"s_add_u32 s{sRot}, s{sRot}, 1",
               f"s_and_b32 s{sRot}, s{sRot}, 15",
               f"s_mul_i32 s{sOff}, s{sRot}, {stepbytes}",
               f"s_add_u32 s{sOff}, s{sOff}, s{sBase}",
               f"s_add_u32 s{sSlot}, s{sSlot}, {SLOT}",
               f"s_cmp_eq_u32 s{sSlot}, {SLOT*NSLOT}",
               f"s_cselect_b32 s{sSlot}, 0, s{sSlot}"]
        a(f"s_mul_i32 s{sOff}, s{sRot}, {stepbytes}")
        a(f"s_add_u32 s{sOff}, s{sOff}, s{sBase}")
        a(f"s_mov_b32 s{sSlot}, 0")
        a(f"s_mov_b32 s{sIt}, 0")
        a.label(f"L_{tag}_loop")
        a(f"s_cmp_lt_u32 s{sIt}, {PDEPTH}")
        a(f"s_cbranch_scc1 L_{tag}_issue")
        a(f"s_waitcnt vmcnt({(PDEPTH-1)*n})")
        a("s_barrier")
        a.label(f"L_{tag}_issue")
        for i in issue():
            a(i)
        for i in adv:
            a(i)
        a(f"s_add_u32 s{sIt}, s{sIt}, 1")
        a(f"s_cmp_lt_u32 s{sIt}, {NSTAGE}")
        a(f"s_cbranch_scc1 L_{tag}_loop")
        if pre_tail:
            pre_tail()
        for k in range(PDEPTH):
            a(f"s_waitcnt vmcnt({(PDEPTH-1-k)*n+extra})")
            a("s_barrier")
        a("s_barrier")

    a.label("L_k1_ldc")
    a(f"v_lshrrev_b32 v{vT}, 3, v{vLane}")
    a(f"v_lshlrev_b32 v{vT}, 12, v{vT}")
    a(f"v_and_b32 v{vT+1}, 7, v{vLane}")
    a(f"v_lshrrev_b32 v{vT+2}, 4, v{vLane}")
    a(f"v_xor_b32 v{vT+1}, v{vT+1}, v{vT+2}")
    a(f"v_lshl_add_u32 v{vO}, v{vT+1}, 4, v{vT}")
    a(f"v_xor_b32 v{vT+1}, 4, v{vT+1}")
    a(f"v_lshl_add_u32 v{vO+1}, v{vT+1}, 4, v{vT}")
    a(f"v_add_u32 v{vO+1}, {8*4096-1024}, v{vO+1}")
    a(f"v_add_u32 v{vO+2}, {16*4096-2048}, v{vO}")
    a(f"v_add_u32 v{vO+3}, {16*4096-2048}, v{vO+1}")
    a(f"s_lshl_b32 s{sBase}, s{sRB}, 18")
    a(f"s_lshl_b32 s{sT0}, s{sH}, 11")
    a(f"s_add_u32 s{sBase}, s{sBase}, s{sT0}")
    a("s_waitcnt lgkmcnt(0)")
    srd(a, sA, 6, C_BYTES)
    srd(a, sB, 8, C_BYTES)

    def issue_c():
        ins = [f"s_add_u32 s{sOff2}, s{sOff}, {32*4096}"]
        for grp in range(4):
            s_ = sA if grp < 2 else sB
            o_ = sOff if grp % 2 == 0 else sOff2
            ins.append(f"s_add_u32 m0, s{sSlot}, {grp*4096}")
            ins.append("s_nop 0")
            for q in range(4):
                ins.append(f"buffer_load_dwordx4 v{vO+q}, s[{s_}:{s_+3}], s{o_} offen offset:{q*1024} {NTC}lds")
        return ins
    loader_loop("k1c", 16, issue_c, 128)
    a("s_endpgm")

    a.label("L_k1_ldx")
    a(f"s_mov_b32 s{sT1}, 4682")
    for q in range(14):
        if q:
            a(f"v_add_u32 v{vT}, {64*q}, v{vLane}")
            src = vT
        else:
            src = vLane
        a(f"v_mul_lo_u32 v{vT+1}, v{src}, s{sT1}")
        a(f"v_lshrrev_b32 v{vT+1}, 16, v{vT+1}")
        a(f"v_mul_u32_u24 v{vT+2}, 14, v{vT+1}")
        a(f"v_sub_u32 v{vT+2}, v{src}, v{vT+2}")
        a(f"v_lshrrev_b32 v{vT+3}, 1, v{vT+1}")
        a(f"v_and_b32 v{vT+3}, 4, v{vT+3}")
        a(f"v_xor_b32 v{vT+1}, v{vT+1}, v{vT+3}")
        a(f"v_mul_u32_u24 v{vT+1}, 896, v{vT+1}")
        a(f"v_lshl_add_u32 v{vO+q}, v{vT+2}, 4, v{vT+1}")
        if q % 4:
            a(f"v_subrev_u32 v{vO+q}, {1024*(q%4)}, v{vO+q}")
    a(f"s_mul_i32 s{sBase}, s{sH}, {1024*896}")
    a(f"s_mul_i32 s{sT0}, s{sJ}, 224")
    a(f"s_add_u32 s{sBase}, s{sBase}, s{sT0}")
    a("s_waitcnt lgkmcnt(0)")
    srd(a, sA, 4, X_BYTES)
    srd(a, sB, 10, D_BYTES)
    srd(a, sE, 12, D_BYTES)
    srd(a, sWS, 58, WS_BYTES)

    def issue_x():
        ins = []
        for q in range(14):
            if q % 4 == 0:
                ins.append(f"s_add_u32 m0, s{sSlot}, {XOFF + q*1024}")
                ins.append("s_nop 0")
            ins.append(f"buffer_load_dwordx4 v{vO+q}, s[{sA}:{sA+3}], s{sOff} offen offset:{(q%4)*1024} {NTX}lds")
        return ins
    a(f"v_and_b32 v{vT}, 15, v{vLane}")
    a(f"v_mul_u32_u24 v{vT}, 896, v{vT}")
    a(f"v_lshrrev_b32 v{vT+1}, 4, v{vLane}")
    a(f"v_lshl_add_u32 v{vT}, v{vT+1}, 3, v{vT}")
    a(f"v_lshlrev_b32 v{vT+1}, 4, v{vLane}")
    a(f"s_mul_i32 s{sT0}, s2, 9363")
    a(f"s_lshr_b32 s{sT0}, s{sT0}, 16")
    for w in range(256):
        assert (w * 9363) >> 16 == w // 7
    a(f"s_mul_i32 s{sT1}, s{sT0}, 7")
    a(f"s_sub_u32 s{sT1}, s2, s{sT1}")
    a(f"s_mul_i32 s{sT0}, s{sT0}, {16*896}")
    a(f"s_lshl_b32 s{sT1}, s{sT1}, 7")
    a(f"s_add_u32 s{sT0}, s{sT0}, s{sT1}")

    def dprep_loads():
        for i in range(4):
            r = FR + i * 4
            a(f"buffer_load_dwordx2 v[{r}:{r+1}], v{vT}, s[{sB}:{sB+3}], s{sT0} offen offset:{i*32} {NTD}")
            a(f"buffer_load_dwordx2 v[{r+2}:{r+3}], v{vT}, s[{sE}:{sE+3}], s{sT0} offen offset:{i*32} {NTD}")

    def dprep_stores():
        a(f"s_lshl_b32 s{sT0}, s2, 12")
        a(f"s_add_u32 s{sT0}, s{sT0}, {DOFF}")
        for i in range(4):
            r = FR + i * 4
            a(f"v_xor_b32 v{r+2}, 0x80008000, v{r+2}")
            a(f"v_xor_b32 v{r+3}, 0x80008000, v{r+3}")
            a(f"buffer_store_dwordx4 v[{r}:{r+3}], v{vT+1}, s[{sWS}:{sWS+3}], s{sT0} offen offset:{i*1024}")
    dprep_loads()
    loader_loop("k1x", 14, issue_x, 64 * 896, dprep_stores, 4)
    a.label("L_k1_done")
    a("s_endpgm")
    return name, 228, 0, NSLOT * SLOT + 256, 384


def main():
    a = Asm()
    a.raw('.amdgcn_target "amdgcn-amd-amdhsa--gfx950"')
    a.raw(".text")
    ks = [gen_k1(a), G.gen_k2(a)]
    seq = os.environ.get("SEQ", "12")
    if "E" in seq:
        a.raw(".globl fnet_e_kernel\n.p2align 8\n.type fnet_e_kernel,@function\nfnet_e_kernel:\n    s_endpgm")
        ks.append(("fnet_e_kernel", 8, 0, 0, 64))
    idx = {"1": 0, "2": 1, "E": 2}
    if "S" in seq:
        a.raw(".globl fnet_s_kernel\n.p2align 8\n.type fnet_s_kernel,@function\nfnet_s_kernel:")
        a("s_mov_b32 s4, 0")
        for r in range(12):
            a(f"v_mov_b32 v{r}, 0")
        a.label("L_s_loop")
        for r in range(8):
            a("v_mfma_f32_16x16x32_bf16 v[0:3], v[4:7], v[8:11], v[0:3]")
        a("s_add_u32 s4, s4, 1")
        a(f"s_cmp_lt_u32 s4, {OPT('SITER', 200)}")
        a("s_cbranch_scc1 L_s_loop")
        a("s_endpgm")
        idx["S"] = len(ks)
        ks.append(("fnet_s_kernel", 16, 0, 0, 256))
    for tag, order, reps in (("L", "lin", 1), ("R", "row", 1), ("H", "lin", 8), ("G", "row", 8)):
        if tag not in seq:
            continue
        nm = f"fnet_r{tag}_kernel"
        a.raw(f".globl {nm}\n.p2align 8\n.type {nm},@function\n{nm}:")
        a("s_cmp_ge_u32 s2, 256")
        a(f"s_cbranch_scc1 L_{nm}_end")
        a("s_load_dwordx4 s[4:7], s[0:1], 8")
        a("v_lshrrev_b32 v2, 6, v0")
        a("v_and_b32 v1, 63, v0")
        a("v_readfirstlane_b32 s20, v2")
        a("s_waitcnt lgkmcnt(0)")
        a("s_cmp_ge_u32 s2, 128")
        a("s_cselect_b32 s8, s6, s4")
        a("s_cselect_b32 s9, s7, s5")
        a("s_and_b32 s9, s9, 0xffff")
        a(f"s_mov_b32 s10, {C_BYTES}")
        a("s_mov_b32 s11, 0x20000")
        a("s_and_b32 s21, s2, 127")
        a("s_lshl_b32 s27, s20, 14")
        if order == "lin":
            a("s_lshl_b32 s23, s21, 16")
            a("s_lshl_b32 s24, s20, 14")
            a("s_add_u32 s23, s23, s24")
            a("v_lshlrev_b32 v3, 4, v1")
            offs = [i * 1024 for i in range(16)]
        else:
            a("s_lshr_b32 s23, s21, 3")
            a("s_lshl_b32 s23, s23, 19")
            a("s_and_b32 s24, s21, 7")
            a("s_lshl_b32 s24, s24, 9")
            a("s_add_u32 s23, s23, s24")
            a("s_lshl_b32 s24, s20, 17")
            a("s_add_u32 s23, s23, s24")
            a("v_lshrrev_b32 v3, 3, v1")
            a("v_lshlrev_b32 v3, 12, v3")
            a("v_and_b32 v4, 7, v1")
            a("v_lshl_add_u32 v3, v4, 4, v3")
            offs = [st_ * 128 + q * 8 * 4096 for st_ in range(4) for q in range(4)]
        a("s_mov_b32 s26, 0")
        a.label(f"L_{nm}_loop")
        for i, o in enumerate(offs):
            a(f"s_add_u32 s28, s23, {o}")
            a(f"s_add_u32 m0, s27, {i*1024}")
            a("s_nop 0")
            a("buffer_load_dwordx4 v3, s[8:11], s28 offen lds")
        a("s_waitcnt vmcnt(16)")
        a("s_add_u32 s26, s26, 1")
        a(f"s_cmp_lt_u32 s26, {reps}")
        a(f"s_cbranch_scc1 L_{nm}_loop")
        a("s_waitcnt vmcnt(0)")
        a.label(f"L_{nm}_end")
        a("s_endpgm")
        idx[tag] = len(ks)
        ks.append((nm, 16, 0, 131072, 256))
    if "P" in seq:
        a.raw(".globl fnet_p_kernel\n.p2align 8\n.type fnet_p_kernel,@function\nfnet_p_kernel:")
        for i in range(OPT("PADN", 1000)):
            a(f"v_mov_b32 v{i%8}, 0x12345678")
        a("s_endpgm")
        idx["P"] = len(ks)
        ks.append(("fnet_p_kernel", 16, 0, 0, 256))
    if "F" in seq:
        a.raw(".globl fnet_f_kernel\n.p2align 8\n.type fnet_f_kernel,@function\nfnet_f_kernel:\n    s_endpgm")
        idx["F"] = len(ks)
        ks.append(("fnet_f_kernel", 228, 0, 153600, 384))
    out = HEADER
    for c in seq:
        name, nv, na, lds, blk = ks[idx[c]]
        out += f"; @launch kernel={name} grid=({1 if c == 'E' else 256},1,1) block=({blk},1,1) lds={lds}\n"
    out += a.text()
    out += '.section .rodata,"a"\n'
    for name, nv, na, lds, blk in ks:
        out += G.descriptor(name, nv, na)
    path = sys.argv[1] if len(sys.argv) > 1 else "standalone__spectral_fnet__prompt.s"
    open(path, "w").write(out)


if __name__ == "__main__":
    main()
```

```python
import sys, os, math
import gen as G
from gen import OPT, Asm, Stamps, srd, interleave, flat, X_BYTES, C_BYTES, D_BYTES, DOFF, STAMP_OFF, HEADER

NSLOT, SLOT, XOFF, NSTAGE = 5, 30720, 16384, 16
ROT = OPT("ROT", 5)
PDEPTH = OPT('PDEPTH', 3)
SPIN = 1 << 16
NAME = "standalone__spectral_fnet__prompt_kernel"
DF_END = DOFF + 784 * 1024
LFOFF = DF_END
WS_BYTES = LFOFF + 32 * 128
LDS_DEC = NSLOT * SLOT
LDS_XCH = 114688
NB1 = OPT("NB1", 2)
NB2 = OPT("NB2", 6)


def gen(a):
    name = NAME
    a.raw(f".globl {name}")
    a.raw(".p2align 8")
    a.raw(f".type {name},@function")
    a.label(name)
    sA, sB, sWS, sE = 16, 20, 24, 28
    sCl, sDc = 32, 34
    sW = 36
    sT0, sT1, sT2, sT3 = 37, 38, 39, 40
    sH, sRB, sJ = 41, 42, 43
    sRot, sBase, sOff, sOff2, sSlot, sIt = 46, 47, 48, 49, 50, 51
    sFl, sLoc, sByte = 52, 53, 54
    sD0, sD1 = 60, 61
    sPQ = 62
    sPL = 63

    vLane = 1
    vT = 2
    vCb0 = 6
    vXb0 = 8
    vCb = 10
    vXb = 12
    vL16 = 14
    vO = 16
    FX, FY = 16, 52
    ACC = 88
    DFR = 144
    ACC2 = 88
    PB = 16

    def cfrag(b, n):
        return b + n * 4

    def xfrag(b, m):
        return b + 8 + m * 4

    def acc(m, n):
        return ACC + (m * 2 + n) * 4

    def df(ml, e):
        return DFR + (ml * 2 + e) * 4

    st = Stamps(a, 64, 0)
    a("s_cmp_ge_u32 s2, 256")
    a("s_cbranch_scc1 L_done")
    st()
    a("s_load_dwordx8 s[4:11], s[0:1], 0")
    a("s_load_dwordx4 s[12:15], s[0:1], 32")
    a("s_load_dwordx4 s[56:59], s[0:1], 48")
    a(f"v_lshrrev_b32 v{vT}, 6, v0")
    a(f"v_and_b32 v{vLane}, 63, v0")
    a(f"v_readfirstlane_b32 s{sW}, v{vT}")
    a(f"s_and_b32 s{sT0}, s2, 7")
    a(f"s_lshr_b32 s{sT1}, s2, 3")
    a(f"s_and_b32 s{sJ}, s{sT1}, 3")
    a(f"s_lshr_b32 s{sH}, s{sT1}, 2")
    a(f"s_and_b32 s{sH}, s{sH}, 1")
    a(f"s_lshr_b32 s{sRot}, s{sT1}, 3")
    a(f"s_lshl_b32 s{sRB}, s{sRot}, 3")
    a(f"s_add_u32 s{sRB}, s{sRB}, s{sT0}")
    if ROT == 2:
        a(f"s_add_u32 s{sRot}, s{sRot}, s{sJ}")
        a(f"s_lshl_b32 s{sRot}, s{sRot}, 2")
    elif ROT == 5:
        a(f"s_lshl_b32 s{sRot}, s{sRot}, 2")
        a(f"s_lshr_b32 s{sT2}, s{sJ}, 1")
        a(f"s_lshl_b32 s{sT2}, s{sT2}, 3")
        a(f"s_add_u32 s{sRot}, s{sRot}, s{sT2}")
    elif ROT == 1:
        a(f"s_lshl_b32 s{sRot}, s{sRot}, 2")
    else:
        a(f"s_mov_b32 s{sRot}, 0")
    a(f"s_and_b32 s{sRot}, s{sRot}, 15")
    a(f"v_lshlrev_b32 v{vL16}, 4, v{vLane}")
    a(f"s_cmp_eq_u32 s{sW}, 4")
    a("s_cbranch_scc1 L_ldc")
    a(f"s_cmp_eq_u32 s{sW}, 5")
    a("s_cbranch_scc1 L_ldx")
    a(f"s_cmp_ge_u32 s{sW}, 6")
    a("s_cbranch_scc1 L_aux")

    def p2_offsets():
        a(f"s_and_b32 s{sT0}, s{sW}, 1")
        a(f"s_mul_i32 s{sT0}, s{sT0}, 14")
        a(f"s_lshr_b32 s{sT1}, s{sW}, 1")
        a(f"s_mul_i32 s{sT2}, s{sT1}, 56")
        a(f"s_add_u32 s{sT0}, s{sT0}, s{sT2}")
        a(f"s_mul_i32 s{sT2}, s{sJ}, 196")
        a(f"s_add_u32 s{sT0}, s{sT0}, s{sT2}")
        a(f"s_lshl_b32 s{sT0}, s{sT0}, 10")
        a(f"s_add_u32 s{sD0}, s{sT0}, {DOFF}")
        a(f"s_add_u32 s{sD1}, s{sT0}, {DOFF + 28*1024}")
        a(f"s_cmp_eq_u32 s{sT1}, 3")
        a(f"s_cselect_b32 s{sD1}, 0x7f000000, s{sD1}")
        a(f"s_and_b32 s{sT0}, s{sW}, 3")
        a(f"s_lshr_b32 s{sT1}, s{sW}, 2")
        a(f"s_mul_i32 s{sT1}, s{sT1}, 14")
        a(f"s_mul_i32 s{sPL}, s{sT0}, 28")
        a(f"s_add_u32 s{sPL}, s{sPL}, s{sT1}")
        a(f"s_lshl_b32 s{sPL}, s{sPL}, 10")
        a(f"s_lshr_b32 s{sT2}, s{sT0}, 1")
        a(f"s_lshl_b32 s{sT2}, s{sT2}, 7")
        a(f"s_and_b32 s{sT0}, s{sT0}, 1")
        a(f"s_add_u32 s{sT0}, s{sT0}, s{sT2}")
        a(f"s_lshl_b32 s{sT2}, s{sRB}, 2")
        a(f"s_add_u32 s{sT0}, s{sT0}, s{sT2}")
        a(f"s_lshl_b32 s{sT2}, s{sH}, 1")
        a(f"s_add_u32 s{sT0}, s{sT0}, s{sT2}")
        a(f"s_mul_i32 s{sT0}, s{sT0}, 28")
        a(f"s_add_u32 s{sT0}, s{sT0}, s{sT1}")
        a(f"s_lshl_b32 s{sPQ}, s{sT0}, 10")

    def dloads(q):
        ins = []
        idx = list(range(q * 7, q * 7 + 7))
        for t in idx:
            ml, e = t >> 1, t & 1
            r = df(ml, e)
            grp, off = ml // 4, (ml % 4) * 1024
            ins.append((grp, f"buffer_load_dwordx4 v[{r}:{r+3}], v{{V}}, s[{sWS}:{sWS+3}], s{sD0+e} offen offset:{off} sc1"))
        out = []
        for grp, i in ins:
            out.append(i.replace("{V}", str(vT + grp)))
        return out

    def dload_setup():
        a(f"v_mov_b32 v{vT}, v{vL16}")
        for g_ in range(1, 4):
            a(f"v_add_u32 v{vT+g_}, {4096*g_}, v{vL16}")

    a(f"v_and_b32 v{vT}, 15, v{vLane}")
    a(f"v_lshrrev_b32 v{vT+1}, 4, v{vLane}")
    a(f"v_lshrrev_b32 v{vT+3}, 1, v{vT}")
    a(f"v_xor_b32 v{vT+2}, v{vT+1}, v{vT+3}")
    a(f"v_lshlrev_b32 v{vT+2}, 4, v{vT+2}")
    a(f"v_lshl_add_u32 v{vCb0}, v{vT}, 7, v{vT+2}")
    a(f"s_lshl_b32 s{sT0}, s{sW}, 11")
    a(f"v_add_u32 v{vCb0}, s{sT0}, v{vCb0}")
    a(f"v_xor_b32 v{vCb0+1}, 64, v{vCb0}")
    a(f"v_lshlrev_b32 v{vT+2}, 3, v{vT+1}")
    a(f"v_lshrrev_b32 v{vT+3}, 2, v{vT}")
    a(f"v_add_u32 v{vT+2}, v{vT+2}, v{vT+3}")
    a(f"v_and_b32 v{vT+3}, 1, v{vT+1}")
    a(f"v_lshlrev_b32 v{vT+3}, 2, v{vT+3}")
    a(f"v_add_u32 v{vXb0}, v{vT+2}, v{vT+3}")
    a(f"v_xor_b32 v{vT+3}, 4, v{vT+3}")
    a(f"v_add_u32 v{vXb0+1}, v{vT+2}, v{vT+3}")
    a(f"v_and_b32 v{vT}, 3, v{vT}")
    a(f"v_lshlrev_b32 v{vT}, 3, v{vT}")
    a(f"v_add_u32 v{vT}, {XOFF}, v{vT}")
    a(f"v_mov_b32 v{vT+1}, 224")
    a(f"v_mad_u32_u24 v{vXb0}, v{vXb0}, v{vT+1}, v{vT}")
    a(f"v_mad_u32_u24 v{vXb0+1}, v{vXb0+1}, v{vT+1}, v{vT}")
    for r in range(36 + 56):
        a(f"v_mov_b32 v{FY+r}, 0")
    for r in range(2):
        a(f"v_mov_b32 v{vCb+r}, v{vCb0+r}")
        a(f"v_mov_b32 v{vXb+r}, v{vXb0+r}")
    a(f"v_add_u32 v{vL16+1}, 4096, v{vL16}")
    a(f"s_lshl_b32 s{sOff}, s{sH}, 7")
    a(f"s_lshl_b32 s{sT1}, s{sRB}, 2")
    a(f"s_add_u32 s{sOff}, s{sOff}, s{sT1}")
    a(f"s_add_u32 s{sOff}, s{sOff}, s{sW}")
    a(f"s_mul_i32 s{sOff}, s{sOff}, 28")
    a(f"s_mul_i32 s{sT1}, s{sJ}, 7")
    a(f"s_add_u32 s{sOff}, s{sOff}, s{sT1}")
    a(f"s_lshl_b32 s{sOff}, s{sOff}, 10")
    p2_offsets()
    dload_setup()
    a("s_waitcnt lgkmcnt(0)")
    srd(a, sWS, 58, WS_BYTES)

    def frag_reads(b, kk):
        ins = []

        def xr(m):
            return [f"ds_read_b64_tr_b16 v[{xfrag(b,m)}:{xfrag(b,m)+1}], v{vXb} offset:{m*32+kk*7168}",
                    f"ds_read_b64_tr_b16 v[{xfrag(b,m)+2}:{xfrag(b,m)+3}], v{vXb+1} offset:{m*32+kk*7168}"]
        ins += xr(0)
        for n in range(2):
            ins.append(f"ds_read_b128 v[{cfrag(b,n)}:{cfrag(b,n)+3}], v{vCb+kk} offset:{n*8192}")
        for m in range(1, 7):
            ins += xr(m)
        return ins

    def mfmas(b):
        return [f"v_mfma_f32_16x16x32_bf16 v[{acc(m,n)}:{acc(m,n)+3}], v[{xfrag(b,m)}:{xfrag(b,m)+3}], "
                f"v[{cfrag(b,n)}:{cfrag(b,n)+3}], v[{acc(m,n)}:{acc(m,n)+3}]"
                for m in range(7) for n in range(2)]

    a(f"s_mov_b32 s{sSlot}, 0")
    a(f"s_mov_b32 s{sIt}, 0")
    if OPT("TRACE"):
        a("s_mov_b32 s98, 5")
    DIT = OPT("DIT", 0)
    a.label("L_loop")
    a("s_waitcnt lgkmcnt(0)")
    a("s_barrier")
    if DIT:
        a(f"s_cmp_eq_u32 s{sIt}, {DIT}")
        a("s_cbranch_scc1 L_dl")
        a.label("L_dl_back")
    if OPT("TRACE"):
        a("s_memtime s[96:97]")
        a("s_waitcnt lgkmcnt(0)")
        a(f"s_mov_b32 m0, s98")
        a("s_add_u32 s98, s98, 1")
        a(f"v_writelane_b32 v0, s96, m0")
    for i in interleave(mfmas(FY), frag_reads(FX, 0) + [[f"s_add_u32 s{sSlot}, s{sSlot}, {SLOT}",
                                                          f"s_cmp_eq_u32 s{sSlot}, {SLOT*NSLOT}",
                                                          f"s_cselect_b32 s{sSlot}, 0, s{sSlot}"]], per=2):
        a(i)
    a("s_waitcnt lgkmcnt(0)")
    nxt = [f"v_add_u32 v{vCb+r}, s{sSlot}, v{vCb0+r}" for r in range(2)] + \
          [f"v_add_u32 v{vXb+r}, s{sSlot}, v{vXb0+r}" for r in range(2)] + \
          [[f"s_add_u32 s{sIt}, s{sIt}, 1", f"s_cmp_lt_u32 s{sIt}, {NSTAGE}"]]
    for i in interleave(mfmas(FX), frag_reads(FY, 1) + nxt, per=2):
        a(i)
    a("s_cbranch_scc1 L_loop")
    a(f"v_mov_b32 v{vCb}, {LDS_DEC}")
    a(f"ds_read_b32 v{vCb}, v{vCb}")
    a("s_waitcnt lgkmcnt(0)")
    for i in mfmas(FY):
        a(i)
    if not OPT("FINE"):
        st()
    a(f"v_readfirstlane_b32 s{sLoc}, v{vCb}")
    a("s_nop 4")
    for m in range(7):
        p, q = acc(m, 0), acc(m, 1)
        o = FX + m * 4
        a(f"v_cvt_pk_bf16_f32 v{o}, v{p}, v{p+1}")
        a(f"v_cvt_pk_bf16_f32 v{o+1}, v{p+2}, v{p+3}")
        a(f"v_cvt_pk_bf16_f32 v{o+2}, v{q}, v{q+1}")
        a(f"v_cvt_pk_bf16_f32 v{o+3}, v{q+2}, v{q+3}")
    a(f"s_cmp_eq_u32 s{sLoc}, 1")
    a("s_cbranch_scc1 L_st_loc")
    for loc in range(2):
        if loc:
            a.label("L_st_loc")
        for m in range(7):
            o = FX + m * 4
            a(f"buffer_store_dwordx4 v[{o}:{o+3}], v{vL16 + (m // 4)}, s[{sWS}:{sWS+3}], s{sOff} offen offset:{(m%4)*1024} {'' if loc else 'sc1'}")
        if not loc:
            a("s_branch L_st_done")
    a.label("L_st_done")
    if DIT:
        a("s_waitcnt vmcnt(0)")
        a("s_branch L_p2")
        a.label("L_dl")
        for q in range(4):
            for i in dloads(q):
                a(i)
        a("s_branch L_dl_back")
    elif OPT("DLATE", 1):
        a("s_waitcnt vmcnt(0)")
        a("s_barrier")
        for q in range(4):
            for i in dloads(q):
                a(i)
        a("s_branch L_p2_after")
    else:
        for q in range(4):
            for i in dloads(q):
                a(i)
        a("s_waitcnt vmcnt(28)")

    a.label("L_p2")
    a("s_barrier")
    a.label("L_p2_after")
    if not OPT("FINE"):
        st()
    a(f"v_mov_b32 v{vCb}, {LDS_DEC}")
    a(f"ds_read_b32 v{vCb}, v{vCb}")
    for r in range(16):
        a(f"v_mov_b32 v{ACC2+r}, 0")
    a("s_waitcnt lgkmcnt(0)")
    a(f"v_readfirstlane_b32 s{sLoc}, v{vCb}")
    a(f"s_cmp_eq_u32 s{sW}, 6")
    a("s_cbranch_scc0 L_p2_wait")
    a(f"v_mov_b32 v{vT}, 0")
    a(f"s_mov_b32 s{sIt}, 0")
    a(f"s_cmp_eq_u32 s{sLoc}, 1")
    a("s_cbranch_scc1 L_pub_loc")
    a(f"s_mov_b32 s{sT0}, 0x10000000")
    a(f"s_atomic_add s{sT0}, s[{sCl}:{sCl+1}], 0")
    a.label("L_poll2")
    a(f"s_mov_b32 s{sT0}, 0")
    a(f"s_atomic_add s{sT0}, s[{sCl}:{sCl+1}], 0 glc")
    a("s_waitcnt lgkmcnt(0)")
    a(f"s_add_u32 s{sIt}, s{sIt}, 1")
    a(f"s_lshr_b32 s{sT0}, s{sT0}, 28")
    a(f"s_cmp_eq_u32 s{sT0}, 8")
    a("s_cbranch_scc1 L_poll_done")
    a("s_sleep 16")
    a(f"s_cmp_lt_u32 s{sIt}, {SPIN}")
    a("s_cbranch_scc1 L_poll2")
    a("s_branch L_poll_done")
    a.label("L_pub_loc")
    a(f"s_lshl_b32 s{sT1}, s{sRB}, 7")
    a(f"s_add_u32 s{sT1}, s{sT1}, {LFOFF}")
    a(f"s_and_b32 s{sT0}, s{sFl}, 7")
    a(f"s_lshl_b32 s{sT0}, s{sT0}, 2")
    a(f"s_add_u32 s{sT0}, s{sT0}, s{sT1}")
    a(f"v_mov_b32 v{vT+1}, 1")
    a(f"v_lshlrev_b32 v{vT+3}, 2, v{vLane}")
    a("s_mov_b64 exec, 1")
    a(f"buffer_store_dword v{vT+1}, v{vT}, s[{sWS}:{sWS+3}], s{sT0} offen")
    a("s_mov_b64 exec, 0xff")
    a.label("L_poll3")
    a(f"buffer_load_dword v{vT+2}, v{vT+3}, s[{sWS}:{sWS+3}], s{sT1} offen sc1")
    a("s_waitcnt vmcnt(0)")
    a(f"v_cmp_ne_u32 vcc, 1, v{vT+2}")
    a(f"s_add_u32 s{sIt}, s{sIt}, 1")
    a("s_nop 3")
    a("s_cmp_eq_u64 vcc, 0")
    a("s_cbranch_scc1 L_poll_done")
    a(f"s_cmp_lt_u32 s{sIt}, {SPIN}")
    a("s_cbranch_scc1 L_poll3")
    a.label("L_poll_done")
    a("s_mov_b64 exec, -1")
    a.label("L_p2_wait")
    a(f"s_and_b32 s{sT0}, s{sW}, 1")
    a(f"s_mul_i32 s{sT0}, s{sT0}, 14336")
    a(f"v_add_u32 v{vCb}, s{sT0}, v{vL16}")
    a(f"v_add_u32 v{vCb+1}, 57344, v{vCb}")
    if OPT("WDRAIN"):
        a("s_waitcnt vmcnt(0)")
    a("s_barrier")
    st()
    RB_ = [int(x) for x in os.environ.get("RNDS", "0,2,5,8,11,14").split(",")]
    AHEAD = OPT("AHEAD", 2)

    def pqdma(rnd):
        if rnd >= len(RB_) - 1:
            return
        lo, hi = RB_[rnd], RB_[rnd + 1]
        for i in range(lo, hi):
            if (i - lo) % 4 == 0:
                a(f"s_add_u32 m0, s{sPL}, {i*1024}")
                a(f"s_add_u32 s{sT1}, s{sPQ}, {i*1024}")
            a(f"buffer_load_dwordx4 v{vL16}, s[{sWS}:{sWS+3}], s{sT1} offen offset:{((i-lo)%4)*1024} {'' if OPT('PQPLAIN') else 'sc1 '}lds")
    for r_ in range(AHEAD):
        pqdma(r_)

    def preads(ml):
        b = PB + (ml % 3) * 16
        return [f"ds_read_b128 v[{b+(hh*2+tl)*4}:{b+(hh*2+tl)*4+3}], v{vCb+hh} offset:{(tl*28+ml)*1024}"
                for hh in range(2) for tl in range(2)]

    def mf2(ml):
        b = PB + (ml % 3) * 16
        return [f"v_mfma_f32_16x16x32_bf16 v[{ACC2+(e*2+tl)*4}:{ACC2+(e*2+tl)*4+3}], v[{df(ml,e)}:{df(ml,e)+3}], "
                f"v[{b+(hh*2+tl)*4}:{b+(hh*2+tl)*4+3}], v[{ACC2+(e*2+tl)*4}:{ACC2+(e*2+tl)*4+3}]"
                for hh in range(2) for e in range(2) for tl in range(2)]

    for rnd in range(len(RB_) - 1):
        lo, hi = RB_[rnd], RB_[rnd + 1]
        issued = RB_[min(rnd + AHEAD, len(RB_) - 1)]
        if OPT("FINE") and rnd < 2:
            st()
        a(f"s_waitcnt vmcnt({issued-hi})")
        a("s_barrier")
        if OPT("FINE") and rnd < 2:
            st()
            a("s_waitcnt lgkmcnt(0)")
        for i in preads(lo) + preads(lo + 1):
            a(i)
        pqdma(rnd + AHEAD)
        for ml in range(lo, hi):
            nxt_ = preads(ml + 2) if ml + 2 < hi else []
            a(f"s_waitcnt lgkmcnt({4 if ml + 1 < hi else 0})")
            for i in interleave(mf2(ml), nxt_, per=1):
                a(i)
    st()
    a(f"s_lshl_b32 s{sT0}, s{sW}, 11")
    a(f"s_add_u32 s{sT0}, s{sT0}, {LDS_XCH}")
    a(f"s_xor_b32 s{sT1}, s{sT0}, 2048")
    a(f"v_add_u32 v{vT}, s{sT0}, v{vL16}")
    a(f"v_add_u32 v{vT+1}, s{sT1}, v{vL16}")
    srd(a, sA, 14, X_BYTES)
    a(f"v_and_b32 v{vT+2}, 15, v{vLane}")
    a(f"v_mul_u32_u24 v{vT+2}, 896, v{vT+2}")
    a(f"v_lshrrev_b32 v{vT+3}, 4, v{vLane}")
    a(f"v_lshl_add_u32 v{vT+2}, v{vT+3}, 3, v{vT+2}")
    a(f"s_lshl_b32 s{sT0}, s{sRB}, 6")
    a(f"s_lshl_b32 s{sT1}, s{sH}, 5")
    a(f"s_add_u32 s{sT0}, s{sT0}, s{sT1}")
    a(f"s_and_b32 s{sT2}, s{sW}, 1")
    a(f"s_lshl_b32 s{sT1}, s{sT2}, 4")
    a(f"s_add_u32 s{sT0}, s{sT0}, s{sT1}")
    a(f"s_mul_i32 s{sT0}, s{sT0}, 896")
    a(f"s_mul_i32 s{sT1}, s{sJ}, 224")
    a(f"s_add_u32 s{sT0}, s{sT0}, s{sT1}")
    a(f"s_lshr_b32 s{sT1}, s{sW}, 1")
    a(f"s_lshl_b32 s{sT1}, s{sT1}, 6")
    a(f"s_add_u32 s{sT0}, s{sT0}, s{sT1}")
    a(f"s_cmp_eq_u32 s{sT2}, 0")
    a("s_cbranch_scc1 L_x0")
    for e in range(2):
        for k in range(4):
            a(f"v_swap_b32 v{ACC2+(e*2)*4+k}, v{ACC2+(e*2+1)*4+k}")
    a.label("L_x0")
    for e in range(2):
        r = ACC2 + (e * 2 + 1) * 4
        a(f"ds_write_b128 v{vT}, v[{r}:{r+3}] offset:{e*1024}")
    a("s_waitcnt lgkmcnt(0)")
    a("s_barrier")
    for e in range(2):
        a(f"ds_read_b128 v[{PB+e*4}:{PB+e*4+3}], v{vT+1} offset:{e*1024}")
    for e in range(2):
        if e == 1:
            a(f"s_cmp_ge_u32 s{sW}, 6")
            a("s_cbranch_scc1 L_fin")
        a(f"s_waitcnt lgkmcnt({1-e})")
        r = ACC2 + (e * 2) * 4
        for k in range(4):
            a(f"v_add_f32 v{r+k}, v{r+k}, v{PB+e*4+k}")
        a(f"v_cvt_pk_bf16_f32 v{PB+8+e*2}, v{r}, v{r+1}")
        a(f"v_cvt_pk_bf16_f32 v{PB+9+e*2}, v{r+2}, v{r+3}")
        a(f"buffer_store_dwordx2 v[{PB+8+e*2}:{PB+9+e*2}], v{vT+2}, s[{sA}:{sA+3}], s{sT0} offen offset:{e*32}")
    a.label("L_fin")
    if OPT("STAMP"):
        a(f"s_cmp_ge_u32 s{sW}, 4")
        a("s_cbranch_scc1 L_done")
        a("s_waitcnt vmcnt(0)")
        st.dump(sWS, sT0, vT, sW)
    if OPT("TRACE"):
        a(f"v_writelane_b32 v0, s64, 0")
        a(f"s_lshl_b32 s{sT0}, s2, 2")
        a(f"s_add_u32 s{sT0}, s{sT0}, s{sW}")
        a(f"s_lshl_b32 s{sT0}, s{sT0}, 8")
        a(f"s_add_u32 s{sT0}, s{sT0}, {STAMP_OFF + 3 * (1 << 20)}")
        a(f"v_lshlrev_b32 v{vT}, 2, v{vLane}")
        a(f"buffer_store_dword v0, v{vT}, s[{sWS}:{sWS+3}], s{sT0} offen")
    a("s_endpgm")

    def loader_loop(tag, n, issue, stepbytes):
        adv = [f"s_add_u32 s{sRot}, s{sRot}, 1",
               f"s_and_b32 s{sRot}, s{sRot}, 15",
               f"s_mul_i32 s{sOff}, s{sRot}, {stepbytes}",
               f"s_add_u32 s{sOff}, s{sOff}, s{sBase}",
               f"s_add_u32 s{sSlot}, s{sSlot}, {SLOT}",
               f"s_cmp_eq_u32 s{sSlot}, {SLOT*NSLOT}",
               f"s_cselect_b32 s{sSlot}, 0, s{sSlot}"]
        a(f"s_mul_i32 s{sOff}, s{sRot}, {stepbytes}")
        a(f"s_add_u32 s{sOff}, s{sOff}, s{sBase}")
        a(f"s_mov_b32 s{sSlot}, 0")
        a(f"s_mov_b32 s{sIt}, 0")
        a.label(f"L_{tag}_loop")
        a(f"s_cmp_lt_u32 s{sIt}, {PDEPTH}")
        a(f"s_cbranch_scc1 L_{tag}_issue")
        a(f"s_waitcnt vmcnt({(PDEPTH-1)*n})")
        a("s_barrier")
        a.label(f"L_{tag}_issue")
        for i in issue():
            a(i)
        for i in adv:
            a(i)
        a(f"s_add_u32 s{sIt}, s{sIt}, 1")
        a(f"s_cmp_lt_u32 s{sIt}, {NSTAGE}")
        a(f"s_cbranch_scc1 L_{tag}_loop")
        a("s_branch L_ldtail")

    a.label("L_ldc")
    a(f"v_lshrrev_b32 v{vT}, 3, v{vLane}")
    a(f"v_lshlrev_b32 v{vT}, 12, v{vT}")
    a(f"v_and_b32 v{vT+1}, 7, v{vLane}")
    a(f"v_lshrrev_b32 v{vT+2}, 4, v{vLane}")
    a(f"v_xor_b32 v{vT+1}, v{vT+1}, v{vT+2}")
    a(f"v_lshl_add_u32 v{vO}, v{vT+1}, 4, v{vT}")
    a(f"v_xor_b32 v{vT+1}, 4, v{vT+1}")
    a(f"v_lshl_add_u32 v{vO+1}, v{vT+1}, 4, v{vT}")
    a(f"v_add_u32 v{vO+1}, {8*4096-1024}, v{vO+1}")
    a(f"v_add_u32 v{vO+2}, {16*4096-2048}, v{vO}")
    a(f"v_add_u32 v{vO+3}, {16*4096-2048}, v{vO+1}")
    a(f"s_lshl_b32 s{sBase}, s{sRB}, 18")
    a(f"s_lshl_b32 s{sT0}, s{sH}, 11")
    a(f"s_add_u32 s{sBase}, s{sBase}, s{sT0}")
    a("s_waitcnt lgkmcnt(0)")
    srd(a, sA, 6, C_BYTES)
    srd(a, sB, 8, C_BYTES)

    def issue_c():
        ins = [f"s_add_u32 s{sOff2}, s{sOff}, {32*4096}"]
        for grp in range(4):
            s_ = sA if grp < 2 else sB
            o_ = sOff if grp % 2 == 0 else sOff2
            ins.append(f"s_add_u32 m0, s{sSlot}, {grp*4096}")
            ins.append("s_nop 0")
            for q in range(4):
                ins.append(f"buffer_load_dwordx4 v{vO+q}, s[{s_}:{s_+3}], s{o_} offen offset:{q*1024} lds")
        return ins
    loader_loop("ldc", 16, issue_c, 128)

    a.label("L_ldx")
    a(f"s_mov_b32 s{sT1}, 4682")
    for q in range(14):
        if q:
            a(f"v_add_u32 v{vT}, {64*q}, v{vLane}")
            src = vT
        else:
            src = vLane
        a(f"v_mul_lo_u32 v{vT+1}, v{src}, s{sT1}")
        a(f"v_lshrrev_b32 v{vT+1}, 16, v{vT+1}")
        a(f"v_mul_u32_u24 v{vT+2}, 14, v{vT+1}")
        a(f"v_sub_u32 v{vT+2}, v{src}, v{vT+2}")
        a(f"v_lshrrev_b32 v{vT+3}, 1, v{vT+1}")
        a(f"v_and_b32 v{vT+3}, 4, v{vT+3}")
        a(f"v_xor_b32 v{vT+1}, v{vT+1}, v{vT+3}")
        a(f"v_mul_u32_u24 v{vT+1}, 896, v{vT+1}")
        a(f"v_lshl_add_u32 v{vO+q}, v{vT+2}, 4, v{vT+1}")
        if q % 4:
            a(f"v_subrev_u32 v{vO+q}, {1024*(q%4)}, v{vO+q}")
    a(f"s_mul_i32 s{sBase}, s{sH}, {1024*896}")
    a(f"s_mul_i32 s{sT0}, s{sJ}, 224")
    a(f"s_add_u32 s{sBase}, s{sBase}, s{sT0}")
    a("s_waitcnt lgkmcnt(0)")
    srd(a, sA, 4, X_BYTES)

    def issue_x():
        ins = []
        for q in range(14):
            if q % 4 == 0:
                ins.append(f"s_add_u32 m0, s{sSlot}, {XOFF + q*1024}")
                ins.append("s_nop 0")
            ins.append(f"buffer_load_dwordx4 v{vO+q}, s[{sA}:{sA+3}], s{sOff} offen offset:{(q%4)*1024} lds")
        return ins
    loader_loop("ldx", 14, issue_x, 64 * 896)

    a.label("L_ldtail")
    srd(a, sWS, 58, WS_BYTES)
    p2_offsets()
    dload_setup()
    assert PDEPTH == 3
    DS = [int(c) for c in os.environ.get("DSCHED", "022")]
    assert sum(DS) == 4
    nd = 0
    for k in range(PDEPTH):
        a(f"s_waitcnt vmcnt({(PDEPTH-1-k)*14 + 7*nd})")
        a("s_barrier")
        for q in range(nd, nd + DS[k]):
            for i in dloads(q):
                a(i)
        nd += DS[k]
    a("s_branch L_p2")

    a.label("L_aux")
    a(f"s_lshl_b32 s{sFl}, s{sRB}, 3")
    a(f"s_lshl_b32 s{sT0}, s{sH}, 2")
    a(f"s_add_u32 s{sFl}, s{sFl}, s{sT0}")
    a(f"s_add_u32 s{sFl}, s{sFl}, s{sJ}")
    a(f"s_mov_b32 s{sIt}, 0")
    a("s_waitcnt lgkmcnt(0)")
    srd(a, sWS, 58, WS_BYTES)
    a(f"s_cmp_eq_u32 s{sW}, 7")
    a("s_cbranch_scc1 L_aux7")
    a(f"v_and_b32 v{vT}, 15, v{vLane}")
    a(f"v_mul_u32_u24 v{vT}, 896, v{vT}")
    a(f"v_lshrrev_b32 v{vT+1}, 4, v{vLane}")
    a(f"v_lshl_add_u32 v{vT}, v{vT+1}, 3, v{vT}")
    a(f"s_mul_i32 s{sT0}, s{sFl}, 9363")
    a(f"s_lshr_b32 s{sT0}, s{sT0}, 16")
    a(f"s_mul_i32 s{sT1}, s{sT0}, 7")
    a(f"s_sub_u32 s{sT1}, s{sFl}, s{sT1}")
    a(f"s_mul_i32 s{sT0}, s{sT0}, {16*896}")
    a(f"s_lshl_b32 s{sT1}, s{sT1}, 7")
    a(f"s_add_u32 s{sT0}, s{sT0}, s{sT1}")
    srd(a, sB, 10, D_BYTES)
    srd(a, sE, 12, D_BYTES)
    for i in range(4):
        r = FX + i * 4
        a(f"buffer_load_dwordx2 v[{r}:{r+1}], v{vT}, s[{sB}:{sB+3}], s{sT0} offen offset:{i*32}")
        a(f"buffer_load_dwordx2 v[{r+2}:{r+3}], v{vT}, s[{sE}:{sE+3}], s{sT0} offen offset:{i*32}")
    a(f"s_lshl_b32 s{sT1}, s{sRB}, 7")
    a(f"s_and_b32 s{sT2}, s{sFl}, 7")
    a(f"s_lshl_b32 s{sT2}, s{sT2}, 2")
    a(f"s_add_u32 s{sT1}, s{sT1}, s{sT2}")
    a(f"s_add_u32 s{sT1}, s{sT1}, {LFOFF}")
    a(f"v_mov_b32 v{vT+2}, 0")
    a("s_mov_b64 exec, 1")
    a(f"buffer_store_dword v{vT+2}, v{vT+2}, s[{sWS}:{sWS+3}], s{sT1} offen")
    a("s_mov_b64 exec, -1")
    a(f"s_getreg_b32 s{sByte}, hwreg(HW_REG_XCC_ID)")
    a(f"s_and_b32 s{sByte}, s{sByte}, 7")
    a(f"s_lshr_b32 s{sT1}, s{sRB}, 3")
    a(f"s_lshl_b32 s{sT1}, s{sT1}, 6")
    a(f"s_and_b32 s{sT2}, s{sRB}, 7")
    a(f"s_lshl_b32 s{sT2}, s{sT2}, 2")
    a(f"s_add_u32 s{sT1}, s{sT1}, s{sT2}")
    a(f"s_add_u32 s{sT1}, s{sT1}, 32")
    a(f"s_add_u32 s{sCl}, s56, s{sT1}")
    a(f"s_addc_u32 s{sCl+1}, s57, 0")
    a(f"s_cmp_ge_u32 s{sFl}, 196")
    a("s_cbranch_scc1 L_aux_nod")
    a(f"s_lshl_b32 s{sT0}, s{sFl}, 12")
    a(f"s_add_u32 s{sT0}, s{sT0}, {DOFF}")
    a("s_waitcnt vmcnt(0)")
    for i in range(4):
        r = FX + i * 4
        a(f"v_xor_b32 v{r+2}, 0x80008000, v{r+2}")
        a(f"v_xor_b32 v{r+3}, 0x80008000, v{r+3}")
        a(f"buffer_store_dwordx4 v[{r}:{r+3}], v{vL16}, s[{sWS}:{sWS+3}], s{sT0} offen offset:{i*1024} sc1")
    a.label("L_aux_nod")
    for k in range(NB1):
        a("s_barrier")
    a("s_waitcnt vmcnt(0)")
    a(f"s_and_b32 s{sT0}, s{sFl}, 7")
    a(f"s_mul_i32 s{sT0}, s{sT0}, 3")
    a(f"s_lshl_b32 s{sT0}, s{sByte}, s{sT0}")
    a(f"s_add_u32 s{sT0}, s{sT0}, 0x1000000")
    a(f"s_atomic_add s{sT0}, s[{sCl}:{sCl+1}], 0")
    a(f"s_cmp_ge_u32 s{sFl}, 196")
    a("s_cbranch_scc1 L_aux_nod2")
    a(f"s_mul_i32 s{sT1}, s{sFl}, 1338")
    a(f"s_lshr_b32 s{sT1}, s{sT1}, 16")
    a(f"s_lshl_b32 s{sT1}, s{sT1}, 6")
    a(f"s_add_u32 s{sDc}, s56, s{sT1}")
    a(f"s_addc_u32 s{sDc+1}, s57, 0")
    a(f"s_mov_b32 s{sT1}, 1")
    a(f"s_atomic_add s{sT1}, s[{sDc}:{sDc+1}], 0")
    a.label("L_aux_nod2")
    for k in range(NB1, NB2):
        a("s_barrier")
    a("s_waitcnt lgkmcnt(0)")
    a(f"s_lshl_b32 s{sT1}, s{sJ}, 6")
    a(f"s_add_u32 s{sDc}, s56, s{sT1}")
    a(f"s_addc_u32 s{sDc+1}, s57, 0")
    a(f"s_mov_b32 s{sT2}, 0")
    a(f"s_mov_b32 s{sT3}, 0")
    a(f"s_atomic_add s{sT2}, s[{sCl}:{sCl+1}], 0 glc")
    a(f"s_atomic_add s{sT3}, s[{sDc}:{sDc+1}], 0 glc")
    a("s_barrier")
    a("s_barrier")
    a.label("L_poll1")
    a("s_waitcnt lgkmcnt(0)")
    a(f"s_add_u32 s{sIt}, s{sIt}, 1")
    a(f"s_lshr_b32 s{sT0}, s{sT2}, 24")
    a(f"s_and_b32 s{sT0}, s{sT0}, 15")
    a(f"s_lshl_b32 s{sT0}, s{sT0}, 8")
    a(f"s_add_u32 s{sT0}, s{sT0}, s{sT3}")
    a(f"s_cmp_eq_u32 s{sT0}, {8*256+49}")
    a("s_cbranch_scc1 L_poll1_done")
    a(f"s_cmp_ge_u32 s{sIt}, {SPIN}")
    a("s_cbranch_scc1 L_poll1_done")
    a("s_sleep 16")
    a(f"s_mov_b32 s{sT2}, 0")
    a(f"s_mov_b32 s{sT3}, 0")
    a(f"s_atomic_add s{sT2}, s[{sCl}:{sCl+1}], 0 glc")
    a(f"s_atomic_add s{sT3}, s[{sDc}:{sDc+1}], 0 glc")
    a("s_branch L_poll1")
    a.label("L_poll1_done")
    a(f"s_mul_i32 s{sT0}, s{sByte}, 0x249249")
    a(f"s_and_b32 s{sT2}, s{sT2}, 0xffffff")
    a(f"s_cmp_eq_u32 s{sT2}, s{sT0}")
    a(f"s_cselect_b32 s{sLoc}, {0 if OPT('FORCESLOW') else 1}, 0")
    a(f"v_mov_b32 v{vT}, {LDS_DEC}")
    a(f"v_mov_b32 v{vT+1}, s{sLoc}")
    a(f"ds_write_b32 v{vT}, v{vT+1}")
    a("s_waitcnt lgkmcnt(0)")
    a("s_branch L_aux_pre")
    a.label("L_aux7")
    if OPT("CODEPF", 1):
        a("s_getpc_b64 s[60:61]")
        a.label("L_pc")
        a(f"s_sub_u32 s60, s60, L_pc-{NAME}")
        a("s_subb_u32 s61, s61, 0")
        a(f"v_lshlrev_b32 v{vT}, 7, v{vLane}")
        a(f"v_min_u32 v{vT}, L_end-{NAME}-4, v{vT}")
        a(f"global_load_dword v{vT+2}, v{vT}, s[60:61]")
        a("s_waitcnt vmcnt(0)")
    for k in range(NB2 + 2):
        a("s_barrier")
    a.label("L_aux_pre")
    p2_offsets()
    dload_setup()
    nb = NB2 + 2
    DSTART = OPT("DSTART", NB2 + 3)
    while nb < DSTART:
        a("s_barrier")
        nb += 1
    if OPT("DPF", 1):
        a(f"s_lshr_b32 s{sT0}, s2, 5")
        a(f"s_mul_i32 s{sT0}, s{sT0}, 25088")
        a(f"s_mul_i32 s{sT1}, s{sJ}, 200704")
        a(f"s_add_u32 s{sT0}, s{sT0}, s{sT1}")
        a(f"s_add_u32 s{sT0}, s{sT0}, {DOFF}")
        a(f"s_sub_u32 s{sT1}, s{sW}, 6")
        a(f"s_lshl_b32 s{sT1}, s{sT1}, 14")
        a(f"v_lshlrev_b32 v{vCb}, 7, v{vLane}")
        a(f"v_add_u32 v{vCb}, s{sT1}, v{vCb}")
        a(f"v_add_u32 v{vCb+1}, 8192, v{vCb}")
        a(f"v_min_u32 v{vCb+1}, {25088-128}, v{vCb+1}")
        a(f"buffer_load_dword v{vXb}, v{vCb}, s[{sWS}:{sWS+3}], s{sT0} offen sc1")
        a(f"buffer_load_dword v{vXb}, v{vCb+1}, s[{sWS}:{sWS+3}], s{sT0} offen sc1")
        for k in range(OPT("DPFGAP", 2)):
            a("s_barrier")
            nb += 1
    DS2 = [int(c) for c in os.environ.get("DSCHED2", os.environ.get("DSCHED", "022"))]
    nd = 0
    while nb < 16:
        a("s_barrier")
        nb += 1
        k = nb - 1 - (16 - len(DS2))
        if k >= 0:
            for q in range(nd, nd + DS2[k]):
                for i in dloads(q):
                    a(i)
            nd += DS2[k]
    assert nd == 4
    a("s_branch L_p2")
    a.label("L_done")
    a("s_endpgm")
    a.label("L_end")
    return name, 256, 0, NSLOT * SLOT + 256, 512


def main():
    a = Asm()
    a.raw('.amdgcn_target "amdgcn-amd-amdhsa--gfx950"')
    a.raw(".text")
    name, nv, na, lds, blk = gen(a)
    out = HEADER
    out += f"; @launch grid=(256,1,1) block=({blk},1,1) lds={lds}\n"
    out += a.text()
    out += '.section .rodata,"a"\n'
    out += G.descriptor(name, nv, na)
    path = sys.argv[1] if len(sys.argv) > 1 else "standalone__spectral_fnet__prompt.s"
    open(path, "w").write(out)


if __name__ == "__main__":
    main()
```

```python
import sys, os, math
import gen as G
from gen import OPT, Asm, Stamps, srd, interleave, flat, X_BYTES, C_BYTES, D_BYTES, DOFF, STAMP_OFF, HEADER

NSLOT, SLOT, XOFF, NSTAGE = 5, 30720, 16384, 16
ROT = OPT("ROT", 5)
PDEPTH = OPT('PDEPTH', 3)
SPIN = 1 << 16
NAME = "standalone__spectral_fnet__prompt_kernel"
DF_END = DOFF + 784 * 1024
LFOFF = DF_END
WS_BYTES = LFOFF + 32 * 128
LDS_DEC = NSLOT * SLOT
LDS_XCH = 114688
NB1 = OPT("NB1", 2)
NB2 = OPT("NB2", 6)


def gen(a):
    name = NAME
    a.raw(f".globl {name}")
    a.raw(".p2align 8")
    a.raw(f".type {name},@function")
    a.label(name)
    sA, sB, sWS, sE = 16, 20, 24, 28
    sCl, sDc = 32, 34
    sW = 36
    sT0, sT1, sT2, sT3 = 37, 38, 39, 40
    sH, sRB, sJ = 41, 42, 43
    sRot, sBase, sOff, sOff2, sSlot, sIt = 46, 47, 48, 49, 50, 51
    sFl, sLoc, sByte = 52, 53, 54
    sD0, sD1 = 60, 61
    sPQ = 62
    sPL = 63

    vLane = 1
    vT = 2
    vCb0 = 6
    vXb0 = 8
    vCb = 10
    vXb = 12
    vL16 = 14
    vO = 16
    FX, FY = 16, 52
    ACC = 88
    DFR = 144
    ACC2 = 88
    PB = 16

    def cfrag(b, n):
        return b + n * 4

    def xfrag(b, m):
        return b + 8 + m * 4

    def acc(m, n):
        return ACC + (m * 2 + n) * 4

    def df(ml, e):
        return DFR + (ml * 2 + e) * 4

    st = Stamps(a, 64, 0)
    a("s_cmp_ge_u32 s2, 256")
    a("s_cbranch_scc1 L_done")
    st()
    a("s_load_dwordx8 s[4:11], s[0:1], 0")
    a("s_load_dwordx4 s[12:15], s[0:1], 32")
    a("s_load_dwordx4 s[56:59], s[0:1], 48")
    a(f"v_lshrrev_b32 v{vT}, 6, v0")
    a(f"v_and_b32 v{vLane}, 63, v0")
    a(f"v_readfirstlane_b32 s{sW}, v{vT}")
    a(f"s_and_b32 s{sT0}, s2, 7")
    a(f"s_lshr_b32 s{sT1}, s2, 3")
    a(f"s_and_b32 s{sJ}, s{sT1}, 3")
    a(f"s_lshr_b32 s{sH}, s{sT1}, 2")
    a(f"s_and_b32 s{sH}, s{sH}, 1")
    a(f"s_lshr_b32 s{sRot}, s{sT1}, 3")
    a(f"s_lshl_b32 s{sRB}, s{sRot}, 3")
    a(f"s_add_u32 s{sRB}, s{sRB}, s{sT0}")
    if ROT == 2:
        a(f"s_add_u32 s{sRot}, s{sRot}, s{sJ}")
        a(f"s_lshl_b32 s{sRot}, s{sRot}, 2")
    elif ROT == 5:
        a(f"s_lshl_b32 s{sRot}, s{sRot}, 2")
        a(f"s_lshr_b32 s{sT2}, s{sJ}, 1")
        a(f"s_lshl_b32 s{sT2}, s{sT2}, 3")
        a(f"s_add_u32 s{sRot}, s{sRot}, s{sT2}")
    elif ROT == 1:
        a(f"s_lshl_b32 s{sRot}, s{sRot}, 2")
    else:
        a(f"s_mov_b32 s{sRot}, 0")
    a(f"s_and_b32 s{sRot}, s{sRot}, 15")
    a(f"v_lshlrev_b32 v{vL16}, 4, v{vLane}")
    a(f"s_cmp_eq_u32 s{sW}, 4")
    a("s_cbranch_scc1 L_ldc")
    a(f"s_cmp_eq_u32 s{sW}, 5")
    a("s_cbranch_scc1 L_ldx")
    a(f"s_cmp_ge_u32 s{sW}, 6")
    a("s_cbranch_scc1 L_aux")

    def p2_offsets():
        a(f"s_and_b32 s{sT0}, s{sW}, 1")
        a(f"s_mul_i32 s{sT0}, s{sT0}, 14")
        a(f"s_lshr_b32 s{sT1}, s{sW}, 1")
        a(f"s_mul_i32 s{sT2}, s{sT1}, 56")
        a(f"s_add_u32 s{sT0}, s{sT0}, s{sT2}")
        a(f"s_mul_i32 s{sT2}, s{sJ}, 196")
        a(f"s_add_u32 s{sT0}, s{sT0}, s{sT2}")
        a(f"s_lshl_b32 s{sT0}, s{sT0}, 10")
        a(f"s_add_u32 s{sD0}, s{sT0}, {DOFF}")
        a(f"s_add_u32 s{sD1}, s{sT0}, {DOFF + 28*1024}")
        a(f"s_cmp_eq_u32 s{sT1}, 3")
        a(f"s_cselect_b32 s{sD1}, 0x7f000000, s{sD1}")
        a(f"s_and_b32 s{sT0}, s{sW}, 3")
        a(f"s_lshr_b32 s{sT1}, s{sW}, 2")
        a(f"s_mul_i32 s{sT1}, s{sT1}, 14")
        a(f"s_mul_i32 s{sPL}, s{sT0}, 28")
        a(f"s_add_u32 s{sPL}, s{sPL}, s{sT1}")
        a(f"s_lshl_b32 s{sPL}, s{sPL}, 10")
        a(f"s_lshr_b32 s{sT2}, s{sT0}, 1")
        a(f"s_lshl_b32 s{sT2}, s{sT2}, 7")
        a(f"s_and_b32 s{sT0}, s{sT0}, 1")
        a(f"s_add_u32 s{sT0}, s{sT0}, s{sT2}")
        a(f"s_lshl_b32 s{sT2}, s{sRB}, 2")
        a(f"s_add_u32 s{sT0}, s{sT0}, s{sT2}")
        a(f"s_lshl_b32 s{sT2}, s{sH}, 1")
        a(f"s_add_u32 s{sT0}, s{sT0}, s{sT2}")
        a(f"s_mul_i32 s{sT0}, s{sT0}, 28")
        a(f"s_add_u32 s{sT0}, s{sT0}, s{sT1}")
        a(f"s_lshl_b32 s{sPQ}, s{sT0}, 10")

    def dloads(q):
        ins = []
        idx = list(range(q * 7, q * 7 + 7))
        for t in idx:
            ml, e = t >> 1, t & 1
            r = df(ml, e)
            grp, off = ml // 4, (ml % 4) * 1024
            ins.append((grp, f"buffer_load_dwordx4 v[{r}:{r+3}], v{{V}}, s[{sWS}:{sWS+3}], s{sD0+e} offen offset:{off} sc1"))
        out = []
        for grp, i in ins:
            out.append(i.replace("{V}", str(vT + grp)))
        return out

    def dload_setup():
        a(f"v_mov_b32 v{vT}, v{vL16}")
        for g_ in range(1, 4):
            a(f"v_add_u32 v{vT+g_}, {4096*g_}, v{vL16}")

    a(f"v_and_b32 v{vT}, 15, v{vLane}")
    a(f"v_lshrrev_b32 v{vT+1}, 4, v{vLane}")
    a(f"v_lshrrev_b32 v{vT+3}, 1, v{vT}")
    a(f"v_xor_b32 v{vT+2}, v{vT+1}, v{vT+3}")
    a(f"v_lshlrev_b32 v{vT+2}, 4, v{vT+2}")
    a(f"v_lshl_add_u32 v{vCb0}, v{vT}, 7, v{vT+2}")
    a(f"s_lshl_b32 s{sT0}, s{sW}, 11")
    a(f"v_add_u32 v{vCb0}, s{sT0}, v{vCb0}")
    a(f"v_xor_b32 v{vCb0+1}, 64, v{vCb0}")
    a(f"v_lshlrev_b32 v{vT+2}, 3, v{vT+1}")
    a(f"v_lshrrev_b32 v{vT+3}, 2, v{vT}")
    a(f"v_add_u32 v{vT+2}, v{vT+2}, v{vT+3}")
    a(f"v_and_b32 v{vT+3}, 1, v{vT+1}")
    a(f"v_lshlrev_b32 v{vT+3}, 2, v{vT+3}")
    a(f"v_add_u32 v{vXb0}, v{vT+2}, v{vT+3}")
    a(f"v_xor_b32 v{vT+3}, 4, v{vT+3}")
    a(f"v_add_u32 v{vXb0+1}, v{vT+2}, v{vT+3}")
    a(f"v_and_b32 v{vT}, 3, v{vT}")
    a(f"v_lshlrev_b32 v{vT}, 3, v{vT}")
    a(f"v_add_u32 v{vT}, {XOFF}, v{vT}")
    a(f"v_mov_b32 v{vT+1}, 224")
    a(f"v_mad_u32_u24 v{vXb0}, v{vXb0}, v{vT+1}, v{vT}")
    a(f"v_mad_u32_u24 v{vXb0+1}, v{vXb0+1}, v{vT+1}, v{vT}")
    for r in range(36 + 56):
        a(f"v_mov_b32 v{FY+r}, 0")
    for r in range(2):
        a(f"v_mov_b32 v{vCb+r}, v{vCb0+r}")
        a(f"v_mov_b32 v{vXb+r}, v{vXb0+r}")
    a(f"v_add_u32 v{vL16+1}, 4096, v{vL16}")
    a(f"s_lshl_b32 s{sOff}, s{sH}, 7")
    a(f"s_lshl_b32 s{sT1}, s{sRB}, 2")
    a(f"s_add_u32 s{sOff}, s{sOff}, s{sT1}")
    a(f"s_add_u32 s{sOff}, s{sOff}, s{sW}")
    a(f"s_mul_i32 s{sOff}, s{sOff}, 28")
    a(f"s_mul_i32 s{sT1}, s{sJ}, 7")
    a(f"s_add_u32 s{sOff}, s{sOff}, s{sT1}")
    a(f"s_lshl_b32 s{sOff}, s{sOff}, 10")
    p2_offsets()
    dload_setup()
    a("s_waitcnt lgkmcnt(0)")
    srd(a, sWS, 58, WS_BYTES)

    def frag_reads(b, kk):
        ins = []

        def xr(m):
            return [f"ds_read_b64_tr_b16 v[{xfrag(b,m)}:{xfrag(b,m)+1}], v{vXb} offset:{m*32+kk*7168}",
                    f"ds_read_b64_tr_b16 v[{xfrag(b,m)+2}:{xfrag(b,m)+3}], v{vXb+1} offset:{m*32+kk*7168}"]
        ins += xr(0)
        for n in range(2):
            ins.append(f"ds_read_b128 v[{cfrag(b,n)}:{cfrag(b,n)+3}], v{vCb+kk} offset:{n*8192}")
        for m in range(1, 7):
            ins += xr(m)
        return ins

    def mfmas(b):
        return [f"v_mfma_f32_16x16x32_bf16 v[{acc(m,n)}:{acc(m,n)+3}], v[{xfrag(b,m)}:{xfrag(b,m)+3}], "
                f"v[{cfrag(b,n)}:{cfrag(b,n)+3}], v[{acc(m,n)}:{acc(m,n)+3}]"
                for m in range(7) for n in range(2)]

    a(f"s_mov_b32 s{sSlot}, 0")
    a(f"s_mov_b32 s{sIt}, 0")
    if OPT("TRACE"):
        a("s_mov_b32 s98, 5")
    DIT = OPT("DIT", 0)
    a.label("L_loop")
    a("s_waitcnt lgkmcnt(0)")
    a("s_barrier")
    if DIT:
        a(f"s_cmp_eq_u32 s{sIt}, {DIT}")
        a("s_cbranch_scc1 L_dl")
        a.label("L_dl_back")
    if OPT("TRACE"):
        a("s_memtime s[96:97]")
        a("s_waitcnt lgkmcnt(0)")
        a(f"s_mov_b32 m0, s98")
        a("s_add_u32 s98, s98, 1")
        a(f"v_writelane_b32 v0, s96, m0")
    for i in interleave(mfmas(FY), frag_reads(FX, 0) + [[f"s_add_u32 s{sSlot}, s{sSlot}, {SLOT}",
                                                          f"s_cmp_eq_u32 s{sSlot}, {SLOT*NSLOT}",
                                                          f"s_cselect_b32 s{sSlot}, 0, s{sSlot}"]], per=2):
        a(i)
    a("s_waitcnt lgkmcnt(0)")
    nxt = [f"v_add_u32 v{vCb+r}, s{sSlot}, v{vCb0+r}" for r in range(2)] + \
          [f"v_add_u32 v{vXb+r}, s{sSlot}, v{vXb0+r}" for r in range(2)] + \
          [[f"s_add_u32 s{sIt}, s{sIt}, 1", f"s_cmp_lt_u32 s{sIt}, {NSTAGE}"]]
    for i in interleave(mfmas(FX), frag_reads(FY, 1) + nxt, per=2):
        a(i)
    a("s_cbranch_scc1 L_loop")
    a(f"v_mov_b32 v{vCb}, {LDS_DEC}")
    a(f"ds_read_b32 v{vCb}, v{vCb}")
    a("s_waitcnt lgkmcnt(0)")
    for i in mfmas(FY):
        a(i)
    if not OPT("FINE"):
        st()
    a(f"v_readfirstlane_b32 s{sLoc}, v{vCb}")
    a("s_nop 4")
    for m in range(7):
        p, q = acc(m, 0), acc(m, 1)
        o = FX + m * 4
        a(f"v_cvt_pk_bf16_f32 v{o}, v{p}, v{p+1}")
        a(f"v_cvt_pk_bf16_f32 v{o+1}, v{p+2}, v{p+3}")
        a(f"v_cvt_pk_bf16_f32 v{o+2}, v{q}, v{q+1}")
        a(f"v_cvt_pk_bf16_f32 v{o+3}, v{q+2}, v{q+3}")
    a(f"s_cmp_eq_u32 s{sLoc}, 1")
    a("s_cbranch_scc1 L_st_loc")
    for loc in range(2):
        if loc:
            a.label("L_st_loc")
        for m in range(7):
            o = FX + m * 4
            a(f"buffer_store_dwordx4 v[{o}:{o+3}], v{vL16 + (m // 4)}, s[{sWS}:{sWS+3}], s{sOff} offen offset:{(m%4)*1024} {'' if loc else 'sc1'}")
        if not loc:
            a("s_branch L_st_done")
    a.label("L_st_done")
    if DIT:
        a("s_waitcnt vmcnt(0)")
        a("s_branch L_p2")
        a.label("L_dl")
        for q in range(4):
            for i in dloads(q):
                a(i)
        a("s_branch L_dl_back")
    elif OPT("DLATE", 1):
        a("s_waitcnt vmcnt(0)")
        a("s_barrier")
        for q in range(4):
            for i in dloads(q):
                a(i)
        a("s_branch L_p2_after")
    else:
        for q in range(4):
            for i in dloads(q):
                a(i)
        a("s_waitcnt vmcnt(28)")

    a.label("L_p2")
    a("s_barrier")
    a.label("L_p2_after")
    if not OPT("FINE"):
        st()
    a(f"v_mov_b32 v{vCb}, {LDS_DEC}")
    a(f"ds_read_b32 v{vCb}, v{vCb}")
    for r in range(16):
        a(f"v_mov_b32 v{ACC2+r}, 0")
    a("s_waitcnt lgkmcnt(0)")
    a(f"v_readfirstlane_b32 s{sLoc}, v{vCb}")
    a(f"s_cmp_eq_u32 s{sW}, 6")
    a("s_cbranch_scc0 L_p2_wait")
    a(f"v_mov_b32 v{vT}, 0")
    a(f"s_mov_b32 s{sIt}, 0")
    a(f"s_cmp_eq_u32 s{sLoc}, 1")
    a("s_cbranch_scc1 L_pub_loc")
    a(f"s_mov_b32 s{sT0}, 0x10000000")
    a(f"s_atomic_add s{sT0}, s[{sCl}:{sCl+1}], 0")
    a.label("L_poll2")
    a(f"s_mov_b32 s{sT0}, 0")
    a(f"s_atomic_add s{sT0}, s[{sCl}:{sCl+1}], 0 glc")
    a("s_waitcnt lgkmcnt(0)")
    a(f"s_add_u32 s{sIt}, s{sIt}, 1")
    a(f"s_lshr_b32 s{sT0}, s{sT0}, 28")
    a(f"s_cmp_eq_u32 s{sT0}, 8")
    a("s_cbranch_scc1 L_poll_done")
    a("s_sleep 16")
    a(f"s_cmp_lt_u32 s{sIt}, {SPIN}")
    a("s_cbranch_scc1 L_poll2")
    a("s_branch L_poll_done")
    a.label("L_pub_loc")
    a(f"s_lshl_b32 s{sT1}, s{sRB}, 7")
    a(f"s_add_u32 s{sT1}, s{sT1}, {LFOFF}")
    a(f"s_and_b32 s{sT0}, s{sFl}, 7")
    a(f"s_lshl_b32 s{sT0}, s{sT0}, 2")
    a(f"s_add_u32 s{sT0}, s{sT0}, s{sT1}")
    a(f"v_mov_b32 v{vT+1}, 1")
    a(f"v_lshlrev_b32 v{vT+3}, 2, v{vLane}")
    a("s_mov_b64 exec, 1")
    a(f"buffer_store_dword v{vT+1}, v{vT}, s[{sWS}:{sWS+3}], s{sT0} offen")
    a("s_mov_b64 exec, 0xff")
    a.label("L_poll3")
    a(f"buffer_load_dword v{vT+2}, v{vT+3}, s[{sWS}:{sWS+3}], s{sT1} offen sc1")
    a("s_waitcnt vmcnt(0)")
    a(f"v_cmp_ne_u32 vcc, 1, v{vT+2}")
    a(f"s_add_u32 s{sIt}, s{sIt}, 1")
    a("s_nop 3")
    a("s_cmp_eq_u64 vcc, 0")
    a("s_cbranch_scc1 L_poll_done")
    a(f"s_cmp_lt_u32 s{sIt}, {SPIN}")
    a("s_cbranch_scc1 L_poll3")
    a.label("L_poll_done")
    a("s_mov_b64 exec, -1")
    a.label("L_p2_wait")
    a(f"s_and_b32 s{sT0}, s{sW}, 1")
    a(f"s_mul_i32 s{sT0}, s{sT0}, 14336")
    a(f"v_add_u32 v{vCb}, s{sT0}, v{vL16}")
    a(f"v_add_u32 v{vCb+1}, 57344, v{vCb}")
    if OPT("WDRAIN"):
        a("s_waitcnt vmcnt(0)")
    a("s_barrier")
    st()
    RB_ = [int(x) for x in os.environ.get("RNDS", "0,2,5,8,11,14").split(",")]
    AHEAD = OPT("AHEAD", 2)

    def pqdma(rnd):
        if rnd >= len(RB_) - 1:
            return
        lo, hi = RB_[rnd], RB_[rnd + 1]
        for i in range(lo, hi):
            if (i - lo) % 4 == 0:
                a(f"s_add_u32 m0, s{sPL}, {i*1024}")
                a(f"s_add_u32 s{sT1}, s{sPQ}, {i*1024}")
            a(f"buffer_load_dwordx4 v{vL16}, s[{sWS}:{sWS+3}], s{sT1} offen offset:{((i-lo)%4)*1024} {'' if OPT('PQPLAIN') else 'sc1 '}lds")
    for r_ in range(AHEAD):
        pqdma(r_)

    def preads(ml):
        b = PB + (ml % 3) * 16
        return [f"ds_read_b128 v[{b+(hh*2+tl)*4}:{b+(hh*2+tl)*4+3}], v{vCb+hh} offset:{(tl*28+ml)*1024}"
                for hh in range(2) for tl in range(2)]

    def mf2(ml):
        b = PB + (ml % 3) * 16
        return [f"v_mfma_f32_16x16x32_bf16 v[{ACC2+(e*2+tl)*4}:{ACC2+(e*2+tl)*4+3}], v[{df(ml,e)}:{df(ml,e)+3}], "
                f"v[{b+(hh*2+tl)*4}:{b+(hh*2+tl)*4+3}], v[{ACC2+(e*2+tl)*4}:{ACC2+(e*2+tl)*4+3}]"
                for hh in range(2) for e in range(2) for tl in range(2)]

    for rnd in range(len(RB_) - 1):
        lo, hi = RB_[rnd], RB_[rnd + 1]
        issued = RB_[min(rnd + AHEAD, len(RB_) - 1)]
        if OPT("FINE") and rnd < 2:
            st()
        a(f"s_waitcnt vmcnt({issued-hi})")
        a("s_barrier")
        if OPT("FINE") and rnd < 2:
            st()
            a("s_waitcnt lgkmcnt(0)")
        for i in preads(lo) + preads(lo + 1):
            a(i)
        pqdma(rnd + AHEAD)
        for ml in range(lo, hi):
            nxt_ = preads(ml + 2) if ml + 2 < hi else []
            a(f"s_waitcnt lgkmcnt({4 if ml + 1 < hi else 0})")
            for i in interleave(mf2(ml), nxt_, per=1):
                a(i)
    st()
    a(f"s_lshl_b32 s{sT0}, s{sW}, 11")
    a(f"s_add_u32 s{sT0}, s{sT0}, {LDS_XCH}")
    a(f"s_xor_b32 s{sT1}, s{sT0}, 2048")
    a(f"v_add_u32 v{vT}, s{sT0}, v{vL16}")
    a(f"v_add_u32 v{vT+1}, s{sT1}, v{vL16}")
    srd(a, sA, 14, X_BYTES)
    a(f"v_and_b32 v{vT+2}, 15, v{vLane}")
    a(f"v_mul_u32_u24 v{vT+2}, 896, v{vT+2}")
    a(f"v_lshrrev_b32 v{vT+3}, 4, v{vLane}")
    a(f"v_lshl_add_u32 v{vT+2}, v{vT+3}, 3, v{vT+2}")
    a(f"s_lshl_b32 s{sT0}, s{sRB}, 6")
    a(f"s_lshl_b32 s{sT1}, s{sH}, 5")
    a(f"s_add_u32 s{sT0}, s{sT0}, s{sT1}")
    a(f"s_and_b32 s{sT2}, s{sW}, 1")
    a(f"s_lshl_b32 s{sT1}, s{sT2}, 4")
    a(f"s_add_u32 s{sT0}, s{sT0}, s{sT1}")
    a(f"s_mul_i32 s{sT0}, s{sT0}, 896")
    a(f"s_mul_i32 s{sT1}, s{sJ}, 224")
    a(f"s_add_u32 s{sT0}, s{sT0}, s{sT1}")
    a(f"s_lshr_b32 s{sT1}, s{sW}, 1")
    a(f"s_lshl_b32 s{sT1}, s{sT1}, 6")
    a(f"s_add_u32 s{sT0}, s{sT0}, s{sT1}")
    a(f"s_cmp_eq_u32 s{sT2}, 0")
    a("s_cbranch_scc1 L_x0")
    for e in range(2):
        for k in range(4):
            a(f"v_swap_b32 v{ACC2+(e*2)*4+k}, v{ACC2+(e*2+1)*4+k}")
    a.label("L_x0")
    for e in range(2):
        r = ACC2 + (e * 2 + 1) * 4
        a(f"ds_write_b128 v{vT}, v[{r}:{r+3}] offset:{e*1024}")
    a("s_waitcnt lgkmcnt(0)")
    a("s_barrier")
    for e in range(2):
        a(f"ds_read_b128 v[{PB+e*4}:{PB+e*4+3}], v{vT+1} offset:{e*1024}")
    for e in range(2):
        if e == 1:
            a(f"s_cmp_ge_u32 s{sW}, 6")
            a("s_cbranch_scc1 L_fin")
        a(f"s_waitcnt lgkmcnt({1-e})")
        r = ACC2 + (e * 2) * 4
        for k in range(4):
            a(f"v_add_f32 v{r+k}, v{r+k}, v{PB+e*4+k}")
        a(f"v_cvt_pk_bf16_f32 v{PB+8+e*2}, v{r}, v{r+1}")
        a(f"v_cvt_pk_bf16_f32 v{PB+9+e*2}, v{r+2}, v{r+3}")
        a(f"buffer_store_dwordx2 v[{PB+8+e*2}:{PB+9+e*2}], v{vT+2}, s[{sA}:{sA+3}], s{sT0} offen offset:{e*32}")
    a.label("L_fin")
    if OPT("DBGSTAMP"):
        a("s_waitcnt vmcnt(0)")
        st()
        a("s_waitcnt lgkmcnt(0)")
        a(f"s_xor_b32 s{sT0}, s2, {OPT('DW', 5)}")
        a(f"s_add_u32 s{sT0}, s{sT0}, s{sW}")
        a(f"s_lshl_b32 s{sT0}, s{sT0}, 8")
        srd(a, sA, 56, 32)
        a(f"v_mov_b32 v{vT+1}, 0")
        for i in range(1, st.n):
            a(f"s_sub_u32 s{sT1}, s{64+i*4+2}, s66")
            a(f"v_mov_b32 v{vT}, s{sT1}")
            a(f"buffer_store_dword v{vT}, v{vT+1}, s[{sA}:{sA+3}], s{sT0} offen offset:{i*4}")
    if OPT("STAMP"):
        a(f"s_cmp_ge_u32 s{sW}, 4")
        a("s_cbranch_scc1 L_done")
        a("s_waitcnt vmcnt(0)")
        st.dump(sWS, sT0, vT, sW)
    if OPT("TRACE"):
        a(f"v_writelane_b32 v0, s64, 0")
        a(f"s_lshl_b32 s{sT0}, s2, 2")
        a(f"s_add_u32 s{sT0}, s{sT0}, s{sW}")
        a(f"s_lshl_b32 s{sT0}, s{sT0}, 8")
        a(f"s_add_u32 s{sT0}, s{sT0}, {STAMP_OFF + 3 * (1 << 20)}")
        a(f"v_lshlrev_b32 v{vT}, 2, v{vLane}")
        a(f"buffer_store_dword v0, v{vT}, s[{sWS}:{sWS+3}], s{sT0} offen")
    a("s_endpgm")

    def loader_loop(tag, n, issue, stepbytes):
        adv = [f"s_add_u32 s{sRot}, s{sRot}, 1",
               f"s_and_b32 s{sRot}, s{sRot}, 15",
               f"s_mul_i32 s{sOff}, s{sRot}, {stepbytes}",
               f"s_add_u32 s{sOff}, s{sOff}, s{sBase}",
               f"s_add_u32 s{sSlot}, s{sSlot}, {SLOT}",
               f"s_cmp_eq_u32 s{sSlot}, {SLOT*NSLOT}",
               f"s_cselect_b32 s{sSlot}, 0, s{sSlot}"]
        a(f"s_mul_i32 s{sOff}, s{sRot}, {stepbytes}")
        a(f"s_add_u32 s{sOff}, s{sOff}, s{sBase}")
        a(f"s_mov_b32 s{sSlot}, 0")
        a(f"s_mov_b32 s{sIt}, 0")
        a.label(f"L_{tag}_loop")
        a(f"s_cmp_lt_u32 s{sIt}, {PDEPTH}")
        a(f"s_cbranch_scc1 L_{tag}_issue")
        a(f"s_waitcnt vmcnt({(PDEPTH-1)*n})")
        a("s_barrier")
        a.label(f"L_{tag}_issue")
        for i in issue():
            a(i)
        for i in adv:
            a(i)
        a(f"s_add_u32 s{sIt}, s{sIt}, 1")
        a(f"s_cmp_lt_u32 s{sIt}, {NSTAGE}")
        a(f"s_cbranch_scc1 L_{tag}_loop")
        a("s_branch L_ldtail")

    a.label("L_ldc")
    a(f"v_lshrrev_b32 v{vT}, 3, v{vLane}")
    a(f"v_lshlrev_b32 v{vT}, 12, v{vT}")
    a(f"v_and_b32 v{vT+1}, 7, v{vLane}")
    a(f"v_lshrrev_b32 v{vT+2}, 4, v{vLane}")
    a(f"v_xor_b32 v{vT+1}, v{vT+1}, v{vT+2}")
    a(f"v_lshl_add_u32 v{vO}, v{vT+1}, 4, v{vT}")
    a(f"v_xor_b32 v{vT+1}, 4, v{vT+1}")
    a(f"v_lshl_add_u32 v{vO+1}, v{vT+1}, 4, v{vT}")
    a(f"v_add_u32 v{vO+1}, {8*4096-1024}, v{vO+1}")
    a(f"v_add_u32 v{vO+2}, {16*4096-2048}, v{vO}")
    a(f"v_add_u32 v{vO+3}, {16*4096-2048}, v{vO+1}")
    a(f"s_lshl_b32 s{sBase}, s{sRB}, 18")
    a(f"s_lshl_b32 s{sT0}, s{sH}, 11")
    a(f"s_add_u32 s{sBase}, s{sBase}, s{sT0}")
    a("s_waitcnt lgkmcnt(0)")
    srd(a, sA, 6, C_BYTES)
    srd(a, sB, 8, C_BYTES)

    def issue_c():
        ins = [f"s_add_u32 s{sOff2}, s{sOff}, {32*4096}"]
        for grp in range(4):
            s_ = sA if grp < 2 else sB
            o_ = sOff if grp % 2 == 0 else sOff2
            ins.append(f"s_add_u32 m0, s{sSlot}, {grp*4096}")
            ins.append("s_nop 0")
            for q in range(4):
                ins.append(f"buffer_load_dwordx4 v{vO+q}, s[{s_}:{s_+3}], s{o_} offen offset:{q*1024} lds")
        return ins
    loader_loop("ldc", 16, issue_c, 128)

    a.label("L_ldx")
    a(f"s_mov_b32 s{sT1}, 4682")
    for q in range(14):
        if q:
            a(f"v_add_u32 v{vT}, {64*q}, v{vLane}")
            src = vT
        else:
            src = vLane
        a(f"v_mul_lo_u32 v{vT+1}, v{src}, s{sT1}")
        a(f"v_lshrrev_b32 v{vT+1}, 16, v{vT+1}")
        a(f"v_mul_u32_u24 v{vT+2}, 14, v{vT+1}")
        a(f"v_sub_u32 v{vT+2}, v{src}, v{vT+2}")
        a(f"v_lshrrev_b32 v{vT+3}, 1, v{vT+1}")
        a(f"v_and_b32 v{vT+3}, 4, v{vT+3}")
        a(f"v_xor_b32 v{vT+1}, v{vT+1}, v{vT+3}")
        a(f"v_mul_u32_u24 v{vT+1}, 896, v{vT+1}")
        a(f"v_lshl_add_u32 v{vO+q}, v{vT+2}, 4, v{vT+1}")
        if q % 4:
            a(f"v_subrev_u32 v{vO+q}, {1024*(q%4)}, v{vO+q}")
    a(f"s_mul_i32 s{sBase}, s{sH}, {1024*896}")
    a(f"s_mul_i32 s{sT0}, s{sJ}, 224")
    a(f"s_add_u32 s{sBase}, s{sBase}, s{sT0}")
    a("s_waitcnt lgkmcnt(0)")
    srd(a, sA, 4, X_BYTES)

    def issue_x():
        ins = []
        for q in range(14):
            if q % 4 == 0:
                ins.append(f"s_add_u32 m0, s{sSlot}, {XOFF + q*1024}")
                ins.append("s_nop 0")
            ins.append(f"buffer_load_dwordx4 v{vO+q}, s[{sA}:{sA+3}], s{sOff} offen offset:{(q%4)*1024} lds")
        return ins
    loader_loop("ldx", 14, issue_x, 64 * 896)

    a.label("L_ldtail")
    srd(a, sWS, 58, WS_BYTES)
    p2_offsets()
    dload_setup()
    assert PDEPTH == 3
    DS = [int(c) for c in os.environ.get("DSCHED", "022")]
    assert sum(DS) == 4
    nd = 0
    for k in range(PDEPTH):
        a(f"s_waitcnt vmcnt({(PDEPTH-1-k)*14 + 7*nd})")
        a("s_barrier")
        for q in range(nd, nd + DS[k]):
            for i in dloads(q):
                a(i)
        nd += DS[k]
    a("s_branch L_p2")

    a.label("L_aux")
    a(f"s_lshl_b32 s{sFl}, s{sRB}, 3")
    a(f"s_lshl_b32 s{sT0}, s{sH}, 2")
    a(f"s_add_u32 s{sFl}, s{sFl}, s{sT0}")
    a(f"s_add_u32 s{sFl}, s{sFl}, s{sJ}")
    a(f"s_mov_b32 s{sIt}, 0")
    a("s_waitcnt lgkmcnt(0)")
    srd(a, sWS, 58, WS_BYTES)
    a(f"s_cmp_eq_u32 s{sW}, 7")
    a("s_cbranch_scc1 L_aux7")
    a(f"v_and_b32 v{vT}, 15, v{vLane}")
    a(f"v_mul_u32_u24 v{vT}, 896, v{vT}")
    a(f"v_lshrrev_b32 v{vT+1}, 4, v{vLane}")
    a(f"v_lshl_add_u32 v{vT}, v{vT+1}, 3, v{vT}")
    a(f"s_mul_i32 s{sT0}, s{sFl}, 9363")
    a(f"s_lshr_b32 s{sT0}, s{sT0}, 16")
    a(f"s_mul_i32 s{sT1}, s{sT0}, 7")
    a(f"s_sub_u32 s{sT1}, s{sFl}, s{sT1}")
    a(f"s_mul_i32 s{sT0}, s{sT0}, {16*896}")
    a(f"s_lshl_b32 s{sT1}, s{sT1}, 7")
    a(f"s_add_u32 s{sT0}, s{sT0}, s{sT1}")
    srd(a, sB, 10, D_BYTES)
    srd(a, sE, 12, D_BYTES)
    for i in range(4):
        r = FX + i * 4
        a(f"buffer_load_dwordx2 v[{r}:{r+1}], v{vT}, s[{sB}:{sB+3}], s{sT0} offen offset:{i*32}")
        a(f"buffer_load_dwordx2 v[{r+2}:{r+3}], v{vT}, s[{sE}:{sE+3}], s{sT0} offen offset:{i*32}")
    a(f"s_lshl_b32 s{sT1}, s{sRB}, 7")
    a(f"s_and_b32 s{sT2}, s{sFl}, 7")
    a(f"s_lshl_b32 s{sT2}, s{sT2}, 2")
    a(f"s_add_u32 s{sT1}, s{sT1}, s{sT2}")
    a(f"s_add_u32 s{sT1}, s{sT1}, {LFOFF}")
    a(f"v_mov_b32 v{vT+2}, 0")
    a("s_mov_b64 exec, 1")
    a(f"buffer_store_dword v{vT+2}, v{vT+2}, s[{sWS}:{sWS+3}], s{sT1} offen")
    a("s_mov_b64 exec, -1")
    a(f"s_getreg_b32 s{sByte}, hwreg(HW_REG_XCC_ID)")
    a(f"s_and_b32 s{sByte}, s{sByte}, 7")
    a(f"s_lshr_b32 s{sT1}, s{sRB}, 3")
    a(f"s_lshl_b32 s{sT1}, s{sT1}, 6")
    a(f"s_and_b32 s{sT2}, s{sRB}, 7")
    a(f"s_lshl_b32 s{sT2}, s{sT2}, 2")
    a(f"s_add_u32 s{sT1}, s{sT1}, s{sT2}")
    a(f"s_add_u32 s{sT1}, s{sT1}, 32")
    a(f"s_add_u32 s{sCl}, s56, s{sT1}")
    a(f"s_addc_u32 s{sCl+1}, s57, 0")
    a(f"s_cmp_ge_u32 s{sFl}, 196")
    a("s_cbranch_scc1 L_aux_nod")
    a(f"s_lshl_b32 s{sT0}, s{sFl}, 12")
    a(f"s_add_u32 s{sT0}, s{sT0}, {DOFF}")
    a("s_waitcnt vmcnt(0)")
    for i in range(4):
        r = FX + i * 4
        a(f"v_xor_b32 v{r+2}, 0x80008000, v{r+2}")
        a(f"v_xor_b32 v{r+3}, 0x80008000, v{r+3}")
        a(f"buffer_store_dwordx4 v[{r}:{r+3}], v{vL16}, s[{sWS}:{sWS+3}], s{sT0} offen offset:{i*1024} sc1")
    a.label("L_aux_nod")
    for k in range(NB1):
        a("s_barrier")
    a("s_waitcnt vmcnt(0)")
    a(f"s_and_b32 s{sT0}, s{sFl}, 7")
    a(f"s_mul_i32 s{sT0}, s{sT0}, 3")
    a(f"s_lshl_b32 s{sT0}, s{sByte}, s{sT0}")
    a(f"s_add_u32 s{sT0}, s{sT0}, 0x1000000")
    a(f"s_atomic_add s{sT0}, s[{sCl}:{sCl+1}], 0")
    a(f"s_cmp_ge_u32 s{sFl}, 196")
    a("s_cbranch_scc1 L_aux_nod2")
    a(f"s_mul_i32 s{sT1}, s{sFl}, 1338")
    a(f"s_lshr_b32 s{sT1}, s{sT1}, 16")
    a(f"s_lshl_b32 s{sT1}, s{sT1}, 6")
    a(f"s_add_u32 s{sDc}, s56, s{sT1}")
    a(f"s_addc_u32 s{sDc+1}, s57, 0")
    a(f"s_mov_b32 s{sT1}, 1")
    a(f"s_atomic_add s{sT1}, s[{sDc}:{sDc+1}], 0")
    a.label("L_aux_nod2")
    for k in range(NB1, NB2):
        a("s_barrier")
    a("s_waitcnt lgkmcnt(0)")
    a(f"s_lshl_b32 s{sT1}, s{sJ}, 6")
    a(f"s_add_u32 s{sDc}, s56, s{sT1}")
    a(f"s_addc_u32 s{sDc+1}, s57, 0")
    a(f"s_mov_b32 s{sT2}, 0")
    a(f"s_mov_b32 s{sT3}, 0")
    a(f"s_atomic_add s{sT2}, s[{sCl}:{sCl+1}], 0 glc")
    a(f"s_atomic_add s{sT3}, s[{sDc}:{sDc+1}], 0 glc")
    a("s_barrier")
    a("s_barrier")
    a.label("L_poll1")
    a("s_waitcnt lgkmcnt(0)")
    a(f"s_add_u32 s{sIt}, s{sIt}, 1")
    a(f"s_lshr_b32 s{sT0}, s{sT2}, 24")
    a(f"s_and_b32 s{sT0}, s{sT0}, 15")
    a(f"s_lshl_b32 s{sT0}, s{sT0}, 8")
    a(f"s_add_u32 s{sT0}, s{sT0}, s{sT3}")
    a(f"s_cmp_eq_u32 s{sT0}, {8*256+49}")
    a("s_cbranch_scc1 L_poll1_done")
    a(f"s_cmp_ge_u32 s{sIt}, {SPIN}")
    a("s_cbranch_scc1 L_poll1_done")
    a("s_sleep 16")
    a(f"s_mov_b32 s{sT2}, 0")
    a(f"s_mov_b32 s{sT3}, 0")
    a(f"s_atomic_add s{sT2}, s[{sCl}:{sCl+1}], 0 glc")
    a(f"s_atomic_add s{sT3}, s[{sDc}:{sDc+1}], 0 glc")
    a("s_branch L_poll1")
    a.label("L_poll1_done")
    a(f"s_mul_i32 s{sT0}, s{sByte}, 0x249249")
    a(f"s_and_b32 s{sT2}, s{sT2}, 0xffffff")
    a(f"s_cmp_eq_u32 s{sT2}, s{sT0}")
    a(f"s_cselect_b32 s{sLoc}, {0 if OPT('FORCESLOW') else 1}, 0")
    a(f"v_mov_b32 v{vT}, {LDS_DEC}")
    a(f"v_mov_b32 v{vT+1}, s{sLoc}")
    a(f"ds_write_b32 v{vT}, v{vT+1}")
    a("s_waitcnt lgkmcnt(0)")
    a("s_branch L_aux_pre")
    a.label("L_aux7")
    if OPT("CODEPF", 1):
        a("s_getpc_b64 s[60:61]")
        a.label("L_pc")
        a(f"s_sub_u32 s60, s60, L_pc-{NAME}")
        a("s_subb_u32 s61, s61, 0")
        a(f"v_lshlrev_b32 v{vT}, 7, v{vLane}")
        a(f"v_min_u32 v{vT}, L_end-{NAME}-4, v{vT}")
        a(f"global_load_dword v{vT+2}, v{vT}, s[60:61]")
        a("s_waitcnt vmcnt(0)")
    for k in range(NB2 + 2):
        a("s_barrier")
    a.label("L_aux_pre")
    p2_offsets()
    dload_setup()
    nb = NB2 + 2
    DSTART = OPT("DSTART", NB2 + 3)
    while nb < DSTART:
        a("s_barrier")
        nb += 1
    if OPT("DPF", 1):
        a(f"s_lshr_b32 s{sT0}, s2, 5")
        a(f"s_mul_i32 s{sT0}, s{sT0}, 25088")
        a(f"s_mul_i32 s{sT1}, s{sJ}, 200704")
        a(f"s_add_u32 s{sT0}, s{sT0}, s{sT1}")
        a(f"s_add_u32 s{sT0}, s{sT0}, {DOFF}")
        a(f"s_sub_u32 s{sT1}, s{sW}, 6")
        a(f"s_lshl_b32 s{sT1}, s{sT1}, 14")
        a(f"v_lshlrev_b32 v{vCb}, 7, v{vLane}")
        a(f"v_add_u32 v{vCb}, s{sT1}, v{vCb}")
        a(f"v_add_u32 v{vCb+1}, 8192, v{vCb}")
        a(f"v_min_u32 v{vCb+1}, {25088-128}, v{vCb+1}")
        a(f"buffer_load_dword v{vXb}, v{vCb}, s[{sWS}:{sWS+3}], s{sT0} offen sc1")
        a(f"buffer_load_dword v{vXb}, v{vCb+1}, s[{sWS}:{sWS+3}], s{sT0} offen sc1")
        for k in range(OPT("DPFGAP", 2)):
            a("s_barrier")
            nb += 1
    DS2 = [int(c) for c in os.environ.get("DSCHED2", os.environ.get("DSCHED", "022"))]
    nd = 0
    while nb < 16:
        a("s_barrier")
        nb += 1
        k = nb - 1 - (16 - len(DS2))
        if k >= 0:
            for q in range(nd, nd + DS2[k]):
                for i in dloads(q):
                    a(i)
            nd += DS2[k]
    assert nd == 4
    a("s_branch L_p2")
    a.label("L_done")
    a("s_endpgm")
    a.label("L_end")
    return name, 256, 0, NSLOT * SLOT + 256, 512


def main():
    a = Asm()
    a.raw('.amdgcn_target "amdgcn-amd-amdhsa--gfx950"')
    a.raw(".text")
    name, nv, na, lds, blk = gen(a)
    out = HEADER
    out += f"; @launch grid=(256,1,1) block=({blk},1,1) lds={lds}\n"
    out += a.text()
    out += '.section .rodata,"a"\n'
    out += G.descriptor(name, nv, na)
    path = sys.argv[1] if len(sys.argv) > 1 else "standalone__spectral_fnet__prompt.s"
    open(path, "w").write(out)


if __name__ == "__main__":
    main()
```

```python
import sys, os, math
import gen as G
from gen import OPT, Asm, Stamps, srd, interleave, flat, X_BYTES, C_BYTES, D_BYTES, DOFF, STAMP_OFF, HEADER

NSLOT, SLOT, XOFF, NSTAGE = 5, 30720, 16384, 16
ROT = OPT("ROT", 5)
PDEPTH = OPT('PDEPTH', 3)
SPIN = 1 << 14
NAME = "standalone__spectral_fnet__prompt_kernel"
DF_END = DOFF + 784 * 1024
LFOFF = DF_END
WS_BYTES = LFOFF + 32 * 128
LDS_DEC = NSLOT * SLOT
LDS_XCH = 114688
NB1 = OPT("NB1", 2)
NB2 = OPT("NB2", 6)


def gen(a):
    name = NAME
    a.raw(f".globl {name}")
    a.raw(".p2align 8")
    a.raw(f".type {name},@function")
    a.label(name)
    sA, sB, sWS, sE = 16, 20, 24, 28
    sCl, sDc = 32, 34
    sW = 36
    sT0, sT1, sT2, sT3 = 37, 38, 39, 40
    sH, sRB, sJ = 41, 42, 43
    sRot, sBase, sOff, sOff2, sSlot, sIt = 46, 47, 48, 49, 50, 51
    sFl, sLoc, sByte = 52, 53, 54
    sD0, sD1 = 60, 61
    sPQ = 62
    sPL = 63

    vLane = 1
    vT = 2
    vCb0 = 6
    vXb0 = 8
    vCb = 10
    vXb = 12
    vL16 = 14
    vO = 16
    FX, FY = 16, 52
    ACC = 88
    DFR = 144
    ACC2 = 88
    PB = 16

    def cfrag(b, n):
        return b + n * 4

    def xfrag(b, m):
        return b + 8 + m * 4

    def acc(m, n):
        return ACC + (m * 2 + n) * 4

    def df(ml, e):
        return DFR + (ml * 2 + e) * 4

    st = Stamps(a, 64, 0)
    a("s_cmp_ge_u32 s2, 256")
    a("s_cbranch_scc1 L_done")
    st()
    a("s_load_dwordx8 s[4:11], s[0:1], 0")
    a("s_load_dwordx4 s[12:15], s[0:1], 32")
    a("s_load_dwordx4 s[56:59], s[0:1], 48")
    a(f"v_lshrrev_b32 v{vT}, 6, v0")
    a(f"v_and_b32 v{vLane}, 63, v0")
    a(f"v_readfirstlane_b32 s{sW}, v{vT}")
    a(f"s_and_b32 s{sT0}, s2, 7")
    a(f"s_lshr_b32 s{sT1}, s2, 3")
    a(f"s_and_b32 s{sJ}, s{sT1}, 3")
    a(f"s_lshr_b32 s{sH}, s{sT1}, 2")
    a(f"s_and_b32 s{sH}, s{sH}, 1")
    a(f"s_lshr_b32 s{sRot}, s{sT1}, 3")
    a(f"s_lshl_b32 s{sRB}, s{sRot}, 3")
    a(f"s_add_u32 s{sRB}, s{sRB}, s{sT0}")
    if ROT == 2:
        a(f"s_add_u32 s{sRot}, s{sRot}, s{sJ}")
        a(f"s_lshl_b32 s{sRot}, s{sRot}, 2")
    elif ROT == 5:
        a(f"s_lshl_b32 s{sRot}, s{sRot}, 2")
        a(f"s_lshr_b32 s{sT2}, s{sJ}, 1")
        a(f"s_lshl_b32 s{sT2}, s{sT2}, 3")
        a(f"s_add_u32 s{sRot}, s{sRot}, s{sT2}")
    elif ROT == 1:
        a(f"s_lshl_b32 s{sRot}, s{sRot}, 2")
    else:
        a(f"s_mov_b32 s{sRot}, 0")
    a(f"s_and_b32 s{sRot}, s{sRot}, 15")
    a(f"v_lshlrev_b32 v{vL16}, 4, v{vLane}")
    if OPT("REORD", 1):
        a(f"s_cmp_eq_u32 s{sW}, 5")
        a("s_cbranch_scc1 L_ldx")
        a(f"s_cmp_ge_u32 s{sW}, 6")
        a("s_cbranch_scc1 L_aux")
        a(f"s_cmp_lt_u32 s{sW}, 4")
        a("s_cbranch_scc1 L_comp")
    else:
        a(f"s_cmp_eq_u32 s{sW}, 4")
        a("s_cbranch_scc1 L_ldc")
        a(f"s_cmp_eq_u32 s{sW}, 5")
        a("s_cbranch_scc1 L_ldx")
        a(f"s_cmp_ge_u32 s{sW}, 6")
        a("s_cbranch_scc1 L_aux")

    def p2_offsets():
        a(f"s_and_b32 s{sT0}, s{sW}, 1")
        a(f"s_mul_i32 s{sT0}, s{sT0}, 14")
        a(f"s_lshr_b32 s{sT1}, s{sW}, 1")
        a(f"s_mul_i32 s{sT2}, s{sT1}, 56")
        a(f"s_add_u32 s{sT0}, s{sT0}, s{sT2}")
        a(f"s_mul_i32 s{sT2}, s{sJ}, 196")
        a(f"s_add_u32 s{sT0}, s{sT0}, s{sT2}")
        a(f"s_lshl_b32 s{sT0}, s{sT0}, 10")
        a(f"s_add_u32 s{sD0}, s{sT0}, {DOFF}")
        a(f"s_add_u32 s{sD1}, s{sT0}, {DOFF + 28*1024}")
        a(f"s_cmp_eq_u32 s{sT1}, 3")
        a(f"s_cselect_b32 s{sD1}, 0x7f000000, s{sD1}")
        a(f"s_and_b32 s{sT0}, s{sW}, 3")
        a(f"s_lshr_b32 s{sT1}, s{sW}, 2")
        a(f"s_mul_i32 s{sT1}, s{sT1}, 14")
        a(f"s_mul_i32 s{sPL}, s{sT0}, 28")
        a(f"s_add_u32 s{sPL}, s{sPL}, s{sT1}")
        a(f"s_lshl_b32 s{sPL}, s{sPL}, 10")
        a(f"s_lshr_b32 s{sT2}, s{sT0}, 1")
        a(f"s_lshl_b32 s{sT2}, s{sT2}, 7")
        a(f"s_and_b32 s{sT0}, s{sT0}, 1")
        a(f"s_add_u32 s{sT0}, s{sT0}, s{sT2}")
        a(f"s_lshl_b32 s{sT2}, s{sRB}, 2")
        a(f"s_add_u32 s{sT0}, s{sT0}, s{sT2}")
        a(f"s_lshl_b32 s{sT2}, s{sH}, 1")
        a(f"s_add_u32 s{sT0}, s{sT0}, s{sT2}")
        a(f"s_mul_i32 s{sT0}, s{sT0}, 28")
        a(f"s_add_u32 s{sT0}, s{sT0}, s{sT1}")
        a(f"s_lshl_b32 s{sPQ}, s{sT0}, 10")

    def dloads(q):
        ins = []
        idx = list(range(q * 7, q * 7 + 7))
        for t in idx:
            ml, e = t >> 1, t & 1
            r = df(ml, e)
            grp, off = ml // 4, (ml % 4) * 1024
            ins.append((grp, f"buffer_load_dwordx4 v[{r}:{r+3}], v{{V}}, s[{sWS}:{sWS+3}], s{sD0+e} offen offset:{off} sc1"))
        out = []
        for grp, i in ins:
            out.append(i.replace("{V}", str(vT + grp)))
        return out

    def dload_setup():
        a(f"v_mov_b32 v{vT}, v{vL16}")
        for g_ in range(1, 4):
            a(f"v_add_u32 v{vT+g_}, {4096*g_}, v{vL16}")

    a.label("L_comp")
    a(f"v_and_b32 v{vT}, 15, v{vLane}")
    a(f"v_lshrrev_b32 v{vT+1}, 4, v{vLane}")
    a(f"v_lshrrev_b32 v{vT+3}, 1, v{vT}")
    a(f"v_xor_b32 v{vT+2}, v{vT+1}, v{vT+3}")
    a(f"v_lshlrev_b32 v{vT+2}, 4, v{vT+2}")
    a(f"v_lshl_add_u32 v{vCb0}, v{vT}, 7, v{vT+2}")
    a(f"s_lshl_b32 s{sT0}, s{sW}, 11")
    a(f"v_add_u32 v{vCb0}, s{sT0}, v{vCb0}")
    a(f"v_xor_b32 v{vCb0+1}, 64, v{vCb0}")
    a(f"v_lshlrev_b32 v{vT+2}, 3, v{vT+1}")
    a(f"v_lshrrev_b32 v{vT+3}, 2, v{vT}")
    a(f"v_add_u32 v{vT+2}, v{vT+2}, v{vT+3}")
    a(f"v_and_b32 v{vT+3}, 1, v{vT+1}")
    a(f"v_lshlrev_b32 v{vT+3}, 2, v{vT+3}")
    a(f"v_add_u32 v{vXb0}, v{vT+2}, v{vT+3}")
    a(f"v_xor_b32 v{vT+3}, 4, v{vT+3}")
    a(f"v_add_u32 v{vXb0+1}, v{vT+2}, v{vT+3}")
    a(f"v_and_b32 v{vT}, 3, v{vT}")
    a(f"v_lshlrev_b32 v{vT}, 3, v{vT}")
    a(f"v_add_u32 v{vT}, {XOFF}, v{vT}")
    a(f"v_mov_b32 v{vT+1}, 224")
    a(f"v_mad_u32_u24 v{vXb0}, v{vXb0}, v{vT+1}, v{vT}")
    a(f"v_mad_u32_u24 v{vXb0+1}, v{vXb0+1}, v{vT+1}, v{vT}")
    for r in range(36 + 56):
        a(f"v_mov_b32 v{FY+r}, 0")
    for r in range(2):
        a(f"v_mov_b32 v{vCb+r}, v{vCb0+r}")
        a(f"v_mov_b32 v{vXb+r}, v{vXb0+r}")
    a(f"v_add_u32 v{vL16+1}, 4096, v{vL16}")
    a(f"s_lshl_b32 s{sOff}, s{sH}, 7")
    a(f"s_lshl_b32 s{sT1}, s{sRB}, 2")
    a(f"s_add_u32 s{sOff}, s{sOff}, s{sT1}")
    a(f"s_add_u32 s{sOff}, s{sOff}, s{sW}")
    a(f"s_mul_i32 s{sOff}, s{sOff}, 28")
    a(f"s_mul_i32 s{sT1}, s{sJ}, 7")
    a(f"s_add_u32 s{sOff}, s{sOff}, s{sT1}")
    a(f"s_lshl_b32 s{sOff}, s{sOff}, 10")
    p2_offsets()
    dload_setup()
    a("s_waitcnt lgkmcnt(0)")
    srd(a, sWS, 58, WS_BYTES)

    def frag_reads(b, kk):
        ins = []

        def xr(m):
            return [f"ds_read_b64_tr_b16 v[{xfrag(b,m)}:{xfrag(b,m)+1}], v{vXb} offset:{m*32+kk*7168}",
                    f"ds_read_b64_tr_b16 v[{xfrag(b,m)+2}:{xfrag(b,m)+3}], v{vXb+1} offset:{m*32+kk*7168}"]
        ins += xr(0)
        for n in range(2):
            ins.append(f"ds_read_b128 v[{cfrag(b,n)}:{cfrag(b,n)+3}], v{vCb+kk} offset:{n*8192}")
        for m in range(1, 7):
            ins += xr(m)
        return ins

    def mfmas(b):
        return [f"v_mfma_f32_16x16x32_bf16 v[{acc(m,n)}:{acc(m,n)+3}], v[{xfrag(b,m)}:{xfrag(b,m)+3}], "
                f"v[{cfrag(b,n)}:{cfrag(b,n)+3}], v[{acc(m,n)}:{acc(m,n)+3}]"
                for m in range(7) for n in range(2)]

    a(f"s_mov_b32 s{sSlot}, 0")
    a(f"s_mov_b32 s{sIt}, 0")
    if OPT("TRACE"):
        a("s_mov_b32 s98, 5")
    DIT = OPT("DIT", 0)
    DQ0 = OPT("DQ0", 4)
    a.label("L_loop")
    a("s_waitcnt lgkmcnt(0)")
    a("s_barrier")
    if DIT:
        a(f"s_cmp_eq_u32 s{sIt}, {DIT}")
        a("s_cbranch_scc1 L_dl")
        a.label("L_dl_back")
    if OPT("TRACE"):
        a("s_memtime s[96:97]")
        a("s_waitcnt lgkmcnt(0)")
        a(f"s_mov_b32 m0, s98")
        a("s_add_u32 s98, s98, 1")
        a(f"v_writelane_b32 v0, s96, m0")
    for i in interleave(mfmas(FY), frag_reads(FX, 0) + [[f"s_add_u32 s{sSlot}, s{sSlot}, {SLOT}",
                                                          f"s_cmp_eq_u32 s{sSlot}, {SLOT*NSLOT}",
                                                          f"s_cselect_b32 s{sSlot}, 0, s{sSlot}"]], per=2):
        a(i)
    a("s_waitcnt lgkmcnt(0)")
    nxt = [f"v_add_u32 v{vCb+r}, s{sSlot}, v{vCb0+r}" for r in range(2)] + \
          [f"v_add_u32 v{vXb+r}, s{sSlot}, v{vXb0+r}" for r in range(2)] + \
          [[f"s_add_u32 s{sIt}, s{sIt}, 1", f"s_cmp_lt_u32 s{sIt}, {NSTAGE}"]]
    for i in interleave(mfmas(FX), frag_reads(FY, 1) + nxt, per=2):
        a(i)
    a("s_cbranch_scc1 L_loop")
    a(f"v_mov_b32 v{vCb}, {LDS_DEC}")
    a(f"ds_read_b32 v{vCb}, v{vCb}")
    a("s_waitcnt lgkmcnt(0)")
    for i in mfmas(FY):
        a(i)
    if not OPT("FINE"):
        st()
    a(f"v_readfirstlane_b32 s{sLoc}, v{vCb}")
    a("s_nop 4")
    for m in range(7):
        p, q = acc(m, 0), acc(m, 1)
        o = FX + m * 4
        a(f"v_cvt_pk_bf16_f32 v{o}, v{p}, v{p+1}")
        a(f"v_cvt_pk_bf16_f32 v{o+1}, v{p+2}, v{p+3}")
        a(f"v_cvt_pk_bf16_f32 v{o+2}, v{q}, v{q+1}")
        a(f"v_cvt_pk_bf16_f32 v{o+3}, v{q+2}, v{q+3}")
    a(f"s_cmp_eq_u32 s{sLoc}, 1")
    a("s_cbranch_scc1 L_st_loc")
    for loc in range(2):
        if loc:
            a.label("L_st_loc")
        for m in range(7):
            o = FX + m * 4
            a(f"buffer_store_dwordx4 v[{o}:{o+3}], v{vL16 + (m // 4)}, s[{sWS}:{sWS+3}], s{sOff} offen offset:{(m%4)*1024} {'' if loc else 'sc1'}")
        if not loc:
            a("s_branch L_st_done")
    a.label("L_st_done")
    if DIT:
        a("s_waitcnt vmcnt(0)")
        a("s_branch L_p2")
        a.label("L_dl")
        for q in range(4):
            for i in dloads(q):
                a(i)
        a("s_branch L_dl_back")
    elif OPT("DLATE", 1):
        a("s_waitcnt vmcnt(0)")
        a("s_barrier")
        for q in range(DQ0):
            for i in dloads(q):
                a(i)
        a("s_branch L_p2_after")
    else:
        for q in range(4):
            for i in dloads(q):
                a(i)
        a("s_waitcnt vmcnt(28)")

    a.label("L_p2")
    a("s_barrier")
    a.label("L_p2_after")
    if not OPT("FINE"):
        st()
    a(f"v_mov_b32 v{vCb}, {LDS_DEC}")
    a(f"ds_read_b32 v{vCb}, v{vCb}")
    for r in range(16):
        a(f"v_mov_b32 v{ACC2+r}, 0")
    a("s_waitcnt lgkmcnt(0)")
    a(f"v_readfirstlane_b32 s{sLoc}, v{vCb}")
    a(f"s_cmp_eq_u32 s{sW}, 6")
    a("s_cbranch_scc0 L_p2_wait")
    a(f"v_mov_b32 v{vT}, 0")
    a(f"s_mov_b32 s{sIt}, 0")
    a(f"s_cmp_eq_u32 s{sLoc}, 1")
    a("s_cbranch_scc1 L_pub_loc")
    a(f"s_mov_b32 s{sT0}, 0x10000000")
    a(f"s_atomic_add s{sT0}, s[{sCl}:{sCl+1}], 0")
    a.label("L_poll2")
    a(f"s_mov_b32 s{sT2}, 0")
    a(f"s_atomic_add s{sT2}, s[{sCl}:{sCl+1}], 0 glc")
    a("s_waitcnt lgkmcnt(0)")
    a(f"s_add_u32 s{sIt}, s{sIt}, 1")
    a(f"s_lshr_b32 s{sT2}, s{sT2}, 28")
    a(f"s_cmp_eq_u32 s{sT2}, 8")
    a("s_cbranch_scc1 L_poll_done")
    a("s_sleep 16")
    a(f"s_cmp_lt_u32 s{sIt}, {SPIN}")
    a("s_cbranch_scc1 L_poll2")
    a("s_branch L_poll_done")
    a.label("L_pub_loc")
    a(f"s_lshl_b32 s{sT1}, s{sRB}, 7")
    a(f"s_add_u32 s{sT1}, s{sT1}, {LFOFF}")
    a(f"s_and_b32 s{sT0}, s{sFl}, 7")
    a(f"s_lshl_b32 s{sT0}, s{sT0}, 2")
    a(f"s_add_u32 s{sT0}, s{sT0}, s{sT1}")
    a(f"v_mov_b32 v{vT+1}, 1")
    a(f"v_lshlrev_b32 v{vT+3}, 2, v{vLane}")
    a("s_mov_b64 exec, 1")
    a(f"buffer_store_dword v{vT+1}, v{vT}, s[{sWS}:{sWS+3}], s{sT0} offen")
    a("s_mov_b64 exec, 0xff")
    a.label("L_poll3")
    a(f"buffer_load_dword v{vT+2}, v{vT+3}, s[{sWS}:{sWS+3}], s{sT1} offen sc1")
    a("s_waitcnt vmcnt(0)")
    a(f"v_cmp_ne_u32 vcc, 1, v{vT+2}")
    a(f"s_add_u32 s{sIt}, s{sIt}, 1")
    a("s_nop 3")
    a("s_cmp_eq_u64 vcc, 0")
    a("s_cbranch_scc1 L_poll_done")
    a(f"s_cmp_lt_u32 s{sIt}, {SPIN}")
    a("s_cbranch_scc1 L_poll3")
    a.label("L_poll_done")
    a("s_mov_b64 exec, -1")
    a.label("L_p2_wait")
    a(f"s_and_b32 s{sT0}, s{sW}, 1")
    a(f"s_mul_i32 s{sT0}, s{sT0}, 14336")
    a(f"v_add_u32 v{vCb}, s{sT0}, v{vL16}")
    a(f"v_add_u32 v{vCb+1}, 57344, v{vCb}")
    if OPT("WDRAIN"):
        a("s_waitcnt vmcnt(0)")
    a("s_barrier")
    st()
    RB_ = [int(x) for x in os.environ.get("RNDS", "0,2,5,8,11,14").split(",")]
    AHEAD = OPT("AHEAD", 2)

    def pqdma(rnd):
        if rnd >= len(RB_) - 1:
            return
        lo, hi = RB_[rnd], RB_[rnd + 1]
        for i in range(lo, hi):
            if (i - lo) % 4 == 0:
                a(f"s_add_u32 m0, s{sPL}, {i*1024}")
                a(f"s_add_u32 s{sT1}, s{sPQ}, {i*1024}")
            a(f"buffer_load_dwordx4 v{vL16}, s[{sWS}:{sWS+3}], s{sT1} offen offset:{((i-lo)%4)*1024} {'' if OPT('PQPLAIN') else 'sc1 '}lds")
    lab = [0]
    seq = []
    dq = [DQ0]

    def dnext():
        if dq[0] >= 4:
            return
        lab[0] += 1
        a(f"s_cmp_ge_u32 s{sW}, 4")
        a(f"s_cbranch_scc1 L_dq{lab[0]}")
        for i in dloads(dq[0]):
            a(i)
        a.label(f"L_dq{lab[0]}")
        seq.append(('q', dq[0], 7))
        dq[0] += 1

    def pq_issue(rnd):
        if rnd < len(RB_) - 1:
            pqdma(rnd)
            seq.append(('r', rnd, RB_[rnd + 1] - RB_[rnd]))

    def wait_round(rnd):
        hi = RB_[rnd + 1]
        qneed = (2 * hi - 1) // 7
        last = -1
        for k, (t, i, n) in enumerate(seq):
            if (t == 'r' and i <= rnd) or (t == 'q' and i <= qneed):
                last = k
        assert dq[0] > qneed, "D quarter not issued yet"
        cw = sum(n for t, i, n in seq[last + 1:])
        lastr = max(k for k, (t, i, n) in enumerate(seq) if t == 'r' and i <= rnd)
        hw = sum(n for t, i, n in seq[lastr + 1:] if t == 'r')
        if cw == hw:
            a(f"s_waitcnt vmcnt({cw})")
        else:
            lab[0] += 1
            a(f"s_cmp_ge_u32 s{sW}, 4")
            a(f"s_cbranch_scc1 L_wh{lab[0]}")
            a(f"s_waitcnt vmcnt({cw})")
            a(f"s_branch L_wd{lab[0]}")
            a.label(f"L_wh{lab[0]}")
            a(f"s_waitcnt vmcnt({hw})")
            a.label(f"L_wd{lab[0]}")

    for r_ in range(AHEAD):
        pq_issue(r_)
    dnext()

    def preads(ml):
        b = PB + (ml % 3) * 16
        return [f"ds_read_b128 v[{b+(hh*2+tl)*4}:{b+(hh*2+tl)*4+3}], v{vCb+hh} offset:{(tl*28+ml)*1024}"
                for hh in range(2) for tl in range(2)]

    def mf2(ml):
        b = PB + (ml % 3) * 16
        return [f"v_mfma_f32_16x16x32_bf16 v[{ACC2+(e*2+tl)*4}:{ACC2+(e*2+tl)*4+3}], v[{df(ml,e)}:{df(ml,e)+3}], "
                f"v[{b+(hh*2+tl)*4}:{b+(hh*2+tl)*4+3}], v[{ACC2+(e*2+tl)*4}:{ACC2+(e*2+tl)*4+3}]"
                for hh in range(2) for e in range(2) for tl in range(2)]

    for rnd in range(len(RB_) - 1):
        lo, hi = RB_[rnd], RB_[rnd + 1]
        issued = RB_[min(rnd + AHEAD, len(RB_) - 1)]
        if OPT("FINE") and rnd < 2:
            st()
        wait_round(rnd)
        a("s_barrier")
        if OPT("FINE") and rnd < 2:
            st()
            a("s_waitcnt lgkmcnt(0)")
        for i in preads(lo) + (preads(lo + 1) if lo + 1 < hi else []):
            a(i)
        pq_issue(rnd + AHEAD)
        dnext()
        for ml in range(lo, hi):
            nxt_ = preads(ml + 2) if ml + 2 < hi else []
            a(f"s_waitcnt lgkmcnt({4 if ml + 1 < hi else 0})")
            for i in interleave(mf2(ml), nxt_, per=1):
                a(i)
    st()
    a(f"s_lshl_b32 s{sT0}, s{sW}, 11")
    a(f"s_add_u32 s{sT0}, s{sT0}, {LDS_XCH}")
    a(f"s_xor_b32 s{sT1}, s{sT0}, 2048")
    a(f"v_add_u32 v{vT}, s{sT0}, v{vL16}")
    a(f"v_add_u32 v{vT+1}, s{sT1}, v{vL16}")
    srd(a, sA, 14, X_BYTES)
    a(f"v_and_b32 v{vT+2}, 15, v{vLane}")
    a(f"v_mul_u32_u24 v{vT+2}, 896, v{vT+2}")
    a(f"v_lshrrev_b32 v{vT+3}, 4, v{vLane}")
    a(f"v_lshl_add_u32 v{vT+2}, v{vT+3}, 3, v{vT+2}")
    a(f"s_lshl_b32 s{sT0}, s{sRB}, 6")
    a(f"s_lshl_b32 s{sT1}, s{sH}, 5")
    a(f"s_add_u32 s{sT0}, s{sT0}, s{sT1}")
    a(f"s_and_b32 s{sT2}, s{sW}, 1")
    a(f"s_lshl_b32 s{sT1}, s{sT2}, 4")
    a(f"s_add_u32 s{sT0}, s{sT0}, s{sT1}")
    a(f"s_mul_i32 s{sT0}, s{sT0}, 896")
    a(f"s_mul_i32 s{sT1}, s{sJ}, 224")
    a(f"s_add_u32 s{sT0}, s{sT0}, s{sT1}")
    a(f"s_lshr_b32 s{sT1}, s{sW}, 1")
    a(f"s_lshl_b32 s{sT1}, s{sT1}, 6")
    a(f"s_add_u32 s{sT0}, s{sT0}, s{sT1}")
    a(f"s_cmp_eq_u32 s{sT2}, 0")
    a("s_cbranch_scc1 L_x0")
    for e in range(2):
        for k in range(4):
            a(f"v_swap_b32 v{ACC2+(e*2)*4+k}, v{ACC2+(e*2+1)*4+k}")
    a.label("L_x0")
    for e in range(2):
        r = ACC2 + (e * 2 + 1) * 4
        a(f"ds_write_b128 v{vT}, v[{r}:{r+3}] offset:{e*1024}")
    a("s_waitcnt lgkmcnt(0)")
    a("s_barrier")
    for e in range(2):
        a(f"ds_read_b128 v[{PB+e*4}:{PB+e*4+3}], v{vT+1} offset:{e*1024}")
    for e in range(2):
        if e == 1:
            a(f"s_cmp_ge_u32 s{sW}, 6")
            a("s_cbranch_scc1 L_fin")
        a(f"s_waitcnt lgkmcnt({1-e})")
        r = ACC2 + (e * 2) * 4
        for k in range(4):
            a(f"v_add_f32 v{r+k}, v{r+k}, v{PB+e*4+k}")
        a(f"v_cvt_pk_bf16_f32 v{PB+8+e*2}, v{r}, v{r+1}")
        a(f"v_cvt_pk_bf16_f32 v{PB+9+e*2}, v{r+2}, v{r+3}")
        a(f"buffer_store_dwordx2 v[{PB+8+e*2}:{PB+9+e*2}], v{vT+2}, s[{sA}:{sA+3}], s{sT0} offen offset:{e*32}")
    a.label("L_fin")
    if OPT("DBGSTAMP"):
        a("s_waitcnt vmcnt(0)")
        st()
        a("s_waitcnt lgkmcnt(0)")
        a(f"s_xor_b32 s{sT0}, s2, {OPT('DW', 5)}")
        a(f"s_add_u32 s{sT0}, s{sT0}, s{sW}")
        a(f"s_lshl_b32 s{sT0}, s{sT0}, 8")
        srd(a, sA, 56, 32)
        a(f"v_mov_b32 v{vT+1}, 0")
        for i in range(1, st.n):
            a(f"s_sub_u32 s{sT1}, s{64+i*4+2}, s66")
            a(f"v_mov_b32 v{vT}, s{sT1}")
            a(f"buffer_store_dword v{vT}, v{vT+1}, s[{sA}:{sA+3}], s{sT0} offen offset:{i*4}")
    if OPT("STAMP"):
        a(f"s_cmp_ge_u32 s{sW}, 4")
        a("s_cbranch_scc1 L_done")
        a("s_waitcnt vmcnt(0)")
        st.dump(sWS, sT0, vT, sW)
    if OPT("TRACE"):
        a(f"v_writelane_b32 v0, s64, 0")
        a(f"s_lshl_b32 s{sT0}, s2, 2")
        a(f"s_add_u32 s{sT0}, s{sT0}, s{sW}")
        a(f"s_lshl_b32 s{sT0}, s{sT0}, 8")
        a(f"s_add_u32 s{sT0}, s{sT0}, {STAMP_OFF + 3 * (1 << 20)}")
        a(f"v_lshlrev_b32 v{vT}, 2, v{vLane}")
        a(f"buffer_store_dword v0, v{vT}, s[{sWS}:{sWS+3}], s{sT0} offen")
    a("s_endpgm")

    sth = Stamps(a, 64, 2)

    def loader_loop(tag, n, issue, stepbytes):
        adv = [f"s_add_u32 s{sRot}, s{sRot}, 1",
               f"s_and_b32 s{sRot}, s{sRot}, 15",
               f"s_mul_i32 s{sOff}, s{sRot}, {stepbytes}",
               f"s_add_u32 s{sOff}, s{sOff}, s{sBase}",
               f"s_add_u32 s{sSlot}, s{sSlot}, {SLOT}",
               f"s_cmp_eq_u32 s{sSlot}, {SLOT*NSLOT}",
               f"s_cselect_b32 s{sSlot}, 0, s{sSlot}"]
        a(f"s_mul_i32 s{sOff}, s{sRot}, {stepbytes}")
        a(f"s_add_u32 s{sOff}, s{sOff}, s{sBase}")
        a(f"s_mov_b32 s{sSlot}, 0")
        a(f"s_mov_b32 s{sIt}, 0")
        if OPT("LSTAMP"):
            sth.n = 1
            sth()
        if OPT("LPRIO", 0):
            a(f"s_setprio {OPT('LPRIO', 0)}")
        a.label(f"L_{tag}_loop")
        a(f"s_cmp_lt_u32 s{sIt}, {PDEPTH}")
        a(f"s_cbranch_scc1 L_{tag}_issue")
        a(f"s_waitcnt vmcnt({(PDEPTH-1)*n})")
        a("s_barrier")
        a.label(f"L_{tag}_issue")
        for i in issue():
            a(i)
        for i in adv:
            a(i)
        a(f"s_add_u32 s{sIt}, s{sIt}, 1")
        a(f"s_cmp_lt_u32 s{sIt}, {NSTAGE}")
        a(f"s_cbranch_scc1 L_{tag}_loop")
        a("s_branch L_ldtail")

    a.label("L_ldc")
    a(f"v_lshrrev_b32 v{vT}, 3, v{vLane}")
    a(f"v_lshlrev_b32 v{vT}, 12, v{vT}")
    a(f"v_and_b32 v{vT+1}, 7, v{vLane}")
    a(f"v_lshrrev_b32 v{vT+2}, 4, v{vLane}")
    a(f"v_xor_b32 v{vT+1}, v{vT+1}, v{vT+2}")
    a(f"v_lshl_add_u32 v{vO}, v{vT+1}, 4, v{vT}")
    a(f"v_xor_b32 v{vT+1}, 4, v{vT+1}")
    a(f"v_lshl_add_u32 v{vO+1}, v{vT+1}, 4, v{vT}")
    a(f"v_add_u32 v{vO+1}, {8*4096-1024}, v{vO+1}")
    a(f"v_add_u32 v{vO+2}, {16*4096-2048}, v{vO}")
    a(f"v_add_u32 v{vO+3}, {16*4096-2048}, v{vO+1}")
    a(f"s_lshl_b32 s{sBase}, s{sRB}, 18")
    a(f"s_lshl_b32 s{sT0}, s{sH}, 11")
    a(f"s_add_u32 s{sBase}, s{sBase}, s{sT0}")
    a("s_waitcnt lgkmcnt(0)")
    srd(a, sA, 6, C_BYTES)
    srd(a, sB, 8, C_BYTES)

    def issue_c():
        ins = [f"s_add_u32 s{sOff2}, s{sOff}, {32*4096}"]
        for grp in range(4):
            s_ = sA if grp < 2 else sB
            o_ = sOff if grp % 2 == 0 else sOff2
            ins.append(f"s_add_u32 m0, s{sSlot}, {grp*4096}")
            ins.append("s_nop 0")
            for q in range(4):
                ins.append(f"buffer_load_dwordx4 v{vO+q}, s[{s_}:{s_+3}], s{o_} offen offset:{q*1024} lds")
        return ins
    loader_loop("ldc", 16, issue_c, 128)

    a.label("L_ldx")
    for q in range(7):
        if q:
            a(f"v_add_u32 v{vT}, {64*q}, v{vLane}")
            src = vT
        else:
            src = vLane
        a(f"v_mul_u32_u24 v{vT+1}, 4682, v{src}")
        a(f"v_lshrrev_b32 v{vT+1}, 16, v{vT+1}")
        a(f"v_lshlrev_b32 v{vT+2}, 4, v{src}")
        a(f"v_mul_u32_u24 v{vT+3}, 224, v{vT+1}")
        a(f"v_sub_u32 v{vT+2}, v{vT+2}, v{vT+3}")
        a(f"v_lshrrev_b32 v{vT+3}, 1, v{vT+1}")
        a(f"v_and_b32 v{vT+3}, 4, v{vT+3}")
        a(f"v_xor_b32 v{vT+1}, v{vT+1}, v{vT+3}")
        a(f"v_mul_u32_u24 v{vT+1}, 896, v{vT+1}")
        a(f"v_add_u32 v{vO+q}, v{vT+2}, v{vT+1}")
        a(f"v_add_u32 v{vO+q+7}, {32*896 - 1024*((q+7)%4)}, v{vO+q}")
        if q % 4:
            a(f"v_subrev_u32 v{vO+q}, {1024*(q%4)}, v{vO+q}")
    a(f"s_mul_i32 s{sBase}, s{sH}, {1024*896}")
    a(f"s_mul_i32 s{sT0}, s{sJ}, 224")
    a(f"s_add_u32 s{sBase}, s{sBase}, s{sT0}")
    a("s_waitcnt lgkmcnt(0)")
    srd(a, sA, 4, X_BYTES)

    def issue_x():
        ins = []
        for q in range(14):
            if q % 4 == 0:
                ins.append(f"s_add_u32 m0, s{sSlot}, {XOFF + q*1024}")
                ins.append("s_nop 0")
            ins.append(f"buffer_load_dwordx4 v{vO+q}, s[{sA}:{sA+3}], s{sOff} offen offset:{(q%4)*1024} lds")
        return ins
    loader_loop("ldx", 14, issue_x, 64 * 896)

    a.label("L_ldtail")
    if OPT("LPRIO", 0):
        a("s_setprio 0")
    if OPT("LSTAMP"):
        srd(a, sWS, 58, WS_BYTES)
        a(f"s_sub_u32 s{sT3}, s{sW}, 4")
        sth.dump(sWS, sT0, vT, sT3)
    srd(a, sWS, 58, WS_BYTES)
    p2_offsets()
    dload_setup()
    assert PDEPTH == 3
    DS = [int(c) for c in os.environ.get("DSCHED", "022")]
    assert sum(DS) == 4
    nd = 0
    for k in range(PDEPTH):
        a(f"s_waitcnt vmcnt({(PDEPTH-1-k)*14 + 7*nd})")
        a("s_barrier")
        for q in range(nd, nd + DS[k]):
            for i in dloads(q):
                a(i)
        nd += DS[k]
    a("s_branch L_p2")

    a.label("L_aux")
    a(f"s_lshl_b32 s{sFl}, s{sRB}, 3")
    a(f"s_lshl_b32 s{sT0}, s{sH}, 2")
    a(f"s_add_u32 s{sFl}, s{sFl}, s{sT0}")
    a(f"s_add_u32 s{sFl}, s{sFl}, s{sJ}")
    a(f"s_mov_b32 s{sIt}, 0")
    a("s_waitcnt lgkmcnt(0)")
    srd(a, sWS, 58, WS_BYTES)
    a(f"s_cmp_eq_u32 s{sW}, 7")
    a("s_cbranch_scc1 L_aux7")
    a(f"v_and_b32 v{vT}, 15, v{vLane}")
    a(f"v_mul_u32_u24 v{vT}, 896, v{vT}")
    a(f"v_lshrrev_b32 v{vT+1}, 4, v{vLane}")
    a(f"v_lshl_add_u32 v{vT}, v{vT+1}, 3, v{vT}")
    a(f"s_mul_i32 s{sT0}, s{sFl}, 9363")
    a(f"s_lshr_b32 s{sT0}, s{sT0}, 16")
    a(f"s_mul_i32 s{sT1}, s{sT0}, 7")
    a(f"s_sub_u32 s{sT1}, s{sFl}, s{sT1}")
    a(f"s_mul_i32 s{sT0}, s{sT0}, {16*896}")
    a(f"s_lshl_b32 s{sT1}, s{sT1}, 7")
    a(f"s_add_u32 s{sT0}, s{sT0}, s{sT1}")
    srd(a, sB, 10, D_BYTES)
    srd(a, sE, 12, D_BYTES)
    for i in range(4):
        r = FX + i * 4
        a(f"buffer_load_dwordx2 v[{r}:{r+1}], v{vT}, s[{sB}:{sB+3}], s{sT0} offen offset:{i*32}")
        a(f"buffer_load_dwordx2 v[{r+2}:{r+3}], v{vT}, s[{sE}:{sE+3}], s{sT0} offen offset:{i*32}")
    a(f"s_lshl_b32 s{sT1}, s{sRB}, 7")
    a(f"s_and_b32 s{sT2}, s{sFl}, 7")
    a(f"s_lshl_b32 s{sT2}, s{sT2}, 2")
    a(f"s_add_u32 s{sT1}, s{sT1}, s{sT2}")
    a(f"s_add_u32 s{sT1}, s{sT1}, {LFOFF}")
    a(f"v_mov_b32 v{vT+2}, 0")
    a("s_mov_b64 exec, 1")
    a(f"buffer_store_dword v{vT+2}, v{vT+2}, s[{sWS}:{sWS+3}], s{sT1} offen")
    a("s_mov_b64 exec, -1")
    a(f"s_getreg_b32 s{sByte}, hwreg(HW_REG_XCC_ID)")
    a(f"s_and_b32 s{sByte}, s{sByte}, 7")
    a(f"s_lshr_b32 s{sT1}, s{sRB}, 3")
    a(f"s_lshl_b32 s{sT1}, s{sT1}, 6")
    a(f"s_and_b32 s{sT2}, s{sRB}, 7")
    a(f"s_lshl_b32 s{sT2}, s{sT2}, 2")
    a(f"s_add_u32 s{sT1}, s{sT1}, s{sT2}")
    a(f"s_add_u32 s{sT1}, s{sT1}, 32")
    a(f"s_add_u32 s{sCl}, s56, s{sT1}")
    a(f"s_addc_u32 s{sCl+1}, s57, 0")
    a(f"s_cmp_ge_u32 s{sFl}, 196")
    a("s_cbranch_scc1 L_aux_nod")
    a(f"s_lshl_b32 s{sT0}, s{sFl}, 12")
    a(f"s_add_u32 s{sT0}, s{sT0}, {DOFF}")
    a("s_waitcnt vmcnt(0)")
    for i in range(4):
        r = FX + i * 4
        a(f"v_xor_b32 v{r+2}, 0x80008000, v{r+2}")
        a(f"v_xor_b32 v{r+3}, 0x80008000, v{r+3}")
        a(f"buffer_store_dwordx4 v[{r}:{r+3}], v{vL16}, s[{sWS}:{sWS+3}], s{sT0} offen offset:{i*1024} sc1")
    a.label("L_aux_nod")
    for k in range(NB1):
        a("s_barrier")
    a("s_waitcnt vmcnt(0)")
    a(f"s_and_b32 s{sT0}, s{sFl}, 7")
    a(f"s_mul_i32 s{sT0}, s{sT0}, 3")
    a(f"s_lshl_b32 s{sT0}, s{sByte}, s{sT0}")
    a(f"s_add_u32 s{sT0}, s{sT0}, 0x1000000")
    a(f"s_atomic_add s{sT0}, s[{sCl}:{sCl+1}], 0")
    a(f"s_cmp_ge_u32 s{sFl}, 196")
    a("s_cbranch_scc1 L_aux_nod2")
    a(f"s_mul_i32 s{sT1}, s{sFl}, 1338")
    a(f"s_lshr_b32 s{sT1}, s{sT1}, 16")
    a(f"s_lshl_b32 s{sT1}, s{sT1}, 6")
    a(f"s_add_u32 s{sDc}, s56, s{sT1}")
    a(f"s_addc_u32 s{sDc+1}, s57, 0")
    a(f"s_mov_b32 s{sT1}, 1")
    a(f"s_atomic_add s{sT1}, s[{sDc}:{sDc+1}], 0")
    a.label("L_aux_nod2")
    for k in range(NB1, NB2):
        a("s_barrier")
    a("s_waitcnt lgkmcnt(0)")
    a(f"s_lshl_b32 s{sT1}, s{sJ}, 6")
    a(f"s_add_u32 s{sDc}, s56, s{sT1}")
    a(f"s_addc_u32 s{sDc+1}, s57, 0")
    a(f"s_mov_b32 s{sT2}, 0")
    a(f"s_mov_b32 s{sT3}, 0")
    a(f"s_atomic_add s{sT2}, s[{sCl}:{sCl+1}], 0 glc")
    a(f"s_atomic_add s{sT3}, s[{sDc}:{sDc+1}], 0 glc")
    a("s_barrier")
    a("s_barrier")
    a.label("L_poll1")
    a("s_waitcnt lgkmcnt(0)")
    a(f"s_add_u32 s{sIt}, s{sIt}, 1")
    a(f"s_lshr_b32 s{sT0}, s{sT2}, 24")
    a(f"s_and_b32 s{sT0}, s{sT0}, 15")
    a(f"s_lshl_b32 s{sT0}, s{sT0}, 8")
    a(f"s_add_u32 s{sT0}, s{sT0}, s{sT3}")
    a(f"s_cmp_eq_u32 s{sT0}, {8*256+49}")
    a("s_cbranch_scc1 L_poll1_done")
    a(f"s_cmp_ge_u32 s{sIt}, {SPIN}")
    a("s_cbranch_scc1 L_poll1_done")
    a("s_sleep 16")
    a(f"s_mov_b32 s{sT2}, 0")
    a(f"s_mov_b32 s{sT3}, 0")
    a(f"s_atomic_add s{sT2}, s[{sCl}:{sCl+1}], 0 glc")
    a(f"s_atomic_add s{sT3}, s[{sDc}:{sDc+1}], 0 glc")
    a("s_branch L_poll1")
    a.label("L_poll1_done")
    a(f"s_mul_i32 s{sT0}, s{sByte}, 0x249249")
    a(f"s_and_b32 s{sT2}, s{sT2}, 0xffffff")
    a(f"s_cmp_eq_u32 s{sT2}, s{sT0}")
    a(f"s_cselect_b32 s{sLoc}, {0 if OPT('FORCESLOW') else 1}, 0")
    a(f"v_mov_b32 v{vT}, {LDS_DEC}")
    a(f"v_mov_b32 v{vT+1}, s{sLoc}")
    a(f"ds_write_b32 v{vT}, v{vT+1}")
    a("s_waitcnt lgkmcnt(0)")
    a("s_branch L_aux_pre")
    a.label("L_aux7")
    if OPT("CODEPF", 1):
        a("s_getpc_b64 s[60:61]")
        a.label("L_pc")
        a(f"s_sub_u32 s60, s60, L_pc-{NAME}")
        a("s_subb_u32 s61, s61, 0")
        a(f"v_lshlrev_b32 v{vT}, 7, v{vLane}")
        a(f"v_min_u32 v{vT}, L_end-{NAME}-4, v{vT}")
        a(f"global_load_dword v{vT+2}, v{vT}, s[60:61]")
        a("s_waitcnt vmcnt(0)")
    for k in range(NB2 + 2):
        a("s_barrier")
    a.label("L_aux_pre")
    p2_offsets()
    dload_setup()
    nb = NB2 + 2
    DSTART = OPT("DSTART", NB2 + 3)
    while nb < DSTART:
        a("s_barrier")
        nb += 1
    if OPT("DPF", 0):
        a(f"s_lshr_b32 s{sT0}, s2, 5")
        a(f"s_mul_i32 s{sT0}, s{sT0}, 25088")
        a(f"s_mul_i32 s{sT1}, s{sJ}, 200704")
        a(f"s_add_u32 s{sT0}, s{sT0}, s{sT1}")
        a(f"s_add_u32 s{sT0}, s{sT0}, {DOFF}")
        a(f"s_sub_u32 s{sT1}, s{sW}, 6")
        a(f"s_lshl_b32 s{sT1}, s{sT1}, 14")
        a(f"v_lshlrev_b32 v{vCb}, 7, v{vLane}")
        a(f"v_add_u32 v{vCb}, s{sT1}, v{vCb}")
        a(f"v_add_u32 v{vCb+1}, 8192, v{vCb}")
        a(f"v_min_u32 v{vCb+1}, {25088-128}, v{vCb+1}")
        a(f"buffer_load_dword v{vXb}, v{vCb}, s[{sWS}:{sWS+3}], s{sT0} offen sc1")
        a(f"buffer_load_dword v{vXb}, v{vCb+1}, s[{sWS}:{sWS+3}], s{sT0} offen sc1")
        for k in range(OPT("DPFGAP", 2)):
            a("s_barrier")
            nb += 1
    DS2 = [int(c) for c in os.environ.get("DSCHED2", os.environ.get("DSCHED", "022"))]
    nd = 0
    while nb < 16:
        a("s_barrier")
        nb += 1
        k = nb - 1 - (16 - len(DS2))
        if k >= 0:
            for q in range(nd, nd + DS2[k]):
                for i in dloads(q):
                    a(i)
            nd += DS2[k]
    assert nd == 4
    a("s_branch L_p2")
    a.label("L_done")
    a("s_endpgm")
    a.label("L_end")
    return name, 256, 0, NSLOT * SLOT + 256, 512


def main():
    a = Asm()
    a.raw('.amdgcn_target "amdgcn-amd-amdhsa--gfx950"')
    a.raw(".text")
    name, nv, na, lds, blk = gen(a)
    out = HEADER
    out += f"; @launch grid=(256,1,1) block=({blk},1,1) lds={lds}\n"
    txt = a.text()
    if OPT("REORD", 1):
        import re
        parts = re.split(r"^;;BLOCK (\w+)\n", txt, flags=re.M)
        blk = {"head": parts[0]}
        for k in range(1, len(parts), 2):
            blk[parts[k]] = parts[k + 1]
        txt = blk["head"] + blk["ld"] + blk["comp"] + blk["rest"]
    out += txt
    out += '.section .rodata,"a"\n'
    out += G.descriptor(name, nv, na)
    path = sys.argv[1] if len(sys.argv) > 1 else "standalone__spectral_fnet__prompt.s"
    open(path, "w").write(out)


if __name__ == "__main__":
    main()
```

```python
import sys, os, math
import gen as G
from gen import OPT, Asm, Stamps, srd, interleave, flat, X_BYTES, C_BYTES, D_BYTES, DOFF, STAMP_OFF, HEADER

NSLOT, SLOT, XOFF, NSTAGE = 5, 30720, 16384, 16
ROT = OPT("ROT", 5)
PDEPTH = OPT('PDEPTH', 3)
SPIN = 1 << 14
NAME = "standalone__spectral_fnet__prompt_kernel"
DF_END = DOFF + 784 * 1024
LFOFF = DF_END
WS_BYTES = LFOFF + 32 * 128
LDS_DEC = NSLOT * SLOT
LDS_XCH = 114688
NB1 = OPT("NB1", 2)
NB2 = OPT("NB2", 6)


def gen(a):
    name = NAME
    a.raw(f".globl {name}")
    a.raw(".p2align 8")
    a.raw(f".type {name},@function")
    a.label(name)
    sA, sB, sWS, sE = 16, 20, 24, 28
    sCl, sDc = 32, 34
    sW = 36
    sT0, sT1, sT2, sT3 = 37, 38, 39, 40
    sH, sRB, sJ = 41, 42, 43
    sRot, sBase, sOff, sOff2, sSlot, sIt = 46, 47, 48, 49, 50, 51
    sFl, sLoc, sByte = 52, 53, 54
    sD0, sD1 = 60, 61
    sPQ = 62
    sPL = 63

    vLane = 1
    vT = 2
    vCb0 = 6
    vXb0 = 8
    vCb = 10
    vXb = 12
    vL16 = 14
    vO = 16
    FX, FY = 16, 52
    ACC = 88
    DFR = 144
    ACC2 = 88
    PB = 16

    def cfrag(b, n):
        return b + n * 4

    def xfrag(b, m):
        return b + 8 + m * 4

    def acc(m, n):
        return ACC + (m * 2 + n) * 4

    def df(ml, e):
        return DFR + (ml * 2 + e) * 4

    st = Stamps(a, 64, 0)
    a("s_cmp_ge_u32 s2, 256")
    a("s_cbranch_scc1 L_done")
    st()
    a("s_load_dwordx8 s[4:11], s[0:1], 0")
    a("s_load_dwordx4 s[12:15], s[0:1], 32")
    a("s_load_dwordx4 s[56:59], s[0:1], 48")
    a(f"v_lshrrev_b32 v{vT}, 6, v0")
    a(f"v_and_b32 v{vLane}, 63, v0")
    a(f"v_readfirstlane_b32 s{sW}, v{vT}")
    if OPT("CODEPF", 2) == 2:
        a(f"s_cmp_lg_u32 s{sW}, 7")
        a("s_cbranch_scc1 L_nopf")
        a("s_getpc_b64 s[60:61]")
        a.label("L_pc")
        a(f"v_lshlrev_b32 v{vT}, 7, v{vLane}")
        a(f"v_min_u32 v{vT}, L_end-L_pc-4, v{vT}")
        a(f"global_load_dword v{vT+2}, v{vT}, s[60:61]")
        a.label("L_nopf")
    a(f"s_and_b32 s{sT0}, s2, 7")
    a(f"s_lshr_b32 s{sT1}, s2, 3")
    a(f"s_and_b32 s{sJ}, s{sT1}, 3")
    a(f"s_lshr_b32 s{sH}, s{sT1}, 2")
    a(f"s_and_b32 s{sH}, s{sH}, 1")
    a(f"s_lshr_b32 s{sRot}, s{sT1}, 3")
    a(f"s_lshl_b32 s{sRB}, s{sRot}, 3")
    a(f"s_add_u32 s{sRB}, s{sRB}, s{sT0}")
    if ROT == 2:
        a(f"s_add_u32 s{sRot}, s{sRot}, s{sJ}")
        a(f"s_lshl_b32 s{sRot}, s{sRot}, 2")
    elif ROT == 5:
        a(f"s_lshl_b32 s{sRot}, s{sRot}, 2")
        a(f"s_lshr_b32 s{sT2}, s{sJ}, 1")
        a(f"s_lshl_b32 s{sT2}, s{sT2}, 3")
        a(f"s_add_u32 s{sRot}, s{sRot}, s{sT2}")
    elif ROT == 1:
        a(f"s_lshl_b32 s{sRot}, s{sRot}, 2")
    else:
        a(f"s_mov_b32 s{sRot}, 0")
    a(f"s_and_b32 s{sRot}, s{sRot}, 15")
    a(f"v_lshlrev_b32 v{vL16}, 4, v{vLane}")
    if OPT("REORD", 1):
        a(f"s_cmp_eq_u32 s{sW}, 5")
        a("s_cbranch_scc1 L_ldx")
        a(f"s_cmp_ge_u32 s{sW}, 6")
        a("s_cbranch_scc1 L_aux")
        a(f"s_cmp_lt_u32 s{sW}, 4")
        a("s_cbranch_scc1 L_comp")
    else:
        a(f"s_cmp_eq_u32 s{sW}, 4")
        a("s_cbranch_scc1 L_ldc")
        a(f"s_cmp_eq_u32 s{sW}, 5")
        a("s_cbranch_scc1 L_ldx")
        a(f"s_cmp_ge_u32 s{sW}, 6")
        a("s_cbranch_scc1 L_aux")

    def p2_offsets():
        a(f"s_and_b32 s{sT0}, s{sW}, 1")
        a(f"s_mul_i32 s{sT0}, s{sT0}, 14")
        a(f"s_lshr_b32 s{sT1}, s{sW}, 1")
        a(f"s_mul_i32 s{sT2}, s{sT1}, 56")
        a(f"s_add_u32 s{sT0}, s{sT0}, s{sT2}")
        a(f"s_mul_i32 s{sT2}, s{sJ}, 196")
        a(f"s_add_u32 s{sT0}, s{sT0}, s{sT2}")
        a(f"s_lshl_b32 s{sT0}, s{sT0}, 10")
        a(f"s_add_u32 s{sD0}, s{sT0}, {DOFF}")
        a(f"s_add_u32 s{sD1}, s{sT0}, {DOFF + 28*1024}")
        a(f"s_cmp_eq_u32 s{sT1}, 3")
        a(f"s_cselect_b32 s{sD1}, 0x7f000000, s{sD1}")
        a(f"s_and_b32 s{sT0}, s{sW}, 3")
        a(f"s_lshr_b32 s{sT1}, s{sW}, 2")
        a(f"s_mul_i32 s{sT1}, s{sT1}, 14")
        a(f"s_mul_i32 s{sPL}, s{sT0}, 28")
        a(f"s_add_u32 s{sPL}, s{sPL}, s{sT1}")
        a(f"s_lshl_b32 s{sPL}, s{sPL}, 10")
        a(f"s_lshr_b32 s{sT2}, s{sT0}, 1")
        a(f"s_lshl_b32 s{sT2}, s{sT2}, 7")
        a(f"s_and_b32 s{sT0}, s{sT0}, 1")
        a(f"s_add_u32 s{sT0}, s{sT0}, s{sT2}")
        a(f"s_lshl_b32 s{sT2}, s{sRB}, 2")
        a(f"s_add_u32 s{sT0}, s{sT0}, s{sT2}")
        a(f"s_lshl_b32 s{sT2}, s{sH}, 1")
        a(f"s_add_u32 s{sT0}, s{sT0}, s{sT2}")
        a(f"s_mul_i32 s{sT0}, s{sT0}, 28")
        a(f"s_add_u32 s{sT0}, s{sT0}, s{sT1}")
        a(f"s_lshl_b32 s{sPQ}, s{sT0}, 10")

    def dloads(q):
        ins = []
        idx = list(range(q * 7, q * 7 + 7))
        for t in idx:
            ml, e = t >> 1, t & 1
            r = df(ml, e)
            grp, off = ml // 4, (ml % 4) * 1024
            ins.append((grp, f"buffer_load_dwordx4 v[{r}:{r+3}], v{{V}}, s[{sWS}:{sWS+3}], s{sD0+e} offen offset:{off} sc1"))
        out = []
        for grp, i in ins:
            out.append(i.replace("{V}", str(vT + grp)))
        return out

    def dload_setup():
        a(f"v_mov_b32 v{vT}, v{vL16}")
        for g_ in range(1, 4):
            a(f"v_add_u32 v{vT+g_}, {4096*g_}, v{vL16}")

    a.label("L_comp")
    a(f"v_and_b32 v{vT}, 15, v{vLane}")
    a(f"v_lshrrev_b32 v{vT+1}, 4, v{vLane}")
    a(f"v_lshrrev_b32 v{vT+3}, 1, v{vT}")
    a(f"v_xor_b32 v{vT+2}, v{vT+1}, v{vT+3}")
    a(f"v_lshlrev_b32 v{vT+2}, 4, v{vT+2}")
    a(f"v_lshl_add_u32 v{vCb0}, v{vT}, 7, v{vT+2}")
    a(f"s_lshl_b32 s{sT0}, s{sW}, 11")
    a(f"v_add_u32 v{vCb0}, s{sT0}, v{vCb0}")
    a(f"v_xor_b32 v{vCb0+1}, 64, v{vCb0}")
    a(f"v_lshlrev_b32 v{vT+2}, 3, v{vT+1}")
    a(f"v_lshrrev_b32 v{vT+3}, 2, v{vT}")
    a(f"v_add_u32 v{vT+2}, v{vT+2}, v{vT+3}")
    a(f"v_and_b32 v{vT+3}, 1, v{vT+1}")
    a(f"v_lshlrev_b32 v{vT+3}, 2, v{vT+3}")
    a(f"v_add_u32 v{vXb0}, v{vT+2}, v{vT+3}")
    a(f"v_xor_b32 v{vT+3}, 4, v{vT+3}")
    a(f"v_add_u32 v{vXb0+1}, v{vT+2}, v{vT+3}")
    a(f"v_and_b32 v{vT}, 3, v{vT}")
    a(f"v_lshlrev_b32 v{vT}, 3, v{vT}")
    a(f"v_add_u32 v{vT}, {XOFF}, v{vT}")
    a(f"v_mov_b32 v{vT+1}, 224")
    a(f"v_mad_u32_u24 v{vXb0}, v{vXb0}, v{vT+1}, v{vT}")
    a(f"v_mad_u32_u24 v{vXb0+1}, v{vXb0+1}, v{vT+1}, v{vT}")
    for r in range(36 + 56):
        a(f"v_mov_b32 v{FY+r}, 0")
    for r in range(2):
        a(f"v_mov_b32 v{vCb+r}, v{vCb0+r}")
        a(f"v_mov_b32 v{vXb+r}, v{vXb0+r}")
    a(f"v_add_u32 v{vL16+1}, 4096, v{vL16}")
    a(f"s_lshl_b32 s{sOff}, s{sH}, 7")
    a(f"s_lshl_b32 s{sT1}, s{sRB}, 2")
    a(f"s_add_u32 s{sOff}, s{sOff}, s{sT1}")
    a(f"s_add_u32 s{sOff}, s{sOff}, s{sW}")
    a(f"s_mul_i32 s{sOff}, s{sOff}, 28")
    a(f"s_mul_i32 s{sT1}, s{sJ}, 7")
    a(f"s_add_u32 s{sOff}, s{sOff}, s{sT1}")
    a(f"s_lshl_b32 s{sOff}, s{sOff}, 10")
    p2_offsets()
    dload_setup()
    a("s_waitcnt lgkmcnt(0)")
    srd(a, sWS, 58, WS_BYTES)

    def frag_reads(b, kk):
        ins = []

        def xr(m):
            return [f"ds_read_b64_tr_b16 v[{xfrag(b,m)}:{xfrag(b,m)+1}], v{vXb} offset:{m*32+kk*7168}",
                    f"ds_read_b64_tr_b16 v[{xfrag(b,m)+2}:{xfrag(b,m)+3}], v{vXb+1} offset:{m*32+kk*7168}"]
        ins += xr(0)
        for n in range(2):
            ins.append(f"ds_read_b128 v[{cfrag(b,n)}:{cfrag(b,n)+3}], v{vCb+kk} offset:{n*8192}")
        for m in range(1, 7):
            ins += xr(m)
        return ins

    def mfmas(b):
        return [f"v_mfma_f32_16x16x32_bf16 v[{acc(m,n)}:{acc(m,n)+3}], v[{xfrag(b,m)}:{xfrag(b,m)+3}], "
                f"v[{cfrag(b,n)}:{cfrag(b,n)+3}], v[{acc(m,n)}:{acc(m,n)+3}]"
                for m in range(7) for n in range(2)]

    a(f"s_mov_b32 s{sSlot}, 0")
    a(f"s_mov_b32 s{sIt}, 0")
    if OPT("TRACE"):
        a("s_mov_b32 s98, 5")
    DIT = OPT("DIT", 0)
    DQ0 = OPT("DQ0", 4)
    a.label("L_loop")
    a("s_waitcnt lgkmcnt(0)")
    a("s_barrier")
    if DIT:
        a(f"s_cmp_eq_u32 s{sIt}, {DIT}")
        a("s_cbranch_scc1 L_dl")
        a.label("L_dl_back")
    if OPT("TRACE"):
        a("s_memtime s[96:97]")
        a("s_waitcnt lgkmcnt(0)")
        a(f"s_mov_b32 m0, s98")
        a("s_add_u32 s98, s98, 1")
        a(f"v_writelane_b32 v0, s96, m0")
    for i in interleave(mfmas(FY), frag_reads(FX, 0) + [[f"s_add_u32 s{sSlot}, s{sSlot}, {SLOT}",
                                                          f"s_cmp_eq_u32 s{sSlot}, {SLOT*NSLOT}",
                                                          f"s_cselect_b32 s{sSlot}, 0, s{sSlot}"]], per=2):
        a(i)
    a("s_waitcnt lgkmcnt(0)")
    nxt = [f"v_add_u32 v{vCb+r}, s{sSlot}, v{vCb0+r}" for r in range(2)] + \
          [f"v_add_u32 v{vXb+r}, s{sSlot}, v{vXb0+r}" for r in range(2)] + \
          [[f"s_add_u32 s{sIt}, s{sIt}, 1", f"s_cmp_lt_u32 s{sIt}, {NSTAGE}"]]
    for i in interleave(mfmas(FX), frag_reads(FY, 1) + nxt, per=2):
        a(i)
    a("s_cbranch_scc1 L_loop")
    a(f"v_mov_b32 v{vCb}, {LDS_DEC}")
    a(f"ds_read_b32 v{vCb}, v{vCb}")
    a("s_waitcnt lgkmcnt(0)")
    for i in mfmas(FY):
        a(i)
    if not OPT("FINE"):
        st()
    a(f"v_readfirstlane_b32 s{sLoc}, v{vCb}")
    a("s_nop 4")
    for m in range(7):
        p, q = acc(m, 0), acc(m, 1)
        o = FX + m * 4
        a(f"v_cvt_pk_bf16_f32 v{o}, v{p}, v{p+1}")
        a(f"v_cvt_pk_bf16_f32 v{o+1}, v{p+2}, v{p+3}")
        a(f"v_cvt_pk_bf16_f32 v{o+2}, v{q}, v{q+1}")
        a(f"v_cvt_pk_bf16_f32 v{o+3}, v{q+2}, v{q+3}")
    a(f"s_cmp_eq_u32 s{sLoc}, 1")
    a("s_cbranch_scc1 L_st_loc")
    for loc in range(2):
        if loc:
            a.label("L_st_loc")
        for m in range(7):
            o = FX + m * 4
            a(f"buffer_store_dwordx4 v[{o}:{o+3}], v{vL16 + (m // 4)}, s[{sWS}:{sWS+3}], s{sOff} offen offset:{(m%4)*1024} {'' if loc else 'sc1'}")
        if not loc:
            a("s_branch L_st_done")
    a.label("L_st_done")
    if DIT:
        a("s_waitcnt vmcnt(0)")
        a("s_branch L_p2")
        a.label("L_dl")
        for q in range(4):
            for i in dloads(q):
                a(i)
        a("s_branch L_dl_back")
    elif OPT("DLATE", 1):
        a("s_waitcnt vmcnt(0)")
        a("s_barrier")
        for q in range(DQ0):
            for i in dloads(q):
                a(i)
        a("s_branch L_p2_after")
    else:
        for q in range(4):
            for i in dloads(q):
                a(i)
        a("s_waitcnt vmcnt(28)")

    a.label("L_p2")
    a("s_barrier")
    a.label("L_p2_after")
    if not OPT("FINE"):
        st()
    a(f"v_mov_b32 v{vCb}, {LDS_DEC}")
    a(f"ds_read_b32 v{vCb}, v{vCb}")
    for r in range(16):
        a(f"v_mov_b32 v{ACC2+r}, 0")
    a("s_waitcnt lgkmcnt(0)")
    a(f"v_readfirstlane_b32 s{sLoc}, v{vCb}")
    a(f"s_cmp_eq_u32 s{sW}, 6")
    a("s_cbranch_scc0 L_p2_wait")
    a(f"v_mov_b32 v{vT}, 0")
    a(f"s_mov_b32 s{sIt}, 0")
    a(f"s_cmp_eq_u32 s{sLoc}, 1")
    a("s_cbranch_scc1 L_pub_loc")
    a(f"s_mov_b32 s{sT0}, 0x10000000")
    a(f"s_atomic_add s{sT0}, s[{sCl}:{sCl+1}], 0")
    a.label("L_poll2")
    a(f"s_mov_b32 s{sT2}, 0")
    a(f"s_atomic_add s{sT2}, s[{sCl}:{sCl+1}], 0 glc")
    a("s_waitcnt lgkmcnt(0)")
    a(f"s_add_u32 s{sIt}, s{sIt}, 1")
    a(f"s_lshr_b32 s{sT2}, s{sT2}, 28")
    a(f"s_cmp_eq_u32 s{sT2}, 8")
    a("s_cbranch_scc1 L_poll_done")
    a("s_sleep 16")
    a(f"s_cmp_lt_u32 s{sIt}, {SPIN}")
    a("s_cbranch_scc1 L_poll2")
    a("s_branch L_poll_done")
    a.label("L_pub_loc")
    a(f"s_lshl_b32 s{sT1}, s{sRB}, 7")
    a(f"s_add_u32 s{sT1}, s{sT1}, {LFOFF}")
    a(f"s_and_b32 s{sT0}, s{sFl}, 7")
    a(f"s_lshl_b32 s{sT0}, s{sT0}, 2")
    a(f"s_add_u32 s{sT0}, s{sT0}, s{sT1}")
    a(f"v_mov_b32 v{vT+1}, 1")
    a(f"v_lshlrev_b32 v{vT+3}, 2, v{vLane}")
    a("s_mov_b64 exec, 1")
    a(f"buffer_store_dword v{vT+1}, v{vT}, s[{sWS}:{sWS+3}], s{sT0} offen")
    a("s_mov_b64 exec, 0xff")
    a.label("L_poll3")
    a(f"buffer_load_dword v{vT+2}, v{vT+3}, s[{sWS}:{sWS+3}], s{sT1} offen sc1")
    a("s_waitcnt vmcnt(0)")
    a(f"v_cmp_ne_u32 vcc, 1, v{vT+2}")
    a(f"s_add_u32 s{sIt}, s{sIt}, 1")
    a("s_nop 3")
    a("s_cmp_eq_u64 vcc, 0")
    a("s_cbranch_scc1 L_poll_done")
    a(f"s_cmp_lt_u32 s{sIt}, {SPIN}")
    a("s_cbranch_scc1 L_poll3")
    a.label("L_poll_done")
    a("s_mov_b64 exec, -1")
    a.label("L_p2_wait")
    a(f"s_and_b32 s{sT0}, s{sW}, 1")
    a(f"s_mul_i32 s{sT0}, s{sT0}, 14336")
    a(f"v_add_u32 v{vCb}, s{sT0}, v{vL16}")
    a(f"v_add_u32 v{vCb+1}, 57344, v{vCb}")
    if OPT("WDRAIN"):
        a("s_waitcnt vmcnt(0)")
    a("s_barrier")
    st()
    RB_ = [int(x) for x in os.environ.get("RNDS", "0,2,5,8,11,14").split(",")]
    AHEAD = OPT("AHEAD", 2)

    def pqdma(rnd):
        if rnd >= len(RB_) - 1:
            return
        lo, hi = RB_[rnd], RB_[rnd + 1]
        for i in range(lo, hi):
            if (i - lo) % 4 == 0:
                a(f"s_add_u32 m0, s{sPL}, {i*1024}")
                a(f"s_add_u32 s{sT1}, s{sPQ}, {i*1024}")
            a(f"buffer_load_dwordx4 v{vL16}, s[{sWS}:{sWS+3}], s{sT1} offen offset:{((i-lo)%4)*1024} {'' if OPT('PQPLAIN') else 'sc1 '}lds")
    lab = [0]
    seq = []
    dq = [DQ0]

    def dnext():
        if dq[0] >= 4:
            return
        lab[0] += 1
        a(f"s_cmp_ge_u32 s{sW}, 4")
        a(f"s_cbranch_scc1 L_dq{lab[0]}")
        for i in dloads(dq[0]):
            a(i)
        a.label(f"L_dq{lab[0]}")
        seq.append(('q', dq[0], 7))
        dq[0] += 1

    def pq_issue(rnd):
        if rnd < len(RB_) - 1:
            pqdma(rnd)
            seq.append(('r', rnd, RB_[rnd + 1] - RB_[rnd]))

    def wait_round(rnd):
        hi = RB_[rnd + 1]
        qneed = (2 * hi - 1) // 7
        last = -1
        for k, (t, i, n) in enumerate(seq):
            if (t == 'r' and i <= rnd) or (t == 'q' and i <= qneed):
                last = k
        assert dq[0] > qneed, "D quarter not issued yet"
        cw = sum(n for t, i, n in seq[last + 1:])
        lastr = max(k for k, (t, i, n) in enumerate(seq) if t == 'r' and i <= rnd)
        hw = sum(n for t, i, n in seq[lastr + 1:] if t == 'r')
        if cw == hw:
            a(f"s_waitcnt vmcnt({cw})")
        else:
            lab[0] += 1
            a(f"s_cmp_ge_u32 s{sW}, 4")
            a(f"s_cbranch_scc1 L_wh{lab[0]}")
            a(f"s_waitcnt vmcnt({cw})")
            a(f"s_branch L_wd{lab[0]}")
            a.label(f"L_wh{lab[0]}")
            a(f"s_waitcnt vmcnt({hw})")
            a.label(f"L_wd{lab[0]}")

    for r_ in range(AHEAD):
        pq_issue(r_)
    dnext()

    def preads(ml):
        b = PB + (ml % 3) * 16
        return [f"ds_read_b128 v[{b+(hh*2+tl)*4}:{b+(hh*2+tl)*4+3}], v{vCb+hh} offset:{(tl*28+ml)*1024}"
                for hh in range(2) for tl in range(2)]

    def mf2(ml):
        b = PB + (ml % 3) * 16
        return [f"v_mfma_f32_16x16x32_bf16 v[{ACC2+(e*2+tl)*4}:{ACC2+(e*2+tl)*4+3}], v[{df(ml,e)}:{df(ml,e)+3}], "
                f"v[{b+(hh*2+tl)*4}:{b+(hh*2+tl)*4+3}], v[{ACC2+(e*2+tl)*4}:{ACC2+(e*2+tl)*4+3}]"
                for hh in range(2) for e in range(2) for tl in range(2)]

    for rnd in range(len(RB_) - 1):
        lo, hi = RB_[rnd], RB_[rnd + 1]
        issued = RB_[min(rnd + AHEAD, len(RB_) - 1)]
        if OPT("FINE") and rnd < 2:
            st()
        wait_round(rnd)
        a("s_barrier")
        if OPT("FINE") and rnd < 2:
            st()
            a("s_waitcnt lgkmcnt(0)")
        for i in preads(lo) + (preads(lo + 1) if lo + 1 < hi else []):
            a(i)
        pq_issue(rnd + AHEAD)
        dnext()
        for ml in range(lo, hi):
            nxt_ = preads(ml + 2) if ml + 2 < hi else []
            a(f"s_waitcnt lgkmcnt({4 if ml + 1 < hi else 0})")
            for i in interleave(mf2(ml), nxt_, per=1):
                a(i)
    st()
    a(f"s_lshl_b32 s{sT0}, s{sW}, 11")
    a(f"s_add_u32 s{sT0}, s{sT0}, {LDS_XCH}")
    a(f"s_xor_b32 s{sT1}, s{sT0}, 2048")
    a(f"v_add_u32 v{vT}, s{sT0}, v{vL16}")
    a(f"v_add_u32 v{vT+1}, s{sT1}, v{vL16}")
    srd(a, sA, 14, X_BYTES)
    a(f"v_and_b32 v{vT+2}, 15, v{vLane}")
    a(f"v_mul_u32_u24 v{vT+2}, 896, v{vT+2}")
    a(f"v_lshrrev_b32 v{vT+3}, 4, v{vLane}")
    a(f"v_lshl_add_u32 v{vT+2}, v{vT+3}, 3, v{vT+2}")
    a(f"s_lshl_b32 s{sT0}, s{sRB}, 6")
    a(f"s_lshl_b32 s{sT1}, s{sH}, 5")
    a(f"s_add_u32 s{sT0}, s{sT0}, s{sT1}")
    a(f"s_and_b32 s{sT2}, s{sW}, 1")
    a(f"s_lshl_b32 s{sT1}, s{sT2}, 4")
    a(f"s_add_u32 s{sT0}, s{sT0}, s{sT1}")
    a(f"s_mul_i32 s{sT0}, s{sT0}, 896")
    a(f"s_mul_i32 s{sT1}, s{sJ}, 224")
    a(f"s_add_u32 s{sT0}, s{sT0}, s{sT1}")
    a(f"s_lshr_b32 s{sT1}, s{sW}, 1")
    a(f"s_lshl_b32 s{sT1}, s{sT1}, 6")
    a(f"s_add_u32 s{sT0}, s{sT0}, s{sT1}")
    a(f"s_cmp_eq_u32 s{sT2}, 0")
    a("s_cbranch_scc1 L_x0")
    for e in range(2):
        for k in range(4):
            a(f"v_swap_b32 v{ACC2+(e*2)*4+k}, v{ACC2+(e*2+1)*4+k}")
    a.label("L_x0")
    for e in range(2):
        r = ACC2 + (e * 2 + 1) * 4
        a(f"ds_write_b128 v{vT}, v[{r}:{r+3}] offset:{e*1024}")
    a("s_waitcnt lgkmcnt(0)")
    a("s_barrier")
    for e in range(2):
        a(f"ds_read_b128 v[{PB+e*4}:{PB+e*4+3}], v{vT+1} offset:{e*1024}")
    for e in range(2):
        if e == 1:
            a(f"s_cmp_ge_u32 s{sW}, 6")
            a("s_cbranch_scc1 L_fin")
        a(f"s_waitcnt lgkmcnt({1-e})")
        r = ACC2 + (e * 2) * 4
        for k in range(4):
            a(f"v_add_f32 v{r+k}, v{r+k}, v{PB+e*4+k}")
        a(f"v_cvt_pk_bf16_f32 v{PB+8+e*2}, v{r}, v{r+1}")
        a(f"v_cvt_pk_bf16_f32 v{PB+9+e*2}, v{r+2}, v{r+3}")
        a(f"buffer_store_dwordx2 v[{PB+8+e*2}:{PB+9+e*2}], v{vT+2}, s[{sA}:{sA+3}], s{sT0} offen offset:{e*32}")
    a.label("L_fin")
    if OPT("DBGSTAMP"):
        a("s_waitcnt vmcnt(0)")
        st()
        a("s_waitcnt lgkmcnt(0)")
        a(f"s_xor_b32 s{sT0}, s2, {OPT('DW', 5)}")
        a(f"s_add_u32 s{sT0}, s{sT0}, s{sW}")
        a(f"s_lshl_b32 s{sT0}, s{sT0}, 8")
        srd(a, sA, 56, 32)
        a(f"v_mov_b32 v{vT+1}, 0")
        for i in range(1, st.n):
            a(f"s_sub_u32 s{sT1}, s{64+i*4+2}, s66")
            a(f"v_mov_b32 v{vT}, s{sT1}")
            a(f"buffer_store_dword v{vT}, v{vT+1}, s[{sA}:{sA+3}], s{sT0} offen offset:{i*4}")
    if OPT("STAMP"):
        a(f"s_cmp_ge_u32 s{sW}, 4")
        a("s_cbranch_scc1 L_done")
        a("s_waitcnt vmcnt(0)")
        st.dump(sWS, sT0, vT, sW)
    if OPT("TRACE"):
        a(f"v_writelane_b32 v0, s64, 0")
        a(f"s_lshl_b32 s{sT0}, s2, 2")
        a(f"s_add_u32 s{sT0}, s{sT0}, s{sW}")
        a(f"s_lshl_b32 s{sT0}, s{sT0}, 8")
        a(f"s_add_u32 s{sT0}, s{sT0}, {STAMP_OFF + 3 * (1 << 20)}")
        a(f"v_lshlrev_b32 v{vT}, 2, v{vLane}")
        a(f"buffer_store_dword v0, v{vT}, s[{sWS}:{sWS+3}], s{sT0} offen")
    a("s_endpgm")

    sth = Stamps(a, 64, 2)

    def loader_loop(tag, n, issue, stepbytes):
        adv = [f"s_add_u32 s{sRot}, s{sRot}, 1",
               f"s_and_b32 s{sRot}, s{sRot}, 15",
               f"s_mul_i32 s{sOff}, s{sRot}, {stepbytes}",
               f"s_add_u32 s{sOff}, s{sOff}, s{sBase}",
               f"s_add_u32 s{sSlot}, s{sSlot}, {SLOT}",
               f"s_cmp_eq_u32 s{sSlot}, {SLOT*NSLOT}",
               f"s_cselect_b32 s{sSlot}, 0, s{sSlot}"]
        a(f"s_mul_i32 s{sOff}, s{sRot}, {stepbytes}")
        a(f"s_add_u32 s{sOff}, s{sOff}, s{sBase}")
        a(f"s_mov_b32 s{sSlot}, 0")
        a(f"s_mov_b32 s{sIt}, 0")
        if OPT("LSTAMP"):
            sth.n = 1
            sth()
        if OPT("LPRIO", 0):
            a(f"s_setprio {OPT('LPRIO', 0)}")
        a.label(f"L_{tag}_loop")
        a(f"s_cmp_lt_u32 s{sIt}, {PDEPTH}")
        a(f"s_cbranch_scc1 L_{tag}_issue")
        a(f"s_waitcnt vmcnt({(PDEPTH-1)*n})")
        a("s_barrier")
        a.label(f"L_{tag}_issue")
        for i in issue():
            a(i)
        for i in adv:
            a(i)
        a(f"s_add_u32 s{sIt}, s{sIt}, 1")
        a(f"s_cmp_lt_u32 s{sIt}, {NSTAGE}")
        a(f"s_cbranch_scc1 L_{tag}_loop")
        a("s_branch L_ldtail")

    a.label("L_ldc")
    a(f"v_lshrrev_b32 v{vT}, 3, v{vLane}")
    a(f"v_lshlrev_b32 v{vT}, 12, v{vT}")
    a(f"v_and_b32 v{vT+1}, 7, v{vLane}")
    a(f"v_lshrrev_b32 v{vT+2}, 4, v{vLane}")
    a(f"v_xor_b32 v{vT+1}, v{vT+1}, v{vT+2}")
    a(f"v_lshl_add_u32 v{vO}, v{vT+1}, 4, v{vT}")
    a(f"v_xor_b32 v{vT+1}, 4, v{vT+1}")
    a(f"v_lshl_add_u32 v{vO+1}, v{vT+1}, 4, v{vT}")
    a(f"v_add_u32 v{vO+1}, {8*4096-1024}, v{vO+1}")
    a(f"v_add_u32 v{vO+2}, {16*4096-2048}, v{vO}")
    a(f"v_add_u32 v{vO+3}, {16*4096-2048}, v{vO+1}")
    a(f"s_lshl_b32 s{sBase}, s{sRB}, 18")
    a(f"s_lshl_b32 s{sT0}, s{sH}, 11")
    a(f"s_add_u32 s{sBase}, s{sBase}, s{sT0}")
    a("s_waitcnt lgkmcnt(0)")
    srd(a, sA, 6, C_BYTES)
    srd(a, sB, 8, C_BYTES)

    def issue_c():
        ins = [f"s_add_u32 s{sOff2}, s{sOff}, {32*4096}"]
        for grp in range(4):
            s_ = sA if grp < 2 else sB
            o_ = sOff if grp % 2 == 0 else sOff2
            ins.append(f"s_add_u32 m0, s{sSlot}, {grp*4096}")
            ins.append("s_nop 0")
            for q in range(4):
                ins.append(f"buffer_load_dwordx4 v{vO+q}, s[{s_}:{s_+3}], s{o_} offen offset:{q*1024} lds")
        return ins
    loader_loop("ldc", 16, issue_c, 128)

    a.label("L_ldx")
    for q in range(7):
        if q:
            a(f"v_add_u32 v{vT}, {64*q}, v{vLane}")
            src = vT
        else:
            src = vLane
        a(f"v_mul_u32_u24 v{vT+1}, 4682, v{src}")
        a(f"v_lshrrev_b32 v{vT+1}, 16, v{vT+1}")
        a(f"v_lshlrev_b32 v{vT+2}, 4, v{src}")
        a(f"v_mul_u32_u24 v{vT+3}, 224, v{vT+1}")
        a(f"v_sub_u32 v{vT+2}, v{vT+2}, v{vT+3}")
        a(f"v_lshrrev_b32 v{vT+3}, 1, v{vT+1}")
        a(f"v_and_b32 v{vT+3}, 4, v{vT+3}")
        a(f"v_xor_b32 v{vT+1}, v{vT+1}, v{vT+3}")
        a(f"v_mul_u32_u24 v{vT+1}, 896, v{vT+1}")
        a(f"v_add_u32 v{vO+q}, v{vT+2}, v{vT+1}")
        a(f"v_add_u32 v{vO+q+7}, {32*896 - 1024*((q+7)%4)}, v{vO+q}")
        if q % 4:
            a(f"v_subrev_u32 v{vO+q}, {1024*(q%4)}, v{vO+q}")
    a(f"s_mul_i32 s{sBase}, s{sH}, {1024*896}")
    a(f"s_mul_i32 s{sT0}, s{sJ}, 224")
    a(f"s_add_u32 s{sBase}, s{sBase}, s{sT0}")
    a("s_waitcnt lgkmcnt(0)")
    srd(a, sA, 4, X_BYTES)

    def issue_x():
        ins = []
        for q in range(14):
            if q % 4 == 0:
                ins.append(f"s_add_u32 m0, s{sSlot}, {XOFF + q*1024}")
                ins.append("s_nop 0")
            ins.append(f"buffer_load_dwordx4 v{vO+q}, s[{sA}:{sA+3}], s{sOff} offen offset:{(q%4)*1024} lds")
        return ins
    loader_loop("ldx", 14, issue_x, 64 * 896)

    a.label("L_ldtail")
    if OPT("LPRIO", 0):
        a("s_setprio 0")
    if OPT("LSTAMP"):
        srd(a, sWS, 58, WS_BYTES)
        a(f"s_sub_u32 s{sT3}, s{sW}, 4")
        sth.dump(sWS, sT0, vT, sT3)
    srd(a, sWS, 58, WS_BYTES)
    p2_offsets()
    dload_setup()
    assert PDEPTH == 3
    DS = [int(c) for c in os.environ.get("DSCHED", "022")]
    assert sum(DS) == 4
    nd = 0
    for k in range(PDEPTH):
        a(f"s_waitcnt vmcnt({(PDEPTH-1-k)*14 + 7*nd})")
        a("s_barrier")
        for q in range(nd, nd + DS[k]):
            for i in dloads(q):
                a(i)
        nd += DS[k]
    a("s_branch L_p2")

    a.label("L_aux")
    a(f"s_lshl_b32 s{sFl}, s{sRB}, 3")
    a(f"s_lshl_b32 s{sT0}, s{sH}, 2")
    a(f"s_add_u32 s{sFl}, s{sFl}, s{sT0}")
    a(f"s_add_u32 s{sFl}, s{sFl}, s{sJ}")
    a(f"s_mov_b32 s{sIt}, 0")
    a("s_waitcnt lgkmcnt(0)")
    srd(a, sWS, 58, WS_BYTES)
    a(f"s_cmp_eq_u32 s{sW}, 7")
    a("s_cbranch_scc1 L_aux7")
    a(f"v_and_b32 v{vT}, 15, v{vLane}")
    a(f"v_mul_u32_u24 v{vT}, 896, v{vT}")
    a(f"v_lshrrev_b32 v{vT+1}, 4, v{vLane}")
    a(f"v_lshl_add_u32 v{vT}, v{vT+1}, 3, v{vT}")
    a(f"s_mul_i32 s{sT0}, s{sFl}, 9363")
    a(f"s_lshr_b32 s{sT0}, s{sT0}, 16")
    a(f"s_mul_i32 s{sT1}, s{sT0}, 7")
    a(f"s_sub_u32 s{sT1}, s{sFl}, s{sT1}")
    a(f"s_mul_i32 s{sT0}, s{sT0}, {16*896}")
    a(f"s_lshl_b32 s{sT1}, s{sT1}, 7")
    a(f"s_add_u32 s{sT0}, s{sT0}, s{sT1}")
    srd(a, sB, 10, D_BYTES)
    srd(a, sE, 12, D_BYTES)
    for i in range(4):
        r = FX + i * 4
        a(f"buffer_load_dwordx2 v[{r}:{r+1}], v{vT}, s[{sB}:{sB+3}], s{sT0} offen offset:{i*32}")
        a(f"buffer_load_dwordx2 v[{r+2}:{r+3}], v{vT}, s[{sE}:{sE+3}], s{sT0} offen offset:{i*32}")
    a(f"s_lshl_b32 s{sT1}, s{sRB}, 7")
    a(f"s_and_b32 s{sT2}, s{sFl}, 7")
    a(f"s_lshl_b32 s{sT2}, s{sT2}, 2")
    a(f"s_add_u32 s{sT1}, s{sT1}, s{sT2}")
    a(f"s_add_u32 s{sT1}, s{sT1}, {LFOFF}")
    a(f"v_mov_b32 v{vT+2}, 0")
    a("s_mov_b64 exec, 1")
    a(f"buffer_store_dword v{vT+2}, v{vT+2}, s[{sWS}:{sWS+3}], s{sT1} offen")
    a("s_mov_b64 exec, -1")
    a(f"s_getreg_b32 s{sByte}, hwreg(HW_REG_XCC_ID)")
    a(f"s_and_b32 s{sByte}, s{sByte}, 7")
    a(f"s_lshr_b32 s{sT1}, s{sRB}, 3")
    a(f"s_lshl_b32 s{sT1}, s{sT1}, 6")
    a(f"s_and_b32 s{sT2}, s{sRB}, 7")
    a(f"s_lshl_b32 s{sT2}, s{sT2}, 2")
    a(f"s_add_u32 s{sT1}, s{sT1}, s{sT2}")
    a(f"s_add_u32 s{sT1}, s{sT1}, 32")
    a(f"s_add_u32 s{sCl}, s56, s{sT1}")
    a(f"s_addc_u32 s{sCl+1}, s57, 0")
    a(f"s_cmp_ge_u32 s{sFl}, 196")
    a("s_cbranch_scc1 L_aux_nod")
    a(f"s_lshl_b32 s{sT0}, s{sFl}, 12")
    a(f"s_add_u32 s{sT0}, s{sT0}, {DOFF}")
    a("s_waitcnt vmcnt(0)")
    for i in range(4):
        r = FX + i * 4
        a(f"v_xor_b32 v{r+2}, 0x80008000, v{r+2}")
        a(f"v_xor_b32 v{r+3}, 0x80008000, v{r+3}")
        a(f"buffer_store_dwordx4 v[{r}:{r+3}], v{vL16}, s[{sWS}:{sWS+3}], s{sT0} offen offset:{i*1024} sc1")
    a.label("L_aux_nod")
    for k in range(NB1):
        a("s_barrier")
    a("s_waitcnt vmcnt(0)")
    a(f"s_and_b32 s{sT0}, s{sFl}, 7")
    a(f"s_mul_i32 s{sT0}, s{sT0}, 3")
    a(f"s_lshl_b32 s{sT0}, s{sByte}, s{sT0}")
    a(f"s_add_u32 s{sT0}, s{sT0}, 0x1000000")
    a(f"s_atomic_add s{sT0}, s[{sCl}:{sCl+1}], 0")
    a(f"s_cmp_ge_u32 s{sFl}, 196")
    a("s_cbranch_scc1 L_aux_nod2")
    a(f"s_mul_i32 s{sT1}, s{sFl}, 1338")
    a(f"s_lshr_b32 s{sT1}, s{sT1}, 16")
    a(f"s_lshl_b32 s{sT1}, s{sT1}, 6")
    a(f"s_add_u32 s{sDc}, s56, s{sT1}")
    a(f"s_addc_u32 s{sDc+1}, s57, 0")
    a(f"s_mov_b32 s{sT1}, 1")
    a(f"s_atomic_add s{sT1}, s[{sDc}:{sDc+1}], 0")
    a.label("L_aux_nod2")
    for k in range(NB1, NB2):
        a("s_barrier")
    a("s_waitcnt lgkmcnt(0)")
    a(f"s_lshl_b32 s{sT1}, s{sJ}, 6")
    a(f"s_add_u32 s{sDc}, s56, s{sT1}")
    a(f"s_addc_u32 s{sDc+1}, s57, 0")
    a(f"s_mov_b32 s{sT2}, 0")
    a(f"s_mov_b32 s{sT3}, 0")
    a(f"s_atomic_add s{sT2}, s[{sCl}:{sCl+1}], 0 glc")
    a(f"s_atomic_add s{sT3}, s[{sDc}:{sDc+1}], 0 glc")
    a("s_barrier")
    a("s_barrier")
    a.label("L_poll1")
    a("s_waitcnt lgkmcnt(0)")
    a(f"s_add_u32 s{sIt}, s{sIt}, 1")
    a(f"s_lshr_b32 s{sT0}, s{sT2}, 24")
    a(f"s_and_b32 s{sT0}, s{sT0}, 15")
    a(f"s_lshl_b32 s{sT0}, s{sT0}, 8")
    a(f"s_add_u32 s{sT0}, s{sT0}, s{sT3}")
    a(f"s_cmp_eq_u32 s{sT0}, {8*256+49}")
    a("s_cbranch_scc1 L_poll1_done")
    a(f"s_cmp_ge_u32 s{sIt}, {SPIN}")
    a("s_cbranch_scc1 L_poll1_done")
    a("s_sleep 16")
    a(f"s_mov_b32 s{sT2}, 0")
    a(f"s_mov_b32 s{sT3}, 0")
    a(f"s_atomic_add s{sT2}, s[{sCl}:{sCl+1}], 0 glc")
    a(f"s_atomic_add s{sT3}, s[{sDc}:{sDc+1}], 0 glc")
    a("s_branch L_poll1")
    a.label("L_poll1_done")
    a(f"s_mul_i32 s{sT0}, s{sByte}, 0x249249")
    a(f"s_and_b32 s{sT2}, s{sT2}, 0xffffff")
    a(f"s_cmp_eq_u32 s{sT2}, s{sT0}")
    a(f"s_cselect_b32 s{sLoc}, {0 if OPT('FORCESLOW') else 1}, 0")
    a(f"v_mov_b32 v{vT}, {LDS_DEC}")
    a(f"v_mov_b32 v{vT+1}, s{sLoc}")
    a(f"ds_write_b32 v{vT}, v{vT+1}")
    a("s_waitcnt lgkmcnt(0)")
    a("s_branch L_aux_pre")
    a.label("L_aux7")
    if OPT("CODEPF", 2) == 2:
        a("s_waitcnt vmcnt(0)")
    if OPT("CODEPF", 2) == 1:
        a("s_getpc_b64 s[60:61]")
        a.label("L_pc")
        a(f"s_sub_u32 s60, s60, L_pc-{NAME}")
        a("s_subb_u32 s61, s61, 0")
        a(f"v_lshlrev_b32 v{vT}, 7, v{vLane}")
        a(f"v_min_u32 v{vT}, L_end-{NAME}-4, v{vT}")
        a(f"global_load_dword v{vT+2}, v{vT}, s[60:61]")
        a("s_waitcnt vmcnt(0)")
    for k in range(NB2 + 2):
        a("s_barrier")
    a.label("L_aux_pre")
    p2_offsets()
    dload_setup()
    nb = NB2 + 2
    DSTART = OPT("DSTART", NB2 + 3)
    while nb < DSTART:
        a("s_barrier")
        nb += 1
    if OPT("DPF", 0):
        a(f"s_lshr_b32 s{sT0}, s2, 5")
        a(f"s_mul_i32 s{sT0}, s{sT0}, 25088")
        a(f"s_mul_i32 s{sT1}, s{sJ}, 200704")
        a(f"s_add_u32 s{sT0}, s{sT0}, s{sT1}")
        a(f"s_add_u32 s{sT0}, s{sT0}, {DOFF}")
        a(f"s_sub_u32 s{sT1}, s{sW}, 6")
        a(f"s_lshl_b32 s{sT1}, s{sT1}, 14")
        a(f"v_lshlrev_b32 v{vCb}, 7, v{vLane}")
        a(f"v_add_u32 v{vCb}, s{sT1}, v{vCb}")
        a(f"v_add_u32 v{vCb+1}, 8192, v{vCb}")
        a(f"v_min_u32 v{vCb+1}, {25088-128}, v{vCb+1}")
        a(f"buffer_load_dword v{vXb}, v{vCb}, s[{sWS}:{sWS+3}], s{sT0} offen sc1")
        a(f"buffer_load_dword v{vXb}, v{vCb+1}, s[{sWS}:{sWS+3}], s{sT0} offen sc1")
        for k in range(OPT("DPFGAP", 2)):
            a("s_barrier")
            nb += 1
    DS2 = [int(c) for c in os.environ.get("DSCHED2", os.environ.get("DSCHED", "022"))]
    nd = 0
    while nb < 16:
        a("s_barrier")
        nb += 1
        k = nb - 1 - (16 - len(DS2))
        if k >= 0:
            for q in range(nd, nd + DS2[k]):
                for i in dloads(q):
                    a(i)
            nd += DS2[k]
    assert nd == 4
    a("s_branch L_p2")
    a.label("L_done")
    a("s_endpgm")
    a.label("L_end")
    return name, 256, 0, NSLOT * SLOT + 256, 512


def main():
    a = Asm()
    a.raw('.amdgcn_target "amdgcn-amd-amdhsa--gfx950"')
    a.raw(".text")
    name, nv, na, lds, blk = gen(a)
    out = HEADER
    out += f"; @launch grid=(256,1,1) block=({blk},1,1) lds={lds}\n"
    txt = a.text()
    if OPT("REORD", 1):
        import re
        parts = re.split(r"^;;BLOCK (\w+)\n", txt, flags=re.M)
        blk = {"head": parts[0]}
        for k in range(1, len(parts), 2):
            blk[parts[k]] = parts[k + 1]
        if OPT("REORD", 1) == 2:
            rest, tail = blk["rest"].split("L_done:\n")
            txt = blk["head"] + blk["ld"] + rest + blk["comp"] + "L_done:\n" + tail
        else:
            txt = blk["head"] + blk["ld"] + blk["comp"] + blk["rest"]
    out += txt
    out += '.section .rodata,"a"\n'
    out += G.descriptor(name, nv, na)
    path = sys.argv[1] if len(sys.argv) > 1 else "standalone__spectral_fnet__prompt.s"
    open(path, "w").write(out)


if __name__ == "__main__":
    main()
```

```python
import sys, os, math
import gen as G
from gen import OPT, Asm, Stamps, srd, interleave, flat, X_BYTES, C_BYTES, D_BYTES, DOFF, STAMP_OFF, HEADER

NSLOT, SLOT, XOFF, NSTAGE = 5, 30720, 16384, 16
ROT = OPT("ROT", 5)
PDEPTH = OPT('PDEPTH', 3)
SPIN = 1 << 14
NAME = "standalone__spectral_fnet__prompt_kernel"
DF_END = DOFF + 784 * 1024
LFOFF = DF_END
WS_BYTES = LFOFF + 32 * 128
LDS_DEC = NSLOT * SLOT
LDS_XCH = 114688
NB1 = OPT("NB1", 2)
NB2 = OPT("NB2", 6)


def gen(a):
    name = NAME
    a.raw(f".globl {name}")
    a.raw(".p2align 8")
    a.raw(f".type {name},@function")
    a.label(name)
    sA, sB, sWS, sE = 16, 20, 24, 28
    sCl, sDc = 32, 34
    sW = 36
    sT0, sT1, sT2, sT3 = 37, 38, 39, 40
    sH, sRB, sJ = 41, 42, 43
    sRot, sBase, sOff, sOff2, sSlot, sIt = 46, 47, 48, 49, 50, 51
    sFl, sLoc, sByte = 52, 53, 54
    sD0, sD1 = 60, 61
    sPQ = 62
    sPL = 63

    vLane = 1
    vT = 2
    vCb0 = 6
    vXb0 = 8
    vCb = 10
    vXb = 12
    vL16 = 14
    vO = 16
    FX, FY = 16, 52
    ACC = 88
    DFR = 144
    ACC2 = 88
    PB = 16

    def cfrag(b, n):
        return b + n * 4

    def xfrag(b, m):
        return b + 8 + m * 4

    def acc(m, n):
        return ACC + (m * 2 + n) * 4

    def df(ml, e):
        return DFR + (ml * 2 + e) * 4

    st = Stamps(a, 64, 0)
    a("s_cmp_ge_u32 s2, 256")
    a("s_cbranch_scc1 L_done")
    st()
    a("s_load_dwordx8 s[4:11], s[0:1], 0")
    a("s_load_dwordx4 s[12:15], s[0:1], 32")
    a("s_load_dwordx4 s[56:59], s[0:1], 48")
    a(f"v_lshrrev_b32 v{vT}, 6, v0")
    a(f"v_and_b32 v{vLane}, 63, v0")
    a(f"v_readfirstlane_b32 s{sW}, v{vT}")
    if OPT("CODEPF", 2) == 2:
        a(f"s_cmp_lg_u32 s{sW}, 7")
        a("s_cbranch_scc1 L_nopf")
        a("s_getpc_b64 s[60:61]")
        a.label("L_pc")
        a(f"v_lshlrev_b32 v{vT}, 7, v{vLane}")
        a(f"v_min_u32 v{vT}, L_end-L_pc-4, v{vT}")
        a(f"global_load_dword v{vT+2}, v{vT}, s[60:61]")
        a.label("L_nopf")
    a(f"s_and_b32 s{sT0}, s2, 7")
    a(f"s_lshr_b32 s{sT1}, s2, 3")
    a(f"s_and_b32 s{sJ}, s{sT1}, 3")
    a(f"s_lshr_b32 s{sH}, s{sT1}, 2")
    a(f"s_and_b32 s{sH}, s{sH}, 1")
    a(f"s_lshr_b32 s{sRot}, s{sT1}, 3")
    a(f"s_lshl_b32 s{sRB}, s{sRot}, 3")
    a(f"s_add_u32 s{sRB}, s{sRB}, s{sT0}")
    if ROT == 2:
        a(f"s_add_u32 s{sRot}, s{sRot}, s{sJ}")
        a(f"s_lshl_b32 s{sRot}, s{sRot}, 2")
    elif ROT == 5:
        a(f"s_lshl_b32 s{sRot}, s{sRot}, 2")
        a(f"s_lshr_b32 s{sT2}, s{sJ}, 1")
        a(f"s_lshl_b32 s{sT2}, s{sT2}, 3")
        a(f"s_add_u32 s{sRot}, s{sRot}, s{sT2}")
    elif ROT == 1:
        a(f"s_lshl_b32 s{sRot}, s{sRot}, 2")
    else:
        a(f"s_mov_b32 s{sRot}, 0")
    a(f"s_and_b32 s{sRot}, s{sRot}, 15")
    a(f"v_lshlrev_b32 v{vL16}, 4, v{vLane}")
    if OPT("REORD", 1):
        a(f"s_cmp_eq_u32 s{sW}, 5")
        a("s_cbranch_scc1 L_ldx")
        a(f"s_cmp_ge_u32 s{sW}, 6")
        a("s_cbranch_scc1 L_aux")
        a(f"s_cmp_lt_u32 s{sW}, 4")
        a("s_cbranch_scc1 L_comp")
    else:
        a(f"s_cmp_eq_u32 s{sW}, 4")
        a("s_cbranch_scc1 L_ldc")
        a(f"s_cmp_eq_u32 s{sW}, 5")
        a("s_cbranch_scc1 L_ldx")
        a(f"s_cmp_ge_u32 s{sW}, 6")
        a("s_cbranch_scc1 L_aux")

    def p2_offsets():
        a(f"s_and_b32 s{sT0}, s{sW}, 1")
        a(f"s_mul_i32 s{sT0}, s{sT0}, 14")
        a(f"s_lshr_b32 s{sT1}, s{sW}, 1")
        a(f"s_mul_i32 s{sT2}, s{sT1}, 56")
        a(f"s_add_u32 s{sT0}, s{sT0}, s{sT2}")
        a(f"s_mul_i32 s{sT2}, s{sJ}, 196")
        a(f"s_add_u32 s{sT0}, s{sT0}, s{sT2}")
        a(f"s_lshl_b32 s{sT0}, s{sT0}, 10")
        a(f"s_add_u32 s{sD0}, s{sT0}, {DOFF}")
        a(f"s_add_u32 s{sD1}, s{sT0}, {DOFF + 28*1024}")
        a(f"s_cmp_eq_u32 s{sT1}, 3")
        a(f"s_cselect_b32 s{sD1}, 0x7f000000, s{sD1}")
        a(f"s_and_b32 s{sT0}, s{sW}, 3")
        a(f"s_lshr_b32 s{sT1}, s{sW}, 2")
        a(f"s_mul_i32 s{sT1}, s{sT1}, 14")
        a(f"s_mul_i32 s{sPL}, s{sT0}, 28")
        a(f"s_add_u32 s{sPL}, s{sPL}, s{sT1}")
        a(f"s_lshl_b32 s{sPL}, s{sPL}, 10")
        a(f"s_lshr_b32 s{sT2}, s{sT0}, 1")
        a(f"s_lshl_b32 s{sT2}, s{sT2}, 7")
        a(f"s_and_b32 s{sT0}, s{sT0}, 1")
        a(f"s_add_u32 s{sT0}, s{sT0}, s{sT2}")
        a(f"s_lshl_b32 s{sT2}, s{sRB}, 2")
        a(f"s_add_u32 s{sT0}, s{sT0}, s{sT2}")
        a(f"s_lshl_b32 s{sT2}, s{sH}, 1")
        a(f"s_add_u32 s{sT0}, s{sT0}, s{sT2}")
        a(f"s_mul_i32 s{sT0}, s{sT0}, 28")
        a(f"s_add_u32 s{sT0}, s{sT0}, s{sT1}")
        a(f"s_lshl_b32 s{sPQ}, s{sT0}, 10")

    def dloads(q):
        ins = []
        idx = list(range(q * 7, q * 7 + 7))
        for t in idx:
            ml, e = t >> 1, t & 1
            r = df(ml, e)
            grp, off = ml // 4, (ml % 4) * 1024
            ins.append((grp, f"buffer_load_dwordx4 v[{r}:{r+3}], v{{V}}, s[{sWS}:{sWS+3}], s{sD0+e} offen offset:{off} sc1"))
        out = []
        for grp, i in ins:
            out.append(i.replace("{V}", str(vT + grp)))
        return out

    def dload_setup():
        a(f"v_mov_b32 v{vT}, v{vL16}")
        for g_ in range(1, 4):
            a(f"v_add_u32 v{vT+g_}, {4096*g_}, v{vL16}")

    a.label("L_comp")
    a(f"v_and_b32 v{vT}, 15, v{vLane}")
    a(f"v_lshrrev_b32 v{vT+1}, 4, v{vLane}")
    a(f"v_lshrrev_b32 v{vT+3}, 1, v{vT}")
    a(f"v_xor_b32 v{vT+2}, v{vT+1}, v{vT+3}")
    a(f"v_lshlrev_b32 v{vT+2}, 4, v{vT+2}")
    a(f"v_lshl_add_u32 v{vCb0}, v{vT}, 7, v{vT+2}")
    a(f"s_lshl_b32 s{sT0}, s{sW}, 11")
    a(f"v_add_u32 v{vCb0}, s{sT0}, v{vCb0}")
    a(f"v_xor_b32 v{vCb0+1}, 64, v{vCb0}")
    a(f"v_lshlrev_b32 v{vT+2}, 3, v{vT+1}")
    a(f"v_lshrrev_b32 v{vT+3}, 2, v{vT}")
    a(f"v_add_u32 v{vT+2}, v{vT+2}, v{vT+3}")
    a(f"v_and_b32 v{vT+3}, 1, v{vT+1}")
    a(f"v_lshlrev_b32 v{vT+3}, 2, v{vT+3}")
    a(f"v_add_u32 v{vXb0}, v{vT+2}, v{vT+3}")
    a(f"v_xor_b32 v{vT+3}, 4, v{vT+3}")
    a(f"v_add_u32 v{vXb0+1}, v{vT+2}, v{vT+3}")
    a(f"v_and_b32 v{vT}, 3, v{vT}")
    a(f"v_lshlrev_b32 v{vT}, 3, v{vT}")
    a(f"v_add_u32 v{vT}, {XOFF}, v{vT}")
    a(f"v_mov_b32 v{vT+1}, 224")
    a(f"v_mad_u32_u24 v{vXb0}, v{vXb0}, v{vT+1}, v{vT}")
    a(f"v_mad_u32_u24 v{vXb0+1}, v{vXb0+1}, v{vT+1}, v{vT}")
    for r in range(36 + 56):
        a(f"v_mov_b32 v{FY+r}, 0")
    for r in range(2):
        a(f"v_mov_b32 v{vCb+r}, v{vCb0+r}")
        a(f"v_mov_b32 v{vXb+r}, v{vXb0+r}")
    a(f"v_add_u32 v{vL16+1}, 4096, v{vL16}")
    a(f"s_lshl_b32 s{sOff}, s{sH}, 7")
    a(f"s_lshl_b32 s{sT1}, s{sRB}, 2")
    a(f"s_add_u32 s{sOff}, s{sOff}, s{sT1}")
    a(f"s_add_u32 s{sOff}, s{sOff}, s{sW}")
    a(f"s_mul_i32 s{sOff}, s{sOff}, 28")
    a(f"s_mul_i32 s{sT1}, s{sJ}, 7")
    a(f"s_add_u32 s{sOff}, s{sOff}, s{sT1}")
    a(f"s_lshl_b32 s{sOff}, s{sOff}, 10")
    p2_offsets()
    dload_setup()
    a("s_waitcnt lgkmcnt(0)")
    srd(a, sWS, 58, WS_BYTES)

    def frag_reads(b, kk):
        ins = []

        def xr(m):
            return [f"ds_read_b64_tr_b16 v[{xfrag(b,m)}:{xfrag(b,m)+1}], v{vXb} offset:{m*32+kk*7168}",
                    f"ds_read_b64_tr_b16 v[{xfrag(b,m)+2}:{xfrag(b,m)+3}], v{vXb+1} offset:{m*32+kk*7168}"]
        ins += xr(0)
        for n in range(2):
            ins.append(f"ds_read_b128 v[{cfrag(b,n)}:{cfrag(b,n)+3}], v{vCb+kk} offset:{n*8192}")
        for m in range(1, 7):
            ins += xr(m)
        return ins

    def mfmas(b):
        return [f"v_mfma_f32_16x16x32_bf16 v[{acc(m,n)}:{acc(m,n)+3}], v[{xfrag(b,m)}:{xfrag(b,m)+3}], "
                f"v[{cfrag(b,n)}:{cfrag(b,n)+3}], v[{acc(m,n)}:{acc(m,n)+3}]"
                for m in range(7) for n in range(2)]

    a(f"s_mov_b32 s{sSlot}, 0")
    a(f"s_mov_b32 s{sIt}, 0")
    if OPT("TRACE"):
        a("s_mov_b32 s98, 5")
    DIT = OPT("DIT", 0)
    DQ0 = OPT("DQ0", 4)
    a.label("L_loop")
    a("s_waitcnt lgkmcnt(0)")
    a("s_barrier")
    if DIT:
        a(f"s_cmp_eq_u32 s{sIt}, {DIT}")
        a("s_cbranch_scc1 L_dl")
        a.label("L_dl_back")
    if OPT("TRACE"):
        a("s_memtime s[96:97]")
        a("s_waitcnt lgkmcnt(0)")
        a(f"s_mov_b32 m0, s98")
        a("s_add_u32 s98, s98, 1")
        a(f"v_writelane_b32 v0, s96, m0")
    for i in interleave(mfmas(FY), frag_reads(FX, 0) + [[f"s_add_u32 s{sSlot}, s{sSlot}, {SLOT}",
                                                          f"s_cmp_eq_u32 s{sSlot}, {SLOT*NSLOT}",
                                                          f"s_cselect_b32 s{sSlot}, 0, s{sSlot}"]], per=2):
        a(i)
    a("s_waitcnt lgkmcnt(0)")
    nxt = [f"v_add_u32 v{vCb+r}, s{sSlot}, v{vCb0+r}" for r in range(2)] + \
          [f"v_add_u32 v{vXb+r}, s{sSlot}, v{vXb0+r}" for r in range(2)] + \
          [[f"s_add_u32 s{sIt}, s{sIt}, 1", f"s_cmp_lt_u32 s{sIt}, {NSTAGE}"]]
    for i in interleave(mfmas(FX), frag_reads(FY, 1) + nxt, per=2):
        a(i)
    a("s_cbranch_scc1 L_loop")
    a(f"v_mov_b32 v{vCb}, {LDS_DEC}")
    a(f"ds_read_b32 v{vCb}, v{vCb}")
    a("s_waitcnt lgkmcnt(0)")
    for i in mfmas(FY):
        a(i)
    if not OPT("FINE"):
        st()
    a(f"v_readfirstlane_b32 s{sLoc}, v{vCb}")
    a("s_nop 4")
    for m in range(7):
        p, q = acc(m, 0), acc(m, 1)
        o = FX + m * 4
        a(f"v_cvt_pk_bf16_f32 v{o}, v{p}, v{p+1}")
        a(f"v_cvt_pk_bf16_f32 v{o+1}, v{p+2}, v{p+3}")
        a(f"v_cvt_pk_bf16_f32 v{o+2}, v{q}, v{q+1}")
        a(f"v_cvt_pk_bf16_f32 v{o+3}, v{q+2}, v{q+3}")
    a(f"s_cmp_eq_u32 s{sLoc}, 1")
    a("s_cbranch_scc1 L_st_loc")
    for loc in range(2):
        if loc:
            a.label("L_st_loc")
        for m in range(7):
            o = FX + m * 4
            a(f"buffer_store_dwordx4 v[{o}:{o+3}], v{vL16 + (m // 4)}, s[{sWS}:{sWS+3}], s{sOff} offen offset:{(m%4)*1024} {'' if loc else 'sc1'}")
        if not loc:
            a("s_branch L_st_done")
    a.label("L_st_done")
    if DIT:
        a("s_waitcnt vmcnt(0)")
        a("s_branch L_p2")
        a.label("L_dl")
        for q in range(4):
            for i in dloads(q):
                a(i)
        a("s_branch L_dl_back")
    elif OPT("DLATE", 1):
        a("s_waitcnt vmcnt(0)")
        a("s_barrier")
        for q in range(DQ0):
            for i in dloads(q):
                a(i)
        a("s_branch L_p2_after")
    else:
        for q in range(4):
            for i in dloads(q):
                a(i)
        a("s_waitcnt vmcnt(28)")

    a.label("L_p2")
    a("s_barrier")
    a.label("L_p2_after")
    if not OPT("FINE"):
        st()
    a(f"v_mov_b32 v{vCb}, {LDS_DEC}")
    a(f"ds_read_b32 v{vCb}, v{vCb}")
    for r in range(16):
        a(f"v_mov_b32 v{ACC2+r}, 0")
    a("s_waitcnt lgkmcnt(0)")
    a(f"v_readfirstlane_b32 s{sLoc}, v{vCb}")
    a(f"s_cmp_eq_u32 s{sW}, 6")
    a("s_cbranch_scc0 L_p2_wait")
    a(f"v_mov_b32 v{vT}, 0")
    a(f"s_mov_b32 s{sIt}, 0")
    a(f"s_cmp_eq_u32 s{sLoc}, 1")
    a("s_cbranch_scc1 L_pub_loc")
    a(f"s_mov_b32 s{sT0}, 0x10000000")
    a(f"s_atomic_add s{sT0}, s[{sCl}:{sCl+1}], 0")
    a.label("L_poll2")
    a(f"s_mov_b32 s{sT2}, 0")
    a(f"s_atomic_add s{sT2}, s[{sCl}:{sCl+1}], 0 glc")
    a("s_waitcnt lgkmcnt(0)")
    a(f"s_add_u32 s{sIt}, s{sIt}, 1")
    a(f"s_lshr_b32 s{sT2}, s{sT2}, 28")
    a(f"s_cmp_eq_u32 s{sT2}, 8")
    a("s_cbranch_scc1 L_poll_done")
    a("s_sleep 16")
    a(f"s_cmp_lt_u32 s{sIt}, {SPIN}")
    a("s_cbranch_scc1 L_poll2")
    a("s_branch L_poll_done")
    a.label("L_pub_loc")
    a(f"s_lshl_b32 s{sT1}, s{sRB}, 7")
    a(f"s_add_u32 s{sT1}, s{sT1}, {LFOFF}")
    a(f"s_and_b32 s{sT0}, s{sFl}, 7")
    a(f"s_lshl_b32 s{sT0}, s{sT0}, 2")
    a(f"s_add_u32 s{sT0}, s{sT0}, s{sT1}")
    a(f"v_mov_b32 v{vT+1}, 1")
    a(f"v_lshlrev_b32 v{vT+3}, 2, v{vLane}")
    a("s_mov_b64 exec, 1")
    a(f"buffer_store_dword v{vT+1}, v{vT}, s[{sWS}:{sWS+3}], s{sT0} offen")
    a("s_mov_b64 exec, 0xff")
    a.label("L_poll3")
    a(f"buffer_load_dword v{vT+2}, v{vT+3}, s[{sWS}:{sWS+3}], s{sT1} offen sc1")
    a("s_waitcnt vmcnt(0)")
    a(f"v_cmp_ne_u32 vcc, 1, v{vT+2}")
    a(f"s_add_u32 s{sIt}, s{sIt}, 1")
    a("s_nop 3")
    a("s_cmp_eq_u64 vcc, 0")
    a("s_cbranch_scc1 L_poll_done")
    a(f"s_cmp_lt_u32 s{sIt}, {SPIN}")
    a("s_cbranch_scc1 L_poll3")
    a.label("L_poll_done")
    a("s_mov_b64 exec, -1")
    a.label("L_p2_wait")
    a(f"s_and_b32 s{sT0}, s{sW}, 1")
    a(f"s_mul_i32 s{sT0}, s{sT0}, 14336")
    a(f"v_add_u32 v{vCb}, s{sT0}, v{vL16}")
    a(f"v_add_u32 v{vCb+1}, 57344, v{vCb}")
    if OPT("WDRAIN"):
        a("s_waitcnt vmcnt(0)")
    a("s_barrier")
    st()
    RB_ = [int(x) for x in os.environ.get("RNDS", "0,2,5,8,11,14").split(",")]
    AHEAD = OPT("AHEAD", 2)

    def pqdma(rnd):
        if rnd >= len(RB_) - 1:
            return
        lo, hi = RB_[rnd], RB_[rnd + 1]
        for i in range(lo, hi):
            if (i - lo) % 4 == 0:
                a(f"s_add_u32 m0, s{sPL}, {i*1024}")
                a(f"s_add_u32 s{sT1}, s{sPQ}, {i*1024}")
            a(f"buffer_load_dwordx4 v{vL16}, s[{sWS}:{sWS+3}], s{sT1} offen offset:{((i-lo)%4)*1024} {'' if OPT('PQPLAIN') else 'sc1 '}lds")
    lab = [0]
    seq = []
    dq = [DQ0]

    def dnext():
        if dq[0] >= 4:
            return
        lab[0] += 1
        a(f"s_cmp_ge_u32 s{sW}, 4")
        a(f"s_cbranch_scc1 L_dq{lab[0]}")
        for i in dloads(dq[0]):
            a(i)
        a.label(f"L_dq{lab[0]}")
        seq.append(('q', dq[0], 7))
        dq[0] += 1

    def pq_issue(rnd):
        if rnd < len(RB_) - 1:
            pqdma(rnd)
            seq.append(('r', rnd, RB_[rnd + 1] - RB_[rnd]))

    def wait_round(rnd):
        hi = RB_[rnd + 1]
        qneed = (2 * hi - 1) // 7
        last = -1
        for k, (t, i, n) in enumerate(seq):
            if (t == 'r' and i <= rnd) or (t == 'q' and i <= qneed):
                last = k
        assert dq[0] > qneed, "D quarter not issued yet"
        cw = sum(n for t, i, n in seq[last + 1:])
        lastr = max(k for k, (t, i, n) in enumerate(seq) if t == 'r' and i <= rnd)
        hw = sum(n for t, i, n in seq[lastr + 1:] if t == 'r')
        if cw == hw:
            a(f"s_waitcnt vmcnt({cw})")
        else:
            lab[0] += 1
            a(f"s_cmp_ge_u32 s{sW}, 4")
            a(f"s_cbranch_scc1 L_wh{lab[0]}")
            a(f"s_waitcnt vmcnt({cw})")
            a(f"s_branch L_wd{lab[0]}")
            a.label(f"L_wh{lab[0]}")
            a(f"s_waitcnt vmcnt({hw})")
            a.label(f"L_wd{lab[0]}")

    for r_ in range(AHEAD):
        pq_issue(r_)
    dnext()

    def preads(ml):
        b = PB + (ml % 3) * 16
        return [f"ds_read_b128 v[{b+(hh*2+tl)*4}:{b+(hh*2+tl)*4+3}], v{vCb+hh} offset:{(tl*28+ml)*1024}"
                for hh in range(2) for tl in range(2)]

    def mf2(ml):
        b = PB + (ml % 3) * 16
        return [f"v_mfma_f32_16x16x32_bf16 v[{ACC2+(e*2+tl)*4}:{ACC2+(e*2+tl)*4+3}], v[{df(ml,e)}:{df(ml,e)+3}], "
                f"v[{b+(hh*2+tl)*4}:{b+(hh*2+tl)*4+3}], v[{ACC2+(e*2+tl)*4}:{ACC2+(e*2+tl)*4+3}]"
                for hh in range(2) for e in range(2) for tl in range(2)]

    for rnd in range(len(RB_) - 1):
        lo, hi = RB_[rnd], RB_[rnd + 1]
        issued = RB_[min(rnd + AHEAD, len(RB_) - 1)]
        if OPT("FINE") and rnd < 2:
            st()
        wait_round(rnd)
        a("s_barrier")
        if OPT("FINE") and rnd < 2:
            st()
            a("s_waitcnt lgkmcnt(0)")
        for i in preads(lo) + (preads(lo + 1) if lo + 1 < hi else []):
            a(i)
        pq_issue(rnd + AHEAD)
        dnext()
        for ml in range(lo, hi):
            nxt_ = preads(ml + 2) if ml + 2 < hi else []
            a(f"s_waitcnt lgkmcnt({4 if ml + 1 < hi else 0})")
            for i in interleave(mf2(ml), nxt_, per=1):
                a(i)
    st()
    a(f"s_lshl_b32 s{sT0}, s{sW}, 11")
    a(f"s_add_u32 s{sT0}, s{sT0}, {LDS_XCH}")
    a(f"s_xor_b32 s{sT1}, s{sT0}, 2048")
    a(f"v_add_u32 v{vT}, s{sT0}, v{vL16}")
    a(f"v_add_u32 v{vT+1}, s{sT1}, v{vL16}")
    srd(a, sA, 14, X_BYTES)
    a(f"v_and_b32 v{vT+2}, 15, v{vLane}")
    a(f"v_mul_u32_u24 v{vT+2}, 896, v{vT+2}")
    a(f"v_lshrrev_b32 v{vT+3}, 4, v{vLane}")
    a(f"v_lshl_add_u32 v{vT+2}, v{vT+3}, 3, v{vT+2}")
    a(f"s_lshl_b32 s{sT0}, s{sRB}, 6")
    a(f"s_lshl_b32 s{sT1}, s{sH}, 5")
    a(f"s_add_u32 s{sT0}, s{sT0}, s{sT1}")
    a(f"s_and_b32 s{sT2}, s{sW}, 1")
    a(f"s_lshl_b32 s{sT1}, s{sT2}, 4")
    a(f"s_add_u32 s{sT0}, s{sT0}, s{sT1}")
    a(f"s_mul_i32 s{sT0}, s{sT0}, 896")
    a(f"s_mul_i32 s{sT1}, s{sJ}, 224")
    a(f"s_add_u32 s{sT0}, s{sT0}, s{sT1}")
    a(f"s_lshr_b32 s{sT1}, s{sW}, 1")
    a(f"s_lshl_b32 s{sT1}, s{sT1}, 6")
    a(f"s_add_u32 s{sT0}, s{sT0}, s{sT1}")
    a(f"s_cmp_eq_u32 s{sT2}, 0")
    a("s_cbranch_scc1 L_x0")
    for e in range(2):
        for k in range(4):
            a(f"v_swap_b32 v{ACC2+(e*2)*4+k}, v{ACC2+(e*2+1)*4+k}")
    a.label("L_x0")
    for e in range(2):
        r = ACC2 + (e * 2 + 1) * 4
        a(f"ds_write_b128 v{vT}, v[{r}:{r+3}] offset:{e*1024}")
    a("s_waitcnt lgkmcnt(0)")
    a("s_barrier")
    for e in range(2):
        a(f"ds_read_b128 v[{PB+e*4}:{PB+e*4+3}], v{vT+1} offset:{e*1024}")
    for e in range(2):
        if e == 1:
            a(f"s_cmp_ge_u32 s{sW}, 6")
            a("s_cbranch_scc1 L_fin")
        a(f"s_waitcnt lgkmcnt({1-e})")
        r = ACC2 + (e * 2) * 4
        for k in range(4):
            a(f"v_add_f32 v{r+k}, v{r+k}, v{PB+e*4+k}")
        a(f"v_cvt_pk_bf16_f32 v{PB+8+e*2}, v{r}, v{r+1}")
        a(f"v_cvt_pk_bf16_f32 v{PB+9+e*2}, v{r+2}, v{r+3}")
        a(f"buffer_store_dwordx2 v[{PB+8+e*2}:{PB+9+e*2}], v{vT+2}, s[{sA}:{sA+3}], s{sT0} offen offset:{e*32}")
    a.label("L_fin")
    if OPT("DBGSTAMP"):
        a("s_waitcnt vmcnt(0)")
        st()
        a("s_waitcnt lgkmcnt(0)")
        a(f"s_xor_b32 s{sT0}, s2, {OPT('DW', 5)}")
        a(f"s_add_u32 s{sT0}, s{sT0}, s{sW}")
        a(f"s_lshl_b32 s{sT0}, s{sT0}, 8")
        srd(a, sA, 56, 32)
        a(f"v_mov_b32 v{vT+1}, 0")
        for i in range(1, st.n):
            a(f"s_sub_u32 s{sT1}, s{64+i*4+2}, s66")
            a(f"v_mov_b32 v{vT}, s{sT1}")
            a(f"buffer_store_dword v{vT}, v{vT+1}, s[{sA}:{sA+3}], s{sT0} offen offset:{i*4}")
    if OPT("STAMP"):
        a(f"s_cmp_ge_u32 s{sW}, 4")
        a("s_cbranch_scc1 L_done")
        a("s_waitcnt vmcnt(0)")
        st.dump(sWS, sT0, vT, sW)
    if OPT("TRACE"):
        a(f"v_writelane_b32 v0, s64, 0")
        a(f"s_lshl_b32 s{sT0}, s2, 2")
        a(f"s_add_u32 s{sT0}, s{sT0}, s{sW}")
        a(f"s_lshl_b32 s{sT0}, s{sT0}, 8")
        a(f"s_add_u32 s{sT0}, s{sT0}, {STAMP_OFF + 3 * (1 << 20)}")
        a(f"v_lshlrev_b32 v{vT}, 2, v{vLane}")
        a(f"buffer_store_dword v0, v{vT}, s[{sWS}:{sWS+3}], s{sT0} offen")
    a("s_endpgm")

    sth = Stamps(a, 64, 2)

    def loader_loop(tag, n, issue, stepbytes):
        adv = [f"s_add_u32 s{sRot}, s{sRot}, 1",
               f"s_and_b32 s{sRot}, s{sRot}, 15",
               f"s_mul_i32 s{sOff}, s{sRot}, {stepbytes}",
               f"s_add_u32 s{sOff}, s{sOff}, s{sBase}",
               f"s_add_u32 s{sSlot}, s{sSlot}, {SLOT}",
               f"s_cmp_eq_u32 s{sSlot}, {SLOT*NSLOT}",
               f"s_cselect_b32 s{sSlot}, 0, s{sSlot}"]
        a(f"s_mul_i32 s{sOff}, s{sRot}, {stepbytes}")
        a(f"s_add_u32 s{sOff}, s{sOff}, s{sBase}")
        a(f"s_mov_b32 s{sSlot}, 0")
        a(f"s_mov_b32 s{sIt}, 0")
        if OPT("LSTAMP"):
            sth.n = 1
            sth()
        if OPT("LPRIO", 0):
            a(f"s_setprio {OPT('LPRIO', 0)}")
        a.label(f"L_{tag}_loop")
        a(f"s_cmp_lt_u32 s{sIt}, {PDEPTH}")
        a(f"s_cbranch_scc1 L_{tag}_issue")
        a(f"s_waitcnt vmcnt({(PDEPTH-1)*n})")
        a("s_barrier")
        a.label(f"L_{tag}_issue")
        for i in issue():
            a(i)
        for i in adv:
            a(i)
        a(f"s_add_u32 s{sIt}, s{sIt}, 1")
        a(f"s_cmp_lt_u32 s{sIt}, {NSTAGE}")
        a(f"s_cbranch_scc1 L_{tag}_loop")
        a("s_branch L_ldtail")

    a.label("L_ldc")
    a(f"v_lshrrev_b32 v{vT}, 3, v{vLane}")
    a(f"v_lshlrev_b32 v{vT}, 12, v{vT}")
    a(f"v_and_b32 v{vT+1}, 7, v{vLane}")
    a(f"v_lshrrev_b32 v{vT+2}, 4, v{vLane}")
    a(f"v_xor_b32 v{vT+1}, v{vT+1}, v{vT+2}")
    a(f"v_lshl_add_u32 v{vO}, v{vT+1}, 4, v{vT}")
    a(f"v_xor_b32 v{vT+1}, 4, v{vT+1}")
    a(f"v_lshl_add_u32 v{vO+1}, v{vT+1}, 4, v{vT}")
    a(f"v_add_u32 v{vO+1}, {8*4096-1024}, v{vO+1}")
    a(f"v_add_u32 v{vO+2}, {16*4096-2048}, v{vO}")
    a(f"v_add_u32 v{vO+3}, {16*4096-2048}, v{vO+1}")
    a(f"s_lshl_b32 s{sBase}, s{sRB}, 18")
    a(f"s_lshl_b32 s{sT0}, s{sH}, 11")
    a(f"s_add_u32 s{sBase}, s{sBase}, s{sT0}")
    a("s_waitcnt lgkmcnt(0)")
    srd(a, sA, 6, C_BYTES)
    srd(a, sB, 8, C_BYTES)

    def issue_c():
        ins = [f"s_add_u32 s{sOff2}, s{sOff}, {32*4096}"]
        for grp in range(4):
            s_ = sA if grp < 2 else sB
            o_ = sOff if grp % 2 == 0 else sOff2
            ins.append(f"s_add_u32 m0, s{sSlot}, {grp*4096}")
            ins.append("s_nop 0")
            for q in range(4):
                ins.append(f"buffer_load_dwordx4 v{vO+q}, s[{s_}:{s_+3}], s{o_} offen offset:{q*1024} lds")
        return ins
    loader_loop("ldc", 16, issue_c, 128)

    a.label("L_ldx")
    for q in range(7):
        if q:
            a(f"v_add_u32 v{vT}, {64*q}, v{vLane}")
            src = vT
        else:
            src = vLane
        a(f"v_mul_u32_u24 v{vT+1}, 4682, v{src}")
        a(f"v_lshrrev_b32 v{vT+1}, 16, v{vT+1}")
        a(f"v_lshlrev_b32 v{vT+2}, 4, v{src}")
        a(f"v_mul_u32_u24 v{vT+3}, 224, v{vT+1}")
        a(f"v_sub_u32 v{vT+2}, v{vT+2}, v{vT+3}")
        a(f"v_lshrrev_b32 v{vT+3}, 1, v{vT+1}")
        a(f"v_and_b32 v{vT+3}, 4, v{vT+3}")
        a(f"v_xor_b32 v{vT+1}, v{vT+1}, v{vT+3}")
        a(f"v_mul_u32_u24 v{vT+1}, 896, v{vT+1}")
        a(f"v_add_u32 v{vO+q}, v{vT+2}, v{vT+1}")
        a(f"v_add_u32 v{vO+q+7}, {32*896 - 1024*((q+7)%4)}, v{vO+q}")
        if q % 4:
            a(f"v_subrev_u32 v{vO+q}, {1024*(q%4)}, v{vO+q}")
    a(f"s_mul_i32 s{sBase}, s{sH}, {1024*896}")
    a(f"s_mul_i32 s{sT0}, s{sJ}, 224")
    a(f"s_add_u32 s{sBase}, s{sBase}, s{sT0}")
    a("s_waitcnt lgkmcnt(0)")
    srd(a, sA, 4, X_BYTES)

    def issue_x():
        ins = []
        for q in range(14):
            if q % 4 == 0:
                ins.append(f"s_add_u32 m0, s{sSlot}, {XOFF + q*1024}")
                ins.append("s_nop 0")
            ins.append(f"buffer_load_dwordx4 v{vO+q}, s[{sA}:{sA+3}], s{sOff} offen offset:{(q%4)*1024} lds")
        return ins
    loader_loop("ldx", 14, issue_x, 64 * 896)

    a.label("L_ldtail")
    if OPT("LPRIO", 0):
        a("s_setprio 0")
    if OPT("LSTAMP"):
        srd(a, sWS, 58, WS_BYTES)
        a(f"s_sub_u32 s{sT3}, s{sW}, 4")
        sth.dump(sWS, sT0, vT, sT3)
    srd(a, sWS, 58, WS_BYTES)
    p2_offsets()
    dload_setup()
    assert PDEPTH == 3
    DS = [int(c) for c in os.environ.get("DSCHED", "022")]
    assert sum(DS) == 4
    nd = 0
    for k in range(PDEPTH):
        a(f"s_waitcnt vmcnt({(PDEPTH-1-k)*14 + 7*nd})")
        a("s_barrier")
        for q in range(nd, nd + DS[k]):
            for i in dloads(q):
                a(i)
        nd += DS[k]
    a("s_branch L_p2")

    a.label("L_aux")
    a(f"s_lshl_b32 s{sFl}, s{sRB}, 3")
    a(f"s_lshl_b32 s{sT0}, s{sH}, 2")
    a(f"s_add_u32 s{sFl}, s{sFl}, s{sT0}")
    a(f"s_add_u32 s{sFl}, s{sFl}, s{sJ}")
    a(f"s_mov_b32 s{sIt}, 0")
    a("s_waitcnt lgkmcnt(0)")
    srd(a, sWS, 58, WS_BYTES)
    a(f"s_cmp_eq_u32 s{sW}, 7")
    a("s_cbranch_scc1 L_aux7")
    a(f"v_and_b32 v{vT}, 15, v{vLane}")
    a(f"v_mul_u32_u24 v{vT}, 896, v{vT}")
    a(f"v_lshrrev_b32 v{vT+1}, 4, v{vLane}")
    a(f"v_lshl_add_u32 v{vT}, v{vT+1}, 3, v{vT}")
    a(f"s_mul_i32 s{sT0}, s{sFl}, 9363")
    a(f"s_lshr_b32 s{sT0}, s{sT0}, 16")
    a(f"s_mul_i32 s{sT1}, s{sT0}, 7")
    a(f"s_sub_u32 s{sT1}, s{sFl}, s{sT1}")
    a(f"s_mul_i32 s{sT0}, s{sT0}, {16*896}")
    a(f"s_lshl_b32 s{sT1}, s{sT1}, 7")
    a(f"s_add_u32 s{sT0}, s{sT0}, s{sT1}")
    srd(a, sB, 10, D_BYTES)
    srd(a, sE, 12, D_BYTES)
    for i in range(4):
        r = FX + i * 4
        a(f"buffer_load_dwordx2 v[{r}:{r+1}], v{vT}, s[{sB}:{sB+3}], s{sT0} offen offset:{i*32}")
        a(f"buffer_load_dwordx2 v[{r+2}:{r+3}], v{vT}, s[{sE}:{sE+3}], s{sT0} offen offset:{i*32}")
    a(f"s_lshl_b32 s{sT1}, s{sRB}, 7")
    a(f"s_and_b32 s{sT2}, s{sFl}, 7")
    a(f"s_lshl_b32 s{sT2}, s{sT2}, 2")
    a(f"s_add_u32 s{sT1}, s{sT1}, s{sT2}")
    a(f"s_add_u32 s{sT1}, s{sT1}, {LFOFF}")
    a(f"v_mov_b32 v{vT+2}, 0")
    a("s_mov_b64 exec, 1")
    a(f"buffer_store_dword v{vT+2}, v{vT+2}, s[{sWS}:{sWS+3}], s{sT1} offen")
    a("s_mov_b64 exec, -1")
    a(f"s_getreg_b32 s{sByte}, hwreg(HW_REG_XCC_ID)")
    a(f"s_and_b32 s{sByte}, s{sByte}, 7")
    a(f"s_lshr_b32 s{sT1}, s{sRB}, 3")
    a(f"s_lshl_b32 s{sT1}, s{sT1}, 6")
    a(f"s_and_b32 s{sT2}, s{sRB}, 7")
    a(f"s_lshl_b32 s{sT2}, s{sT2}, 2")
    a(f"s_add_u32 s{sT1}, s{sT1}, s{sT2}")
    a(f"s_add_u32 s{sT1}, s{sT1}, 32")
    a(f"s_add_u32 s{sCl}, s56, s{sT1}")
    a(f"s_addc_u32 s{sCl+1}, s57, 0")
    a(f"s_cmp_ge_u32 s{sFl}, 196")
    a("s_cbranch_scc1 L_aux_nod")
    a(f"s_lshl_b32 s{sT0}, s{sFl}, 12")
    a(f"s_add_u32 s{sT0}, s{sT0}, {DOFF}")
    a("s_waitcnt vmcnt(0)")
    for i in range(4):
        r = FX + i * 4
        a(f"v_xor_b32 v{r+2}, 0x80008000, v{r+2}")
        a(f"v_xor_b32 v{r+3}, 0x80008000, v{r+3}")
        a(f"buffer_store_dwordx4 v[{r}:{r+3}], v{vL16}, s[{sWS}:{sWS+3}], s{sT0} offen offset:{i*1024} sc1")
    a.label("L_aux_nod")
    for k in range(NB1):
        a("s_barrier")
    a("s_waitcnt vmcnt(0)")
    a(f"s_and_b32 s{sT0}, s{sFl}, 7")
    a(f"s_mul_i32 s{sT0}, s{sT0}, 3")
    a(f"s_lshl_b32 s{sT0}, s{sByte}, s{sT0}")
    a(f"s_add_u32 s{sT0}, s{sT0}, 0x1000000")
    a(f"s_atomic_add s{sT0}, s[{sCl}:{sCl+1}], 0")
    a(f"s_cmp_ge_u32 s{sFl}, 196")
    a("s_cbranch_scc1 L_aux_nod2")
    a(f"s_mul_i32 s{sT1}, s{sFl}, 1338")
    a(f"s_lshr_b32 s{sT1}, s{sT1}, 16")
    a(f"s_lshl_b32 s{sT1}, s{sT1}, 6")
    a(f"s_add_u32 s{sDc}, s56, s{sT1}")
    a(f"s_addc_u32 s{sDc+1}, s57, 0")
    a(f"s_mov_b32 s{sT1}, 1")
    a(f"s_atomic_add s{sT1}, s[{sDc}:{sDc+1}], 0")
    a.label("L_aux_nod2")
    for k in range(NB1, NB2):
        a("s_barrier")
    a("s_waitcnt lgkmcnt(0)")
    a(f"s_lshl_b32 s{sT1}, s{sJ}, 6")
    a(f"s_add_u32 s{sDc}, s56, s{sT1}")
    a(f"s_addc_u32 s{sDc+1}, s57, 0")
    a(f"s_mov_b32 s{sT2}, 0")
    a(f"s_mov_b32 s{sT3}, 0")
    a(f"s_atomic_add s{sT2}, s[{sCl}:{sCl+1}], 0 glc")
    a(f"s_atomic_add s{sT3}, s[{sDc}:{sDc+1}], 0 glc")
    a("s_barrier")
    a("s_barrier")
    a.label("L_poll1")
    a("s_waitcnt lgkmcnt(0)")
    a(f"s_add_u32 s{sIt}, s{sIt}, 1")
    a(f"s_lshr_b32 s{sT0}, s{sT2}, 24")
    a(f"s_and_b32 s{sT0}, s{sT0}, 15")
    a(f"s_lshl_b32 s{sT0}, s{sT0}, 8")
    a(f"s_add_u32 s{sT0}, s{sT0}, s{sT3}")
    a(f"s_cmp_eq_u32 s{sT0}, {8*256+49}")
    a("s_cbranch_scc1 L_poll1_done")
    a(f"s_cmp_ge_u32 s{sIt}, {SPIN}")
    a("s_cbranch_scc1 L_poll1_done")
    a("s_sleep 16")
    a(f"s_mov_b32 s{sT2}, 0")
    a(f"s_mov_b32 s{sT3}, 0")
    a(f"s_atomic_add s{sT2}, s[{sCl}:{sCl+1}], 0 glc")
    a(f"s_atomic_add s{sT3}, s[{sDc}:{sDc+1}], 0 glc")
    a("s_branch L_poll1")
    a.label("L_poll1_done")
    a(f"s_mul_i32 s{sT0}, s{sByte}, 0x249249")
    a(f"s_and_b32 s{sT2}, s{sT2}, 0xffffff")
    a(f"s_cmp_eq_u32 s{sT2}, s{sT0}")
    a(f"s_cselect_b32 s{sLoc}, {0 if OPT('FORCESLOW') else 1}, 0")
    a(f"v_mov_b32 v{vT}, {LDS_DEC}")
    a(f"v_mov_b32 v{vT+1}, s{sLoc}")
    a(f"ds_write_b32 v{vT}, v{vT+1}")
    a("s_waitcnt lgkmcnt(0)")
    a("s_branch L_aux_pre")
    a.label("L_aux7")
    if OPT("CODEPF", 2) == 2:
        a("s_waitcnt vmcnt(0)")
    if OPT("CODEPF", 2) == 1:
        a("s_getpc_b64 s[60:61]")
        a.label("L_pc")
        a(f"s_sub_u32 s60, s60, L_pc-{NAME}")
        a("s_subb_u32 s61, s61, 0")
        a(f"v_lshlrev_b32 v{vT}, 7, v{vLane}")
        a(f"v_min_u32 v{vT}, L_end-{NAME}-4, v{vT}")
        a(f"global_load_dword v{vT+2}, v{vT}, s[60:61]")
        a("s_waitcnt vmcnt(0)")
    for k in range(NB2 + 2):
        a("s_barrier")
    a.label("L_aux_pre")
    p2_offsets()
    dload_setup()
    nb = NB2 + 2
    DSTART = OPT("DSTART", NB2 + 3)
    while nb < DSTART:
        a("s_barrier")
        nb += 1
    if OPT("DPF", 0):
        a(f"s_lshr_b32 s{sT0}, s2, 5")
        a(f"s_mul_i32 s{sT0}, s{sT0}, 25088")
        a(f"s_mul_i32 s{sT1}, s{sJ}, 200704")
        a(f"s_add_u32 s{sT0}, s{sT0}, s{sT1}")
        a(f"s_add_u32 s{sT0}, s{sT0}, {DOFF}")
        a(f"s_sub_u32 s{sT1}, s{sW}, 6")
        a(f"s_lshl_b32 s{sT1}, s{sT1}, 14")
        a(f"v_lshlrev_b32 v{vCb}, 7, v{vLane}")
        a(f"v_add_u32 v{vCb}, s{sT1}, v{vCb}")
        a(f"v_add_u32 v{vCb+1}, 8192, v{vCb}")
        a(f"v_min_u32 v{vCb+1}, {25088-128}, v{vCb+1}")
        a(f"buffer_load_dword v{vXb}, v{vCb}, s[{sWS}:{sWS+3}], s{sT0} offen sc1")
        a(f"buffer_load_dword v{vXb}, v{vCb+1}, s[{sWS}:{sWS+3}], s{sT0} offen sc1")
        for k in range(OPT("DPFGAP", 2)):
            a("s_barrier")
            nb += 1
    DS2 = [int(c) for c in os.environ.get("DSCHED2", os.environ.get("DSCHED", "022"))]
    nd = 0
    while nb < 16:
        a("s_barrier")
        nb += 1
        if nb - 1 == OPT("CPF2", 12):
            a(f"s_getpc_b64 s[{sA}:{sA+1}]")
            a.label("L_pc2")
            a(f"s_sub_u32 s{sA}, s{sA}, L_pc2-{NAME}")
            a(f"s_subb_u32 s{sA+1}, s{sA+1}, 0")
            a(f"v_lshlrev_b32 v{vCb}, 7, v{vLane}")
            a(f"v_min_u32 v{vCb}, L_end-{NAME}-4, v{vCb}")
            a(f"global_load_dword v{vCb+1}, v{vCb}, s[{sA}:{sA+1}]")
        k = nb - 1 - (16 - len(DS2))
        if k >= 0:
            for q in range(nd, nd + DS2[k]):
                for i in dloads(q):
                    a(i)
            nd += DS2[k]
    assert nd == 4
    a("s_branch L_p2")
    a.label("L_done")
    a("s_endpgm")
    a.label("L_end")
    return name, 256, 0, NSLOT * SLOT + 256, 512


def main():
    a = Asm()
    a.raw('.amdgcn_target "amdgcn-amd-amdhsa--gfx950"')
    a.raw(".text")
    name, nv, na, lds, blk = gen(a)
    out = HEADER
    out += f"; @launch grid=(256,1,1) block=({blk},1,1) lds={lds}\n"
    txt = a.text()
    if OPT("REORD", 1):
        import re
        parts = re.split(r"^;;BLOCK (\w+)\n", txt, flags=re.M)
        blk = {"head": parts[0]}
        for k in range(1, len(parts), 2):
            blk[parts[k]] = parts[k + 1]
        if OPT("REORD", 1) == 2:
            rest, tail = blk["rest"].split("L_done:\n")
            txt = blk["head"] + blk["ld"] + rest + blk["comp"] + "L_done:\n" + tail
        else:
            txt = blk["head"] + blk["ld"] + blk["comp"] + blk["rest"]
    out += txt
    out += '.section .rodata,"a"\n'
    out += G.descriptor(name, nv, na)
    path = sys.argv[1] if len(sys.argv) > 1 else "standalone__spectral_fnet__prompt.s"
    open(path, "w").write(out)


if __name__ == "__main__":
    main()
```

```python
import sys, os, math
import gen as G
from gen import OPT, Asm, Stamps, srd, interleave, flat, X_BYTES, C_BYTES, D_BYTES, DOFF, STAMP_OFF, HEADER

NSLOT, SLOT, XOFF, NSTAGE = 5, 30720, 16384, 16
ROT = OPT("ROT", 5)
PDEPTH = OPT('PDEPTH', 3)
SPIN = 1 << 14
NAME = "standalone__spectral_fnet__prompt_kernel"
DF_END = DOFF + 784 * 1024
LFOFF = DF_END
WS_BYTES = LFOFF + 32 * 128
LDS_DEC = NSLOT * SLOT
LDS_XCH = 114688
NB1 = OPT("NB1", 2)
NB2 = OPT("NB2", 6)


def gen(a):
    name = NAME
    a.raw(f".globl {name}")
    a.raw(".p2align 8")
    a.raw(f".type {name},@function")
    a.label(name)
    sA, sB, sWS, sE = 16, 20, 24, 28
    sCl, sDc = 32, 34
    sW = 36
    sT0, sT1, sT2, sT3 = 37, 38, 39, 40
    sH, sRB, sJ = 41, 42, 43
    sRot, sBase, sOff, sOff2, sSlot, sIt = 46, 47, 48, 49, 50, 51
    sFl, sLoc, sByte = 52, 53, 54
    sD0, sD1 = 60, 61
    sPQ = 62
    sPL = 63

    vLane = 1
    vT = 2
    vCb0 = 6
    vXb0 = 8
    vCb = 10
    vXb = 12
    vL16 = 14
    vO = 16
    FX, FY = 16, 52
    ACC = 88
    DFR = 144
    ACC2 = 88
    PB = 16

    def cfrag(b, n):
        return b + n * 4

    def xfrag(b, m):
        return b + 8 + m * 4

    def acc(m, n):
        return ACC + (m * 2 + n) * 4

    def df(ml, e):
        return DFR + (ml * 2 + e) * 4

    st = Stamps(a, 64, 0)
    a("s_cmp_ge_u32 s2, 256")
    a("s_cbranch_scc1 L_done")
    st()
    a("s_load_dwordx8 s[4:11], s[0:1], 0")
    a("s_load_dwordx4 s[12:15], s[0:1], 32")
    a("s_load_dwordx4 s[56:59], s[0:1], 48")
    a(f"v_lshrrev_b32 v{vT}, 6, v0")
    a(f"v_and_b32 v{vLane}, 63, v0")
    a(f"v_readfirstlane_b32 s{sW}, v{vT}")
    if OPT("CODEPF", 2) == 2:
        a(f"s_cmp_lg_u32 s{sW}, 7")
        a("s_cbranch_scc1 L_nopf")
        a("s_getpc_b64 s[60:61]")
        a.label("L_pc")
        a(f"v_lshlrev_b32 v{vT}, 7, v{vLane}")
        a(f"v_min_u32 v{vT}, L_end-L_pc-4, v{vT}")
        a(f"global_load_dword v{vT+2}, v{vT}, s[60:61]")
        a.label("L_nopf")
    a(f"s_and_b32 s{sT0}, s2, 7")
    a(f"s_lshr_b32 s{sT1}, s2, 3")
    a(f"s_and_b32 s{sJ}, s{sT1}, 3")
    a(f"s_lshr_b32 s{sH}, s{sT1}, 2")
    a(f"s_and_b32 s{sH}, s{sH}, 1")
    a(f"s_lshr_b32 s{sRot}, s{sT1}, 3")
    a(f"s_lshl_b32 s{sRB}, s{sRot}, 3")
    a(f"s_add_u32 s{sRB}, s{sRB}, s{sT0}")
    if ROT == 2:
        a(f"s_add_u32 s{sRot}, s{sRot}, s{sJ}")
        a(f"s_lshl_b32 s{sRot}, s{sRot}, 2")
    elif ROT == 5:
        a(f"s_lshl_b32 s{sRot}, s{sRot}, 2")
        a(f"s_lshr_b32 s{sT2}, s{sJ}, 1")
        a(f"s_lshl_b32 s{sT2}, s{sT2}, 3")
        a(f"s_add_u32 s{sRot}, s{sRot}, s{sT2}")
    elif ROT == 1:
        a(f"s_lshl_b32 s{sRot}, s{sRot}, 2")
    else:
        a(f"s_mov_b32 s{sRot}, 0")
    a(f"s_and_b32 s{sRot}, s{sRot}, 15")
    a(f"v_lshlrev_b32 v{vL16}, 4, v{vLane}")
    if OPT("REORD", 1):
        a(f"s_cmp_eq_u32 s{sW}, 5")
        a("s_cbranch_scc1 L_ldx")
        a(f"s_cmp_ge_u32 s{sW}, 6")
        a("s_cbranch_scc1 L_aux")
        a(f"s_cmp_lt_u32 s{sW}, 4")
        a("s_cbranch_scc1 L_comp")
    else:
        a(f"s_cmp_eq_u32 s{sW}, 4")
        a("s_cbranch_scc1 L_ldc")
        a(f"s_cmp_eq_u32 s{sW}, 5")
        a("s_cbranch_scc1 L_ldx")
        a(f"s_cmp_ge_u32 s{sW}, 6")
        a("s_cbranch_scc1 L_aux")

    def p2_offsets():
        a(f"s_and_b32 s{sT0}, s{sW}, 1")
        a(f"s_mul_i32 s{sT0}, s{sT0}, 14")
        a(f"s_lshr_b32 s{sT1}, s{sW}, 1")
        a(f"s_mul_i32 s{sT2}, s{sT1}, 56")
        a(f"s_add_u32 s{sT0}, s{sT0}, s{sT2}")
        a(f"s_mul_i32 s{sT2}, s{sJ}, 196")
        a(f"s_add_u32 s{sT0}, s{sT0}, s{sT2}")
        a(f"s_lshl_b32 s{sT0}, s{sT0}, 10")
        a(f"s_add_u32 s{sD0}, s{sT0}, {DOFF}")
        a(f"s_add_u32 s{sD1}, s{sT0}, {DOFF + 28*1024}")
        a(f"s_cmp_eq_u32 s{sT1}, 3")
        a(f"s_cselect_b32 s{sD1}, 0x7f000000, s{sD1}")
        a(f"s_and_b32 s{sT0}, s{sW}, 3")
        a(f"s_lshr_b32 s{sT1}, s{sW}, 2")
        a(f"s_mul_i32 s{sT1}, s{sT1}, 14")
        a(f"s_mul_i32 s{sPL}, s{sT0}, 28")
        a(f"s_add_u32 s{sPL}, s{sPL}, s{sT1}")
        a(f"s_lshl_b32 s{sPL}, s{sPL}, 10")
        a(f"s_lshr_b32 s{sT2}, s{sT0}, 1")
        a(f"s_lshl_b32 s{sT2}, s{sT2}, 7")
        a(f"s_and_b32 s{sT0}, s{sT0}, 1")
        a(f"s_add_u32 s{sT0}, s{sT0}, s{sT2}")
        a(f"s_lshl_b32 s{sT2}, s{sRB}, 2")
        a(f"s_add_u32 s{sT0}, s{sT0}, s{sT2}")
        a(f"s_lshl_b32 s{sT2}, s{sH}, 1")
        a(f"s_add_u32 s{sT0}, s{sT0}, s{sT2}")
        a(f"s_mul_i32 s{sT0}, s{sT0}, 28")
        a(f"s_add_u32 s{sT0}, s{sT0}, s{sT1}")
        a(f"s_lshl_b32 s{sPQ}, s{sT0}, 10")

    def dloads(q):
        ins = []
        idx = list(range(q * 7, q * 7 + 7))
        for t in idx:
            ml, e = t >> 1, t & 1
            r = df(ml, e)
            grp, off = ml // 4, (ml % 4) * 1024
            ins.append((grp, f"buffer_load_dwordx4 v[{r}:{r+3}], v{{V}}, s[{sWS}:{sWS+3}], s{sD0+e} offen offset:{off} sc1"))
        out = []
        for grp, i in ins:
            out.append(i.replace("{V}", str(vT + grp)))
        return out

    def dload_setup():
        a(f"v_mov_b32 v{vT}, v{vL16}")
        for g_ in range(1, 4):
            a(f"v_add_u32 v{vT+g_}, {4096*g_}, v{vL16}")

    a.label("L_comp")
    a(f"v_and_b32 v{vT}, 15, v{vLane}")
    a(f"v_lshrrev_b32 v{vT+1}, 4, v{vLane}")
    a(f"v_lshrrev_b32 v{vT+3}, 1, v{vT}")
    a(f"v_xor_b32 v{vT+2}, v{vT+1}, v{vT+3}")
    a(f"v_lshlrev_b32 v{vT+2}, 4, v{vT+2}")
    a(f"v_lshl_add_u32 v{vCb0}, v{vT}, 7, v{vT+2}")
    a(f"s_lshl_b32 s{sT0}, s{sW}, 11")
    a(f"v_add_u32 v{vCb0}, s{sT0}, v{vCb0}")
    a(f"v_xor_b32 v{vCb0+1}, 64, v{vCb0}")
    a(f"v_lshlrev_b32 v{vT+2}, 3, v{vT+1}")
    a(f"v_lshrrev_b32 v{vT+3}, 2, v{vT}")
    a(f"v_add_u32 v{vT+2}, v{vT+2}, v{vT+3}")
    a(f"v_and_b32 v{vT+3}, 1, v{vT+1}")
    a(f"v_lshlrev_b32 v{vT+3}, 2, v{vT+3}")
    a(f"v_add_u32 v{vXb0}, v{vT+2}, v{vT+3}")
    a(f"v_xor_b32 v{vT+3}, 4, v{vT+3}")
    a(f"v_add_u32 v{vXb0+1}, v{vT+2}, v{vT+3}")
    a(f"v_and_b32 v{vT}, 3, v{vT}")
    a(f"v_lshlrev_b32 v{vT}, 3, v{vT}")
    a(f"v_add_u32 v{vT}, {XOFF}, v{vT}")
    a(f"v_mov_b32 v{vT+1}, 224")
    a(f"v_mad_u32_u24 v{vXb0}, v{vXb0}, v{vT+1}, v{vT}")
    a(f"v_mad_u32_u24 v{vXb0+1}, v{vXb0+1}, v{vT+1}, v{vT}")
    for r in range(36 + 56):
        a(f"v_mov_b32 v{FY+r}, 0")
    for r in range(2):
        a(f"v_mov_b32 v{vCb+r}, v{vCb0+r}")
        a(f"v_mov_b32 v{vXb+r}, v{vXb0+r}")
    a(f"v_add_u32 v{vL16+1}, 4096, v{vL16}")
    a(f"s_lshl_b32 s{sOff}, s{sH}, 7")
    a(f"s_lshl_b32 s{sT1}, s{sRB}, 2")
    a(f"s_add_u32 s{sOff}, s{sOff}, s{sT1}")
    a(f"s_add_u32 s{sOff}, s{sOff}, s{sW}")
    a(f"s_mul_i32 s{sOff}, s{sOff}, 28")
    a(f"s_mul_i32 s{sT1}, s{sJ}, 7")
    a(f"s_add_u32 s{sOff}, s{sOff}, s{sT1}")
    a(f"s_lshl_b32 s{sOff}, s{sOff}, 10")
    p2_offsets()
    dload_setup()
    a("s_waitcnt lgkmcnt(0)")
    srd(a, sWS, 58, WS_BYTES)

    def frag_reads(b, kk):
        ins = []

        def xr(m):
            return [f"ds_read_b64_tr_b16 v[{xfrag(b,m)}:{xfrag(b,m)+1}], v{vXb} offset:{m*32+kk*7168}",
                    f"ds_read_b64_tr_b16 v[{xfrag(b,m)+2}:{xfrag(b,m)+3}], v{vXb+1} offset:{m*32+kk*7168}"]
        ins += xr(0)
        for n in range(2):
            ins.append(f"ds_read_b128 v[{cfrag(b,n)}:{cfrag(b,n)+3}], v{vCb+kk} offset:{n*8192}")
        for m in range(1, 7):
            ins += xr(m)
        return ins

    def mfmas(b):
        return [f"v_mfma_f32_16x16x32_bf16 v[{acc(m,n)}:{acc(m,n)+3}], v[{xfrag(b,m)}:{xfrag(b,m)+3}], "
                f"v[{cfrag(b,n)}:{cfrag(b,n)+3}], v[{acc(m,n)}:{acc(m,n)+3}]"
                for m in range(7) for n in range(2)]

    a(f"s_mov_b32 s{sSlot}, 0")
    a(f"s_mov_b32 s{sIt}, 0")
    if OPT("TRACE"):
        a("s_mov_b32 s98, 5")
    DIT = OPT("DIT", 0)
    DQ0 = OPT("DQ0", 4)
    a.label("L_loop")
    a("s_waitcnt lgkmcnt(0)")
    a("s_barrier")
    if DIT:
        a(f"s_cmp_eq_u32 s{sIt}, {DIT}")
        a("s_cbranch_scc1 L_dl")
        a.label("L_dl_back")
    if OPT("TRACE"):
        a("s_memtime s[96:97]")
        a("s_waitcnt lgkmcnt(0)")
        a(f"s_mov_b32 m0, s98")
        a("s_add_u32 s98, s98, 1")
        a(f"v_writelane_b32 v0, s96, m0")
    for i in interleave(mfmas(FY), frag_reads(FX, 0) + [[f"s_add_u32 s{sSlot}, s{sSlot}, {SLOT}",
                                                          f"s_cmp_eq_u32 s{sSlot}, {SLOT*NSLOT}",
                                                          f"s_cselect_b32 s{sSlot}, 0, s{sSlot}"]], per=2):
        a(i)
    a("s_waitcnt lgkmcnt(0)")
    nxt = [f"v_add_u32 v{vCb+r}, s{sSlot}, v{vCb0+r}" for r in range(2)] + \
          [f"v_add_u32 v{vXb+r}, s{sSlot}, v{vXb0+r}" for r in range(2)] + \
          [[f"s_add_u32 s{sIt}, s{sIt}, 1", f"s_cmp_lt_u32 s{sIt}, {NSTAGE}"]]
    for i in interleave(mfmas(FX), frag_reads(FY, 1) + nxt, per=2):
        a(i)
    a("s_cbranch_scc1 L_loop")
    a(f"v_mov_b32 v{vCb}, {LDS_DEC}")
    a(f"ds_read_b32 v{vCb}, v{vCb}")
    a("s_waitcnt lgkmcnt(0)")
    for i in mfmas(FY):
        a(i)
    if not OPT("FINE"):
        st()
    a(f"v_readfirstlane_b32 s{sLoc}, v{vCb}")
    a("s_nop 4")
    for m in range(7):
        p, q = acc(m, 0), acc(m, 1)
        o = FX + m * 4
        a(f"v_cvt_pk_bf16_f32 v{o}, v{p}, v{p+1}")
        a(f"v_cvt_pk_bf16_f32 v{o+1}, v{p+2}, v{p+3}")
        a(f"v_cvt_pk_bf16_f32 v{o+2}, v{q}, v{q+1}")
        a(f"v_cvt_pk_bf16_f32 v{o+3}, v{q+2}, v{q+3}")
    a(f"s_cmp_eq_u32 s{sLoc}, 1")
    a("s_cbranch_scc1 L_st_loc")
    for loc in range(2):
        if loc:
            a.label("L_st_loc")
        for m in range(7):
            o = FX + m * 4
            a(f"buffer_store_dwordx4 v[{o}:{o+3}], v{vL16 + (m // 4)}, s[{sWS}:{sWS+3}], s{sOff} offen offset:{(m%4)*1024} {'' if loc else 'sc1'}")
        if not loc:
            a("s_branch L_st_done")
    a.label("L_st_done")
    if DIT:
        a("s_waitcnt vmcnt(0)")
        a("s_branch L_p2")
        a.label("L_dl")
        for q in range(4):
            for i in dloads(q):
                a(i)
        a("s_branch L_dl_back")
    elif OPT("DLATE", 1):
        a("s_waitcnt vmcnt(0)")
        a("s_barrier")
        for q in range(DQ0):
            for i in dloads(q):
                a(i)
        a("s_branch L_p2_after")
    else:
        for q in range(4):
            for i in dloads(q):
                a(i)
        a("s_waitcnt vmcnt(28)")

    a.label("L_p2")
    a("s_barrier")
    a.label("L_p2_after")
    if not OPT("FINE"):
        st()
    a(f"v_mov_b32 v{vCb}, {LDS_DEC}")
    a(f"ds_read_b32 v{vCb}, v{vCb}")
    for r in range(16):
        a(f"v_mov_b32 v{ACC2+r}, 0")
    a("s_waitcnt lgkmcnt(0)")
    a(f"v_readfirstlane_b32 s{sLoc}, v{vCb}")
    a(f"s_cmp_eq_u32 s{sW}, 6")
    a("s_cbranch_scc0 L_p2_wait")
    a(f"v_mov_b32 v{vT}, 0")
    a(f"s_mov_b32 s{sIt}, 0")
    a(f"s_cmp_eq_u32 s{sLoc}, 1")
    a("s_cbranch_scc1 L_pub_loc")
    a(f"s_mov_b32 s{sT0}, 0x10000000")
    a(f"s_atomic_add s{sT0}, s[{sCl}:{sCl+1}], 0")
    a.label("L_poll2")
    a(f"s_mov_b32 s{sT2}, 0")
    a(f"s_atomic_add s{sT2}, s[{sCl}:{sCl+1}], 0 glc")
    a("s_waitcnt lgkmcnt(0)")
    a(f"s_add_u32 s{sIt}, s{sIt}, 1")
    a(f"s_lshr_b32 s{sT2}, s{sT2}, 28")
    a(f"s_cmp_eq_u32 s{sT2}, 8")
    a("s_cbranch_scc1 L_poll_done")
    a("s_sleep 16")
    a(f"s_cmp_lt_u32 s{sIt}, {SPIN}")
    a("s_cbranch_scc1 L_poll2")
    a("s_branch L_poll_done")
    a.label("L_pub_loc")
    a(f"s_lshl_b32 s{sT1}, s{sRB}, 7")
    a(f"s_add_u32 s{sT1}, s{sT1}, {LFOFF}")
    a(f"s_and_b32 s{sT0}, s{sFl}, 7")
    a(f"s_lshl_b32 s{sT0}, s{sT0}, 2")
    a(f"s_add_u32 s{sT0}, s{sT0}, s{sT1}")
    a(f"v_mov_b32 v{vT+1}, 1")
    a(f"v_lshlrev_b32 v{vT+3}, 2, v{vLane}")
    a("s_mov_b64 exec, 1")
    a(f"buffer_store_dword v{vT+1}, v{vT}, s[{sWS}:{sWS+3}], s{sT0} offen")
    a("s_mov_b64 exec, 0xff")
    a.label("L_poll3")
    a(f"buffer_load_dword v{vT+2}, v{vT+3}, s[{sWS}:{sWS+3}], s{sT1} offen sc1")
    a("s_waitcnt vmcnt(0)")
    a(f"v_cmp_ne_u32 vcc, 1, v{vT+2}")
    a(f"s_add_u32 s{sIt}, s{sIt}, 1")
    a("s_nop 3")
    a("s_cmp_eq_u64 vcc, 0")
    a("s_cbranch_scc1 L_poll_done")
    a(f"s_cmp_lt_u32 s{sIt}, {SPIN}")
    a("s_cbranch_scc1 L_poll3")
    a.label("L_poll_done")
    a("s_mov_b64 exec, -1")
    a.label("L_p2_wait")
    a(f"s_and_b32 s{sT0}, s{sW}, 1")
    a(f"s_mul_i32 s{sT0}, s{sT0}, 14336")
    a(f"v_add_u32 v{vCb}, s{sT0}, v{vL16}")
    a(f"v_add_u32 v{vCb+1}, 57344, v{vCb}")
    if OPT("WDRAIN"):
        a("s_waitcnt vmcnt(0)")
    a("s_barrier")
    st()
    RB_ = [int(x) for x in os.environ.get("RNDS", "0,2,5,8,11,14").split(",")]
    AHEAD = OPT("AHEAD", 2)

    def pqdma(rnd):
        if rnd >= len(RB_) - 1:
            return
        lo, hi = RB_[rnd], RB_[rnd + 1]
        for i in range(lo, hi):
            if (i - lo) % 4 == 0:
                a(f"s_add_u32 m0, s{sPL}, {i*1024}")
                a(f"s_add_u32 s{sT1}, s{sPQ}, {i*1024}")
            a(f"buffer_load_dwordx4 v{vL16}, s[{sWS}:{sWS+3}], s{sT1} offen offset:{((i-lo)%4)*1024} {'' if OPT('PQPLAIN') else 'sc1 '}lds")
    lab = [0]
    seq = []
    dq = [DQ0]

    def dnext():
        if dq[0] >= 4:
            return
        lab[0] += 1
        a(f"s_cmp_ge_u32 s{sW}, 4")
        a(f"s_cbranch_scc1 L_dq{lab[0]}")
        for i in dloads(dq[0]):
            a(i)
        a.label(f"L_dq{lab[0]}")
        seq.append(('q', dq[0], 7))
        dq[0] += 1

    def pq_issue(rnd):
        if rnd < len(RB_) - 1:
            pqdma(rnd)
            seq.append(('r', rnd, RB_[rnd + 1] - RB_[rnd]))

    def wait_round(rnd):
        hi = RB_[rnd + 1]
        qneed = (2 * hi - 1) // 7
        last = -1
        for k, (t, i, n) in enumerate(seq):
            if (t == 'r' and i <= rnd) or (t == 'q' and i <= qneed):
                last = k
        assert dq[0] > qneed, "D quarter not issued yet"
        cw = sum(n for t, i, n in seq[last + 1:])
        lastr = max(k for k, (t, i, n) in enumerate(seq) if t == 'r' and i <= rnd)
        hw = sum(n for t, i, n in seq[lastr + 1:] if t == 'r')
        if cw == hw:
            a(f"s_waitcnt vmcnt({cw})")
        else:
            lab[0] += 1
            a(f"s_cmp_ge_u32 s{sW}, 4")
            a(f"s_cbranch_scc1 L_wh{lab[0]}")
            a(f"s_waitcnt vmcnt({cw})")
            a(f"s_branch L_wd{lab[0]}")
            a.label(f"L_wh{lab[0]}")
            a(f"s_waitcnt vmcnt({hw})")
            a.label(f"L_wd{lab[0]}")

    for r_ in range(AHEAD):
        pq_issue(r_)
    dnext()

    def preads(ml):
        b = PB + (ml % 3) * 16
        return [f"ds_read_b128 v[{b+(hh*2+tl)*4}:{b+(hh*2+tl)*4+3}], v{vCb+hh} offset:{(tl*28+ml)*1024}"
                for hh in range(2) for tl in range(2)]

    def mf2(ml):
        b = PB + (ml % 3) * 16
        return [f"v_mfma_f32_16x16x32_bf16 v[{ACC2+(e*2+tl)*4}:{ACC2+(e*2+tl)*4+3}], v[{df(ml,e)}:{df(ml,e)+3}], "
                f"v[{b+(hh*2+tl)*4}:{b+(hh*2+tl)*4+3}], v[{ACC2+(e*2+tl)*4}:{ACC2+(e*2+tl)*4+3}]"
                for hh in range(2) for e in range(2) for tl in range(2)]

    for rnd in range(len(RB_) - 1):
        lo, hi = RB_[rnd], RB_[rnd + 1]
        issued = RB_[min(rnd + AHEAD, len(RB_) - 1)]
        if OPT("FINE") and rnd < 2:
            st()
        wait_round(rnd)
        a("s_barrier")
        if OPT("FINE") and rnd < 2:
            st()
            a("s_waitcnt lgkmcnt(0)")
        for i in preads(lo) + (preads(lo + 1) if lo + 1 < hi else []):
            a(i)
        pq_issue(rnd + AHEAD)
        dnext()
        for ml in range(lo, hi):
            nxt_ = preads(ml + 2) if ml + 2 < hi else []
            a(f"s_waitcnt lgkmcnt({4 if ml + 1 < hi else 0})")
            for i in interleave(mf2(ml), nxt_, per=1):
                a(i)
    st()
    a(f"s_lshl_b32 s{sT0}, s{sW}, 11")
    a(f"s_add_u32 s{sT0}, s{sT0}, {LDS_XCH}")
    a(f"s_xor_b32 s{sT1}, s{sT0}, 2048")
    a(f"v_add_u32 v{vT}, s{sT0}, v{vL16}")
    a(f"v_add_u32 v{vT+1}, s{sT1}, v{vL16}")
    srd(a, sA, 14, X_BYTES)
    a(f"v_and_b32 v{vT+2}, 15, v{vLane}")
    a(f"v_mul_u32_u24 v{vT+2}, 896, v{vT+2}")
    a(f"v_lshrrev_b32 v{vT+3}, 4, v{vLane}")
    a(f"v_lshl_add_u32 v{vT+2}, v{vT+3}, 3, v{vT+2}")
    a(f"s_lshl_b32 s{sT0}, s{sRB}, 6")
    a(f"s_lshl_b32 s{sT1}, s{sH}, 5")
    a(f"s_add_u32 s{sT0}, s{sT0}, s{sT1}")
    a(f"s_and_b32 s{sT2}, s{sW}, 1")
    a(f"s_lshl_b32 s{sT1}, s{sT2}, 4")
    a(f"s_add_u32 s{sT0}, s{sT0}, s{sT1}")
    a(f"s_mul_i32 s{sT0}, s{sT0}, 896")
    a(f"s_mul_i32 s{sT1}, s{sJ}, 224")
    a(f"s_add_u32 s{sT0}, s{sT0}, s{sT1}")
    a(f"s_lshr_b32 s{sT1}, s{sW}, 1")
    a(f"s_lshl_b32 s{sT1}, s{sT1}, 6")
    a(f"s_add_u32 s{sT0}, s{sT0}, s{sT1}")
    a(f"s_cmp_eq_u32 s{sT2}, 0")
    a("s_cbranch_scc1 L_x0")
    for e in range(2):
        for k in range(4):
            a(f"v_swap_b32 v{ACC2+(e*2)*4+k}, v{ACC2+(e*2+1)*4+k}")
    a.label("L_x0")
    for e in range(2):
        r = ACC2 + (e * 2 + 1) * 4
        a(f"ds_write_b128 v{vT}, v[{r}:{r+3}] offset:{e*1024}")
    a("s_waitcnt lgkmcnt(0)")
    a("s_barrier")
    for e in range(2):
        a(f"ds_read_b128 v[{PB+e*4}:{PB+e*4+3}], v{vT+1} offset:{e*1024}")
    for e in range(2):
        if e == 1:
            a(f"s_cmp_ge_u32 s{sW}, 6")
            a("s_cbranch_scc1 L_fin")
        a(f"s_waitcnt lgkmcnt({1-e})")
        r = ACC2 + (e * 2) * 4
        for k in range(4):
            a(f"v_add_f32 v{r+k}, v{r+k}, v{PB+e*4+k}")
        a(f"v_cvt_pk_bf16_f32 v{PB+8+e*2}, v{r}, v{r+1}")
        a(f"v_cvt_pk_bf16_f32 v{PB+9+e*2}, v{r+2}, v{r+3}")
        a(f"buffer_store_dwordx2 v[{PB+8+e*2}:{PB+9+e*2}], v{vT+2}, s[{sA}:{sA+3}], s{sT0} offen offset:{e*32}")
    a.label("L_fin")
    if OPT("DBGSTAMP"):
        a("s_waitcnt vmcnt(0)")
        st()
        a("s_waitcnt lgkmcnt(0)")
        a(f"s_xor_b32 s{sT0}, s2, {OPT('DW', 5)}")
        a(f"s_add_u32 s{sT0}, s{sT0}, s{sW}")
        a(f"s_lshl_b32 s{sT0}, s{sT0}, 8")
        srd(a, sA, 56, 32)
        a(f"v_mov_b32 v{vT+1}, 0")
        for i in range(1, st.n):
            a(f"s_sub_u32 s{sT1}, s{64+i*4+2}, s66")
            a(f"v_mov_b32 v{vT}, s{sT1}")
            a(f"buffer_store_dword v{vT}, v{vT+1}, s[{sA}:{sA+3}], s{sT0} offen offset:{i*4}")
    if OPT("STAMP"):
        a(f"s_cmp_ge_u32 s{sW}, 4")
        a("s_cbranch_scc1 L_done")
        a("s_waitcnt vmcnt(0)")
        st.dump(sWS, sT0, vT, sW)
    if OPT("TRACE"):
        a(f"v_writelane_b32 v0, s64, 0")
        a(f"s_lshl_b32 s{sT0}, s2, 2")
        a(f"s_add_u32 s{sT0}, s{sT0}, s{sW}")
        a(f"s_lshl_b32 s{sT0}, s{sT0}, 8")
        a(f"s_add_u32 s{sT0}, s{sT0}, {STAMP_OFF + 3 * (1 << 20)}")
        a(f"v_lshlrev_b32 v{vT}, 2, v{vLane}")
        a(f"buffer_store_dword v0, v{vT}, s[{sWS}:{sWS+3}], s{sT0} offen")
    a("s_endpgm")

    sth = Stamps(a, 64, 2)

    def loader_loop(tag, n, issue, stepbytes):
        adv = [f"s_add_u32 s{sRot}, s{sRot}, 1",
               f"s_and_b32 s{sRot}, s{sRot}, 15",
               f"s_mul_i32 s{sOff}, s{sRot}, {stepbytes}",
               f"s_add_u32 s{sOff}, s{sOff}, s{sBase}",
               f"s_add_u32 s{sSlot}, s{sSlot}, {SLOT}",
               f"s_cmp_eq_u32 s{sSlot}, {SLOT*NSLOT}",
               f"s_cselect_b32 s{sSlot}, 0, s{sSlot}"]
        a(f"s_mul_i32 s{sOff}, s{sRot}, {stepbytes}")
        a(f"s_add_u32 s{sOff}, s{sOff}, s{sBase}")
        a(f"s_mov_b32 s{sSlot}, 0")
        a(f"s_mov_b32 s{sIt}, 0")
        if OPT("LSTAMP"):
            sth.n = 1
            sth()
        if OPT("LPRIO", 0):
            a(f"s_setprio {OPT('LPRIO', 0)}")
        a.label(f"L_{tag}_loop")
        a(f"s_cmp_lt_u32 s{sIt}, {PDEPTH}")
        a(f"s_cbranch_scc1 L_{tag}_issue")
        a(f"s_waitcnt vmcnt({(PDEPTH-1)*n})")
        a("s_barrier")
        a.label(f"L_{tag}_issue")
        for i in issue():
            a(i)
        for i in adv:
            a(i)
        a(f"s_add_u32 s{sIt}, s{sIt}, 1")
        a(f"s_cmp_lt_u32 s{sIt}, {NSTAGE}")
        a(f"s_cbranch_scc1 L_{tag}_loop")
        a("s_branch L_ldtail")

    a.label("L_ldc")
    a(f"v_lshrrev_b32 v{vT}, 3, v{vLane}")
    a(f"v_lshlrev_b32 v{vT}, 12, v{vT}")
    a(f"v_and_b32 v{vT+1}, 7, v{vLane}")
    a(f"v_lshrrev_b32 v{vT+2}, 4, v{vLane}")
    a(f"v_xor_b32 v{vT+1}, v{vT+1}, v{vT+2}")
    a(f"v_lshl_add_u32 v{vO}, v{vT+1}, 4, v{vT}")
    a(f"v_xor_b32 v{vT+1}, 4, v{vT+1}")
    a(f"v_lshl_add_u32 v{vO+1}, v{vT+1}, 4, v{vT}")
    a(f"v_add_u32 v{vO+1}, {8*4096-1024}, v{vO+1}")
    a(f"v_add_u32 v{vO+2}, {16*4096-2048}, v{vO}")
    a(f"v_add_u32 v{vO+3}, {16*4096-2048}, v{vO+1}")
    a(f"s_lshl_b32 s{sBase}, s{sRB}, 18")
    a(f"s_lshl_b32 s{sT0}, s{sH}, 11")
    a(f"s_add_u32 s{sBase}, s{sBase}, s{sT0}")
    a("s_waitcnt lgkmcnt(0)")
    srd(a, sA, 6, C_BYTES)
    srd(a, sB, 8, C_BYTES)

    def issue_c():
        ins = [f"s_add_u32 s{sOff2}, s{sOff}, {32*4096}"]
        for grp in range(4):
            s_ = sA if grp < 2 else sB
            o_ = sOff if grp % 2 == 0 else sOff2
            ins.append(f"s_add_u32 m0, s{sSlot}, {grp*4096}")
            ins.append("s_nop 0")
            for q in range(4):
                ins.append(f"buffer_load_dwordx4 v{vO+q}, s[{s_}:{s_+3}], s{o_} offen offset:{q*1024} lds")
        return ins
    loader_loop("ldc", 16, issue_c, 128)

    a.label("L_ldx")
    for q in range(7):
        if q:
            a(f"v_add_u32 v{vT}, {64*q}, v{vLane}")
            src = vT
        else:
            src = vLane
        a(f"v_mul_u32_u24 v{vT+1}, 4682, v{src}")
        a(f"v_lshrrev_b32 v{vT+1}, 16, v{vT+1}")
        a(f"v_lshlrev_b32 v{vT+2}, 4, v{src}")
        a(f"v_mul_u32_u24 v{vT+3}, 224, v{vT+1}")
        a(f"v_sub_u32 v{vT+2}, v{vT+2}, v{vT+3}")
        a(f"v_lshrrev_b32 v{vT+3}, 1, v{vT+1}")
        a(f"v_and_b32 v{vT+3}, 4, v{vT+3}")
        a(f"v_xor_b32 v{vT+1}, v{vT+1}, v{vT+3}")
        a(f"v_mul_u32_u24 v{vT+1}, 896, v{vT+1}")
        a(f"v_add_u32 v{vO+q}, v{vT+2}, v{vT+1}")
        a(f"v_add_u32 v{vO+q+7}, {32*896 - 1024*((q+7)%4)}, v{vO+q}")
        if q % 4:
            a(f"v_subrev_u32 v{vO+q}, {1024*(q%4)}, v{vO+q}")
    a(f"s_mul_i32 s{sBase}, s{sH}, {1024*896}")
    a(f"s_mul_i32 s{sT0}, s{sJ}, 224")
    a(f"s_add_u32 s{sBase}, s{sBase}, s{sT0}")
    a("s_waitcnt lgkmcnt(0)")
    srd(a, sA, 4, X_BYTES)

    def issue_x():
        ins = []
        for q in range(14):
            if q % 4 == 0:
                ins.append(f"s_add_u32 m0, s{sSlot}, {XOFF + q*1024}")
                ins.append("s_nop 0")
            ins.append(f"buffer_load_dwordx4 v{vO+q}, s[{sA}:{sA+3}], s{sOff} offen offset:{(q%4)*1024} lds")
        return ins
    loader_loop("ldx", 14, issue_x, 64 * 896)

    a.label("L_ldtail")
    if OPT("LPRIO", 0):
        a("s_setprio 0")
    if OPT("LSTAMP"):
        srd(a, sWS, 58, WS_BYTES)
        a(f"s_sub_u32 s{sT3}, s{sW}, 4")
        sth.dump(sWS, sT0, vT, sT3)
    srd(a, sWS, 58, WS_BYTES)
    p2_offsets()
    dload_setup()
    assert PDEPTH == 3
    DS = [int(c) for c in os.environ.get("DSCHED", "022")]
    assert sum(DS) == 4
    nd = 0
    for k in range(PDEPTH):
        a(f"s_waitcnt vmcnt({(PDEPTH-1-k)*14 + 7*nd})")
        a("s_barrier")
        for q in range(nd, nd + DS[k]):
            for i in dloads(q):
                a(i)
        nd += DS[k]
    a("s_branch L_p2")

    a.label("L_aux")
    a(f"s_lshl_b32 s{sFl}, s{sRB}, 3")
    a(f"s_lshl_b32 s{sT0}, s{sH}, 2")
    a(f"s_add_u32 s{sFl}, s{sFl}, s{sT0}")
    a(f"s_add_u32 s{sFl}, s{sFl}, s{sJ}")
    a(f"s_mov_b32 s{sIt}, 0")
    a("s_waitcnt lgkmcnt(0)")
    srd(a, sWS, 58, WS_BYTES)
    a(f"s_cmp_eq_u32 s{sW}, 7")
    a("s_cbranch_scc1 L_aux7")
    a(f"v_and_b32 v{vT}, 15, v{vLane}")
    a(f"v_mul_u32_u24 v{vT}, 896, v{vT}")
    a(f"v_lshrrev_b32 v{vT+1}, 4, v{vLane}")
    a(f"v_lshl_add_u32 v{vT}, v{vT+1}, 3, v{vT}")
    a(f"s_mul_i32 s{sT0}, s{sFl}, 9363")
    a(f"s_lshr_b32 s{sT0}, s{sT0}, 16")
    a(f"s_mul_i32 s{sT1}, s{sT0}, 7")
    a(f"s_sub_u32 s{sT1}, s{sFl}, s{sT1}")
    a(f"s_mul_i32 s{sT0}, s{sT0}, {16*896}")
    a(f"s_lshl_b32 s{sT1}, s{sT1}, 7")
    a(f"s_add_u32 s{sT0}, s{sT0}, s{sT1}")
    srd(a, sB, 10, D_BYTES)
    srd(a, sE, 12, D_BYTES)
    for i in range(4):
        r = FX + i * 4
        a(f"buffer_load_dwordx2 v[{r}:{r+1}], v{vT}, s[{sB}:{sB+3}], s{sT0} offen offset:{i*32}")
        a(f"buffer_load_dwordx2 v[{r+2}:{r+3}], v{vT}, s[{sE}:{sE+3}], s{sT0} offen offset:{i*32}")
    a(f"s_lshl_b32 s{sT1}, s{sRB}, 7")
    a(f"s_and_b32 s{sT2}, s{sFl}, 7")
    a(f"s_lshl_b32 s{sT2}, s{sT2}, 2")
    a(f"s_add_u32 s{sT1}, s{sT1}, s{sT2}")
    a(f"s_add_u32 s{sT1}, s{sT1}, {LFOFF}")
    a(f"v_mov_b32 v{vT+2}, 0")
    a("s_mov_b64 exec, 1")
    a(f"buffer_store_dword v{vT+2}, v{vT+2}, s[{sWS}:{sWS+3}], s{sT1} offen")
    a("s_mov_b64 exec, -1")
    a(f"s_getreg_b32 s{sByte}, hwreg(HW_REG_XCC_ID)")
    a(f"s_and_b32 s{sByte}, s{sByte}, 7")
    a(f"s_lshr_b32 s{sT1}, s{sRB}, 3")
    a(f"s_lshl_b32 s{sT1}, s{sT1}, 6")
    a(f"s_and_b32 s{sT2}, s{sRB}, 7")
    a(f"s_lshl_b32 s{sT2}, s{sT2}, 2")
    a(f"s_add_u32 s{sT1}, s{sT1}, s{sT2}")
    a(f"s_add_u32 s{sT1}, s{sT1}, 32")
    a(f"s_add_u32 s{sCl}, s56, s{sT1}")
    a(f"s_addc_u32 s{sCl+1}, s57, 0")
    a(f"s_cmp_ge_u32 s{sFl}, 196")
    a("s_cbranch_scc1 L_aux_nod")
    a(f"s_lshl_b32 s{sT0}, s{sFl}, 12")
    a(f"s_add_u32 s{sT0}, s{sT0}, {DOFF}")
    a("s_waitcnt vmcnt(0)")
    for i in range(4):
        r = FX + i * 4
        a(f"v_xor_b32 v{r+2}, 0x80008000, v{r+2}")
        a(f"v_xor_b32 v{r+3}, 0x80008000, v{r+3}")
        a(f"buffer_store_dwordx4 v[{r}:{r+3}], v{vL16}, s[{sWS}:{sWS+3}], s{sT0} offen offset:{i*1024} sc1")
    a.label("L_aux_nod")
    for k in range(NB1):
        a("s_barrier")
    a("s_waitcnt vmcnt(0)")
    a(f"s_and_b32 s{sT0}, s{sFl}, 7")
    a(f"s_mul_i32 s{sT0}, s{sT0}, 3")
    a(f"s_lshl_b32 s{sT0}, s{sByte}, s{sT0}")
    a(f"s_add_u32 s{sT0}, s{sT0}, 0x1000000")
    a(f"s_atomic_add s{sT0}, s[{sCl}:{sCl+1}], 0")
    a(f"s_cmp_ge_u32 s{sFl}, 196")
    a("s_cbranch_scc1 L_aux_nod2")
    a(f"s_mul_i32 s{sT1}, s{sFl}, 1338")
    a(f"s_lshr_b32 s{sT1}, s{sT1}, 16")
    a(f"s_lshl_b32 s{sT1}, s{sT1}, 6")
    a(f"s_add_u32 s{sDc}, s56, s{sT1}")
    a(f"s_addc_u32 s{sDc+1}, s57, 0")
    a(f"s_mov_b32 s{sT1}, 1")
    a(f"s_atomic_add s{sT1}, s[{sDc}:{sDc+1}], 0")
    a.label("L_aux_nod2")
    for k in range(NB1, NB2):
        a("s_barrier")
    a("s_waitcnt lgkmcnt(0)")
    a(f"s_lshl_b32 s{sT1}, s{sJ}, 6")
    a(f"s_add_u32 s{sDc}, s56, s{sT1}")
    a(f"s_addc_u32 s{sDc+1}, s57, 0")
    a(f"s_mov_b32 s{sT2}, 0")
    a(f"s_mov_b32 s{sT3}, 0")
    a(f"s_atomic_add s{sT2}, s[{sCl}:{sCl+1}], 0 glc")
    a(f"s_atomic_add s{sT3}, s[{sDc}:{sDc+1}], 0 glc")
    a("s_barrier")
    a("s_barrier")
    a.label("L_poll1")
    a("s_waitcnt lgkmcnt(0)")
    a(f"s_add_u32 s{sIt}, s{sIt}, 1")
    a(f"s_lshr_b32 s{sT0}, s{sT2}, 24")
    a(f"s_and_b32 s{sT0}, s{sT0}, 15")
    a(f"s_lshl_b32 s{sT0}, s{sT0}, 8")
    a(f"s_add_u32 s{sT0}, s{sT0}, s{sT3}")
    a(f"s_cmp_eq_u32 s{sT0}, {8*256+49}")
    a("s_cbranch_scc1 L_poll1_done")
    a(f"s_cmp_ge_u32 s{sIt}, {SPIN}")
    a("s_cbranch_scc1 L_poll1_done")
    a("s_sleep 16")
    a(f"s_mov_b32 s{sT2}, 0")
    a(f"s_mov_b32 s{sT3}, 0")
    a(f"s_atomic_add s{sT2}, s[{sCl}:{sCl+1}], 0 glc")
    a(f"s_atomic_add s{sT3}, s[{sDc}:{sDc+1}], 0 glc")
    a("s_branch L_poll1")
    a.label("L_poll1_done")
    a(f"s_mul_i32 s{sT0}, s{sByte}, 0x249249")
    a(f"s_and_b32 s{sT2}, s{sT2}, 0xffffff")
    a(f"s_cmp_eq_u32 s{sT2}, s{sT0}")
    a(f"s_cselect_b32 s{sLoc}, {0 if OPT('FORCESLOW') else 1}, 0")
    a(f"v_mov_b32 v{vT}, {LDS_DEC}")
    a(f"v_mov_b32 v{vT+1}, s{sLoc}")
    a(f"ds_write_b32 v{vT}, v{vT+1}")
    a("s_waitcnt lgkmcnt(0)")
    a("s_branch L_aux_pre")
    a.label("L_aux7")
    if OPT("TLBPF", 1):
        srd(a, sA, 14, X_BYTES)
        a(f"v_lshlrev_b32 v{vCb}, 17, v{vLane}")
        a(f"buffer_load_dword v{vCb+1}, v{vCb}, s[{sWS}:{sWS+3}], 0 offen")
        a(f"s_mul_i32 s{sT0}, s{sRB}, {64*896}")
        a(f"v_lshlrev_b32 v{vCb}, 10, v{vLane}")
        a(f"buffer_load_dword v{vCb+1}, v{vCb}, s[{sA}:{sA+3}], s{sT0} offen")
    if OPT("CODEPF", 2) == 2:
        a("s_waitcnt vmcnt(0)")
    if OPT("CODEPF", 2) == 1:
        a("s_getpc_b64 s[60:61]")
        a.label("L_pc")
        a(f"s_sub_u32 s60, s60, L_pc-{NAME}")
        a("s_subb_u32 s61, s61, 0")
        a(f"v_lshlrev_b32 v{vT}, 7, v{vLane}")
        a(f"v_min_u32 v{vT}, L_end-{NAME}-4, v{vT}")
        a(f"global_load_dword v{vT+2}, v{vT}, s[60:61]")
        a("s_waitcnt vmcnt(0)")
    for k in range(NB2 + 2):
        a("s_barrier")
    a.label("L_aux_pre")
    p2_offsets()
    dload_setup()
    nb = NB2 + 2
    DSTART = OPT("DSTART", NB2 + 3)
    while nb < DSTART:
        a("s_barrier")
        nb += 1
    if OPT("DPF", 0):
        a(f"s_lshr_b32 s{sT0}, s2, 5")
        a(f"s_mul_i32 s{sT0}, s{sT0}, 25088")
        a(f"s_mul_i32 s{sT1}, s{sJ}, 200704")
        a(f"s_add_u32 s{sT0}, s{sT0}, s{sT1}")
        a(f"s_add_u32 s{sT0}, s{sT0}, {DOFF}")
        a(f"s_sub_u32 s{sT1}, s{sW}, 6")
        a(f"s_lshl_b32 s{sT1}, s{sT1}, 14")
        a(f"v_lshlrev_b32 v{vCb}, 7, v{vLane}")
        a(f"v_add_u32 v{vCb}, s{sT1}, v{vCb}")
        a(f"v_add_u32 v{vCb+1}, 8192, v{vCb}")
        a(f"v_min_u32 v{vCb+1}, {25088-128}, v{vCb+1}")
        a(f"buffer_load_dword v{vXb}, v{vCb}, s[{sWS}:{sWS+3}], s{sT0} offen sc1")
        a(f"buffer_load_dword v{vXb}, v{vCb+1}, s[{sWS}:{sWS+3}], s{sT0} offen sc1")
        for k in range(OPT("DPFGAP", 2)):
            a("s_barrier")
            nb += 1
    DS2 = [int(c) for c in os.environ.get("DSCHED2", os.environ.get("DSCHED", "022"))]
    nd = 0
    while nb < 16:
        a("s_barrier")
        nb += 1
        if nb - 1 == OPT("CPF2", 0):
            a(f"s_getpc_b64 s[{sA}:{sA+1}]")
            a.label("L_pc2")
            a(f"s_sub_u32 s{sA}, s{sA}, L_pc2-{NAME}")
            a(f"s_subb_u32 s{sA+1}, s{sA+1}, 0")
            a(f"v_lshlrev_b32 v{vCb}, 7, v{vLane}")
            a(f"v_min_u32 v{vCb}, L_end-{NAME}-4, v{vCb}")
            a(f"global_load_dword v{vCb+1}, v{vCb}, s[{sA}:{sA+1}]")
        k = nb - 1 - (16 - len(DS2))
        if k >= 0:
            for q in range(nd, nd + DS2[k]):
                for i in dloads(q):
                    a(i)
            nd += DS2[k]
    assert nd == 4
    a("s_branch L_p2")
    a.label("L_done")
    a("s_endpgm")
    a.label("L_end")
    return name, 256, 0, NSLOT * SLOT + 256, 512


def main():
    a = Asm()
    a.raw('.amdgcn_target "amdgcn-amd-amdhsa--gfx950"')
    a.raw(".text")
    name, nv, na, lds, blk = gen(a)
    out = HEADER
    out += f"; @launch grid=(256,1,1) block=({blk},1,1) lds={lds}\n"
    txt = a.text()
    if OPT("REORD", 1):
        import re
        parts = re.split(r"^;;BLOCK (\w+)\n", txt, flags=re.M)
        blk = {"head": parts[0]}
        for k in range(1, len(parts), 2):
            blk[parts[k]] = parts[k + 1]
        if OPT("REORD", 1) == 2:
            rest, tail = blk["rest"].split("L_done:\n")
            txt = blk["head"] + blk["ld"] + rest + blk["comp"] + "L_done:\n" + tail
        else:
            txt = blk["head"] + blk["ld"] + blk["comp"] + blk["rest"]
    out += txt
    out += '.section .rodata,"a"\n'
    out += G.descriptor(name, nv, na)
    path = sys.argv[1] if len(sys.argv) > 1 else "standalone__spectral_fnet__prompt.s"
    open(path, "w").write(out)


if __name__ == "__main__":
    main()
```

```python
import sys, os, math
import gen as G
from gen import OPT, Asm, Stamps, srd, interleave, flat, X_BYTES, C_BYTES, D_BYTES, DOFF, STAMP_OFF, HEADER

NSLOT, SLOT, XOFF, NSTAGE = 5, 30720, 16384, 16
ROT = OPT("ROT", 6)
WS = OPT("WS", 8)
PDEPTH = OPT('PDEPTH', 3)
SPIN = 1 << 14
NAME = "standalone__spectral_fnet__prompt_kernel"
DF_END = DOFF + 784 * 1024
LFOFF = DF_END
WS_BYTES = LFOFF + 32 * 128
LDS_DEC = NSLOT * SLOT
LDS_XCH = 114688
NB1 = OPT("NB1", 2)
NB2 = OPT("NB2", 10)
NBG = OPT("NBG", 2)


def gen(a):
    name = NAME
    a.raw(f".globl {name}")
    a.raw(".p2align 8")
    a.raw(f".type {name},@function")
    a.label(name)
    sA, sB, sWS, sE = 16, 20, 24, 28
    sCl, sDc = 32, 34
    sW = 36
    sT0, sT1, sT2, sT3 = 37, 38, 39, 40
    sH, sRB, sJ = 41, 42, 43
    sRot, sBase, sOff, sOff2, sSlot, sIt = 46, 47, 48, 49, 50, 51
    sFl, sLoc, sByte = 52, 53, 54
    sD0, sD1 = 60, 61
    sPQ = 62
    sPL = 63

    vLane = 1
    vT = 2
    vCb0 = 6
    vXb0 = 8
    vCb = 10
    vXb = 12
    vL16 = 14
    vO = 16
    FX, FY = 16, 52
    ACC = 88
    DFR = 144
    ACC2 = 88
    PB = 16

    def cfrag(b, n):
        return b + n * 4

    def xfrag(b, m):
        return b + 8 + m * 4

    def acc(m, n):
        return ACC + (m * 2 + n) * 4

    def df(ml, e):
        return DFR + (ml * 2 + e) * 4

    st = Stamps(a, 64, 0)
    a("s_cmp_ge_u32 s2, 256")
    a("s_cbranch_scc1 L_done")
    st()
    a("s_load_dwordx8 s[4:11], s[0:1], 0")
    a("s_load_dwordx4 s[12:15], s[0:1], 32")
    a("s_load_dwordx4 s[56:59], s[0:1], 48")
    a(f"v_lshrrev_b32 v{vT}, 6, v0")
    a(f"v_and_b32 v{vLane}, 63, v0")
    a(f"v_readfirstlane_b32 s{sW}, v{vT}")
    if OPT("CODEPF", 2) == 2:
        a(f"s_cmp_lg_u32 s{sW}, 7")
        a("s_cbranch_scc1 L_nopf")
        a("s_getpc_b64 s[60:61]")
        a.label("L_pc")
        a(f"v_lshlrev_b32 v{vT}, 7, v{vLane}")
        a(f"v_min_u32 v{vT}, L_end-L_pc-4, v{vT}")
        a(f"global_load_dword v{vT+2}, v{vT}, s[60:61]")
        a.label("L_nopf")
    a(f"s_and_b32 s{sT0}, s2, 7")
    a(f"s_lshr_b32 s{sT1}, s2, 3")
    a(f"s_and_b32 s{sJ}, s{sT1}, 3")
    if OPT("MAPA"):
        a(f"s_and_b32 s{sH}, s{sT0}, 1")
        a(f"s_lshr_b32 s{sRB}, s{sT0}, 1")
        a(f"s_lshr_b32 s{sRot}, s{sT1}, 2")
        a(f"s_lshl_b32 s{sT2}, s{sRot}, 2")
        a(f"s_add_u32 s{sRB}, s{sRB}, s{sT2}")
    else:
        a(f"s_lshr_b32 s{sH}, s{sT1}, 2")
        a(f"s_and_b32 s{sH}, s{sH}, 1")
        a(f"s_lshr_b32 s{sRot}, s{sT1}, 3")
        a(f"s_lshl_b32 s{sRB}, s{sRot}, 3")
        a(f"s_add_u32 s{sRB}, s{sRB}, s{sT0}")
    if ROT == 2:
        a(f"s_add_u32 s{sRot}, s{sRot}, s{sJ}")
        a(f"s_lshl_b32 s{sRot}, s{sRot}, 2")
    elif ROT == 5:
        a(f"s_lshl_b32 s{sRot}, s{sRot}, 2")
        a(f"s_lshr_b32 s{sT2}, s{sJ}, 1")
        a(f"s_lshl_b32 s{sT2}, s{sT2}, 3")
        a(f"s_add_u32 s{sRot}, s{sRot}, s{sT2}")
    elif ROT == 1:
        a(f"s_lshl_b32 s{sRot}, s{sRot}, 2")
    elif ROT == 6:
        a(f"s_mul_i32 s{sRot}, s{sRot}, {OPT('XO', 4)}")
        a(f"s_lshr_b32 s{sT2}, s{sJ}, {OPT('JS', 1)}")
        a(f"s_mul_i32 s{sT2}, s{sT2}, {OPT('JO', WS // 2)}")
        a(f"s_add_u32 s{sRot}, s{sRot}, s{sT2}")
        a(f"s_and_b32 s{sRot}, s{sRot}, {WS-1}")
    elif ROT == 7:
        a(f"s_lshr_b32 s{sRot}, s{sRot}, 1")
        a(f"s_lshr_b32 s{sT2}, s{sJ}, 1")
        a(f"s_xor_b32 s{sRot}, s{sRot}, s{sT2}")
        a(f"s_lshl_b32 s{sRot}, s{sRot}, 3")
    else:
        a(f"s_mov_b32 s{sRot}, 0")
    a(f"s_and_b32 s{sRot}, s{sRot}, 15")
    a(f"v_lshlrev_b32 v{vL16}, 4, v{vLane}")
    if OPT("REORD", 1):
        a(f"s_cmp_eq_u32 s{sW}, 5")
        a("s_cbranch_scc1 L_ldx")
        a(f"s_cmp_ge_u32 s{sW}, 6")
        a("s_cbranch_scc1 L_aux")
        a(f"s_cmp_lt_u32 s{sW}, 4")
        a("s_cbranch_scc1 L_comp")
    else:
        a(f"s_cmp_eq_u32 s{sW}, 4")
        a("s_cbranch_scc1 L_ldc")
        a(f"s_cmp_eq_u32 s{sW}, 5")
        a("s_cbranch_scc1 L_ldx")
        a(f"s_cmp_ge_u32 s{sW}, 6")
        a("s_cbranch_scc1 L_aux")

    def p2_offsets():
        a(f"s_and_b32 s{sT0}, s{sW}, 1")
        a(f"s_mul_i32 s{sT0}, s{sT0}, 14")
        a(f"s_lshr_b32 s{sT1}, s{sW}, 1")
        a(f"s_mul_i32 s{sT2}, s{sT1}, 56")
        a(f"s_add_u32 s{sT0}, s{sT0}, s{sT2}")
        a(f"s_mul_i32 s{sT2}, s{sJ}, 196")
        a(f"s_add_u32 s{sT0}, s{sT0}, s{sT2}")
        a(f"s_lshl_b32 s{sT0}, s{sT0}, 10")
        a(f"s_add_u32 s{sD0}, s{sT0}, {DOFF}")
        a(f"s_add_u32 s{sD1}, s{sT0}, {DOFF + 28*1024}")
        a(f"s_cmp_eq_u32 s{sT1}, 3")
        a(f"s_cselect_b32 s{sD1}, 0x7f000000, s{sD1}")
        a(f"s_and_b32 s{sT0}, s{sW}, 3")
        a(f"s_lshr_b32 s{sT1}, s{sW}, 2")
        a(f"s_mul_i32 s{sT1}, s{sT1}, 14")
        a(f"s_mul_i32 s{sPL}, s{sT0}, 28")
        a(f"s_add_u32 s{sPL}, s{sPL}, s{sT1}")
        a(f"s_lshl_b32 s{sPL}, s{sPL}, 10")
        a(f"s_lshr_b32 s{sT2}, s{sT0}, 1")
        a(f"s_lshl_b32 s{sT2}, s{sT2}, 7")
        a(f"s_and_b32 s{sT0}, s{sT0}, 1")
        a(f"s_add_u32 s{sT0}, s{sT0}, s{sT2}")
        a(f"s_lshl_b32 s{sT2}, s{sRB}, 2")
        a(f"s_add_u32 s{sT0}, s{sT0}, s{sT2}")
        a(f"s_lshl_b32 s{sT2}, s{sH}, 1")
        a(f"s_add_u32 s{sT0}, s{sT0}, s{sT2}")
        a(f"s_mul_i32 s{sT0}, s{sT0}, 28")
        a(f"s_add_u32 s{sT0}, s{sT0}, s{sT1}")
        a(f"s_lshl_b32 s{sPQ}, s{sT0}, 10")
        if OPT("NOPQ"):
            a(f"s_mov_b32 s{sPQ}, 0x7f000000")

    def dloads(q):
        ins = []
        idx = list(range(q * 7, q * 7 + 7))
        for t in idx:
            ml, e = t >> 1, t & 1
            r = df(ml, e)
            grp, off = ml // 4, (ml % 4) * 1024
            ins.append((grp, f"buffer_load_dwordx4 v[{r}:{r+3}], v{{V}}, s[{sWS}:{sWS+3}], s{sD0+e} offen offset:{off} sc1"))
        out = []
        for grp, i in ins:
            out.append(i.replace("{V}", str(vT + grp)))
        return out

    def dload_setup():
        a(f"v_mov_b32 v{vT}, v{vL16}")
        for g_ in range(1, 4):
            a(f"v_add_u32 v{vT+g_}, {4096*g_}, v{vL16}")

    a.label("L_comp")
    a(f"v_and_b32 v{vT}, 15, v{vLane}")
    a(f"v_lshrrev_b32 v{vT+1}, 4, v{vLane}")
    a(f"v_lshrrev_b32 v{vT+3}, 1, v{vT}")
    a(f"v_xor_b32 v{vT+2}, v{vT+1}, v{vT+3}")
    a(f"v_lshlrev_b32 v{vT+2}, 4, v{vT+2}")
    a(f"v_lshl_add_u32 v{vCb0}, v{vT}, 7, v{vT+2}")
    a(f"s_lshl_b32 s{sT0}, s{sW}, 11")
    a(f"v_add_u32 v{vCb0}, s{sT0}, v{vCb0}")
    a(f"v_xor_b32 v{vCb0+1}, 64, v{vCb0}")
    a(f"v_lshlrev_b32 v{vT+2}, 3, v{vT+1}")
    a(f"v_lshrrev_b32 v{vT+3}, 2, v{vT}")
    a(f"v_add_u32 v{vT+2}, v{vT+2}, v{vT+3}")
    a(f"v_and_b32 v{vT+3}, 1, v{vT+1}")
    a(f"v_lshlrev_b32 v{vT+3}, 2, v{vT+3}")
    a(f"v_add_u32 v{vXb0}, v{vT+2}, v{vT+3}")
    a(f"v_xor_b32 v{vT+3}, 4, v{vT+3}")
    a(f"v_add_u32 v{vXb0+1}, v{vT+2}, v{vT+3}")
    a(f"v_and_b32 v{vT}, 3, v{vT}")
    a(f"v_lshlrev_b32 v{vT}, 3, v{vT}")
    a(f"v_add_u32 v{vT}, {XOFF}, v{vT}")
    a(f"v_mov_b32 v{vT+1}, 224")
    a(f"v_mad_u32_u24 v{vXb0}, v{vXb0}, v{vT+1}, v{vT}")
    a(f"v_mad_u32_u24 v{vXb0+1}, v{vXb0+1}, v{vT+1}, v{vT}")
    for r in range(36 + 56):
        a(f"v_mov_b32 v{FY+r}, 0")
    for r in range(2):
        a(f"v_mov_b32 v{vCb+r}, v{vCb0+r}")
        a(f"v_mov_b32 v{vXb+r}, v{vXb0+r}")
    a(f"v_add_u32 v{vL16+1}, 4096, v{vL16}")
    a(f"s_lshl_b32 s{sOff}, s{sH}, 7")
    a(f"s_lshl_b32 s{sT1}, s{sRB}, 2")
    a(f"s_add_u32 s{sOff}, s{sOff}, s{sT1}")
    a(f"s_add_u32 s{sOff}, s{sOff}, s{sW}")
    a(f"s_mul_i32 s{sOff}, s{sOff}, 28")
    a(f"s_mul_i32 s{sT1}, s{sJ}, 7")
    a(f"s_add_u32 s{sOff}, s{sOff}, s{sT1}")
    a(f"s_lshl_b32 s{sOff}, s{sOff}, 10")
    p2_offsets()
    dload_setup()
    a("s_waitcnt lgkmcnt(0)")
    srd(a, sWS, 58, WS_BYTES)

    def frag_reads(b, kk):
        ins = []

        def xr(m):
            return [f"ds_read_b64_tr_b16 v[{xfrag(b,m)}:{xfrag(b,m)+1}], v{vXb} offset:{m*32+kk*7168}",
                    f"ds_read_b64_tr_b16 v[{xfrag(b,m)+2}:{xfrag(b,m)+3}], v{vXb+1} offset:{m*32+kk*7168}"]
        ins += xr(0)
        for n in range(2):
            ins.append(f"ds_read_b128 v[{cfrag(b,n)}:{cfrag(b,n)+3}], v{vCb+kk} offset:{n*8192}")
        for m in range(1, 7):
            ins += xr(m)
        return ins

    def mfmas(b):
        return [f"v_mfma_f32_16x16x32_bf16 v[{acc(m,n)}:{acc(m,n)+3}], v[{xfrag(b,m)}:{xfrag(b,m)+3}], "
                f"v[{cfrag(b,n)}:{cfrag(b,n)+3}], v[{acc(m,n)}:{acc(m,n)+3}]"
                for m in range(7) for n in range(2)]

    a(f"s_mov_b32 s{sSlot}, 0")
    a(f"s_mov_b32 s{sIt}, 0")
    if OPT("TRACE"):
        a("s_mov_b32 s98, 5")
    DIT = OPT("DIT", 0)
    DQ0 = OPT("DQ0", 4)
    a.label("L_loop")
    a("s_waitcnt lgkmcnt(0)")
    a("s_barrier")
    if DIT:
        a(f"s_cmp_eq_u32 s{sIt}, {DIT}")
        a("s_cbranch_scc1 L_dl")
        a.label("L_dl_back")
    if OPT("TRACE"):
        a("s_memtime s[96:97]")
        a("s_waitcnt lgkmcnt(0)")
        a(f"s_mov_b32 m0, s98")
        a("s_add_u32 s98, s98, 1")
        a(f"v_writelane_b32 v0, s96, m0")
    for i in interleave(mfmas(FY), frag_reads(FX, 0) + [[f"s_add_u32 s{sSlot}, s{sSlot}, {SLOT}",
                                                          f"s_cmp_eq_u32 s{sSlot}, {SLOT*NSLOT}",
                                                          f"s_cselect_b32 s{sSlot}, 0, s{sSlot}"]], per=2):
        a(i)
    a("s_waitcnt lgkmcnt(0)")
    nxt = [f"v_add_u32 v{vCb+r}, s{sSlot}, v{vCb0+r}" for r in range(2)] + \
          [f"v_add_u32 v{vXb+r}, s{sSlot}, v{vXb0+r}" for r in range(2)] + \
          [[f"s_add_u32 s{sIt}, s{sIt}, 1", f"s_cmp_lt_u32 s{sIt}, {NSTAGE}"]]
    for i in interleave(mfmas(FX), frag_reads(FY, 1) + nxt, per=2):
        a(i)
    a("s_cbranch_scc1 L_loop")
    a("s_waitcnt lgkmcnt(0)")
    for i in mfmas(FY):
        a(i)
    if not OPT("FINE"):
        st()
    a("s_nop 4")
    for m in range(7):
        p, q = acc(m, 0), acc(m, 1)
        o = FX + m * 4
        a(f"v_cvt_pk_bf16_f32 v{o}, v{p}, v{p+1}")
        a(f"v_cvt_pk_bf16_f32 v{o+1}, v{p+2}, v{p+3}")
        a(f"v_cvt_pk_bf16_f32 v{o+2}, v{q}, v{q+1}")
        a(f"v_cvt_pk_bf16_f32 v{o+3}, v{q+2}, v{q+3}")
        a(f"buffer_store_dwordx4 v[{o}:{o+3}], v{vL16 + (m // 4)}, s[{sWS}:{sWS+3}], s{sOff} offen offset:{(m%4)*1024} sc1")
    a.label("L_st_done")
    if DIT:
        a("s_waitcnt vmcnt(0)")
        a("s_branch L_p2")
        a.label("L_dl")
        for q in range(4):
            for i in dloads(q):
                a(i)
        a("s_branch L_dl_back")
    elif OPT("DLATE", 1):
        a("s_waitcnt vmcnt(0)")
        a("s_barrier")
        for q in range(DQ0):
            for i in dloads(q):
                a(i)
        a("s_branch L_p2_after")
    else:
        for q in range(4):
            for i in dloads(q):
                a(i)
        a("s_waitcnt vmcnt(28)")

    a.label("L_p2")
    a("s_barrier")
    a.label("L_p2_after")
    if not OPT("FINE"):
        st()
    for r in range(16):
        a(f"v_mov_b32 v{ACC2+r}, 0")
    a(f"s_cmp_eq_u32 s{sW}, 6")
    a("s_cbranch_scc0 L_p2_wait")
    a(f"v_mov_b32 v{vT}, 0")
    a(f"s_mov_b32 s{sIt}, 0")
    a(f"s_cmp_eq_u32 s{sLoc}, 1")
    a("s_cbranch_scc1 L_pub_loc")
    a(f"s_mov_b32 s{sT0}, 0x10000000")
    a(f"s_atomic_add s{sT0}, s[{sCl}:{sCl+1}], 0")
    a.label("L_poll2")
    a(f"s_mov_b32 s{sT2}, 0")
    a(f"s_atomic_add s{sT2}, s[{sCl}:{sCl+1}], 0 glc")
    a("s_waitcnt lgkmcnt(0)")
    a(f"s_add_u32 s{sIt}, s{sIt}, 1")
    a(f"s_lshr_b32 s{sT2}, s{sT2}, 28")
    a(f"s_cmp_eq_u32 s{sT2}, 8")
    a("s_cbranch_scc1 L_poll_done")
    a("s_sleep 16")
    a(f"s_cmp_lt_u32 s{sIt}, {SPIN}")
    a("s_cbranch_scc1 L_poll2")
    a("s_branch L_poll_done")
    a.label("L_pub_loc")
    a(f"s_lshl_b32 s{sT1}, s{sRB}, 7")
    a(f"s_add_u32 s{sT1}, s{sT1}, {LFOFF}")
    a(f"s_and_b32 s{sT0}, s{sFl}, 7")
    a(f"s_lshl_b32 s{sT0}, s{sT0}, 2")
    a(f"s_add_u32 s{sT0}, s{sT0}, s{sT1}")
    a(f"v_mov_b32 v{vT+1}, 1")
    a(f"v_lshlrev_b32 v{vT+3}, 2, v{vLane}")
    a("s_mov_b64 exec, 1")
    a(f"buffer_store_dword v{vT+1}, v{vT}, s[{sWS}:{sWS+3}], s{sT0} offen")
    a("s_mov_b64 exec, 0xff")
    a.label("L_poll3")
    a(f"buffer_load_dword v{vT+2}, v{vT+3}, s[{sWS}:{sWS+3}], s{sT1} offen sc1")
    a("s_waitcnt vmcnt(0)")
    a(f"v_cmp_ne_u32 vcc, 1, v{vT+2}")
    a(f"s_add_u32 s{sIt}, s{sIt}, 1")
    a("s_nop 3")
    a("s_cmp_eq_u64 vcc, 0")
    a("s_cbranch_scc1 L_poll_done")
    a(f"s_cmp_lt_u32 s{sIt}, {SPIN}")
    a("s_cbranch_scc1 L_poll3")
    a.label("L_poll_done")
    a("s_mov_b64 exec, -1")
    a.label("L_p2_wait")
    a(f"s_and_b32 s{sT0}, s{sW}, 1")
    a(f"s_mul_i32 s{sT0}, s{sT0}, 14336")
    a(f"v_add_u32 v{vCb}, s{sT0}, v{vL16}")
    a(f"v_add_u32 v{vCb+1}, 57344, v{vCb}")
    if OPT("WDRAIN"):
        a("s_waitcnt vmcnt(0)")
    a("s_barrier")
    st()
    RB_ = [int(x) for x in os.environ.get("RNDS", "0,2,5,8,11,14").split(",")]
    AHEAD = OPT("AHEAD", 2)

    def pqdma(rnd):
        if rnd >= len(RB_) - 1:
            return
        lo, hi = RB_[rnd], RB_[rnd + 1]
        for i in range(lo, hi):
            if (i - lo) % 4 == 0:
                a(f"s_add_u32 m0, s{sPL}, {i*1024}")
                a(f"s_add_u32 s{sT1}, s{sPQ}, {i*1024}")
            a(f"buffer_load_dwordx4 v{vL16}, s[{sWS}:{sWS+3}], s{sT1} offen offset:{((i-lo)%4)*1024} {'' if OPT('PQPLAIN') else 'sc1 '}lds")
    lab = [0]
    seq = []
    dq = [DQ0]

    def dnext():
        if dq[0] >= 4:
            return
        lab[0] += 1
        a(f"s_cmp_ge_u32 s{sW}, 4")
        a(f"s_cbranch_scc1 L_dq{lab[0]}")
        for i in dloads(dq[0]):
            a(i)
        a.label(f"L_dq{lab[0]}")
        seq.append(('q', dq[0], 7))
        dq[0] += 1

    def pq_issue(rnd):
        if rnd < len(RB_) - 1:
            pqdma(rnd)
            seq.append(('r', rnd, RB_[rnd + 1] - RB_[rnd]))

    def wait_round(rnd):
        hi = RB_[rnd + 1]
        qneed = (2 * hi - 1) // 7
        last = -1
        for k, (t, i, n) in enumerate(seq):
            if (t == 'r' and i <= rnd) or (t == 'q' and i <= qneed):
                last = k
        assert dq[0] > qneed, "D quarter not issued yet"
        cw = sum(n for t, i, n in seq[last + 1:])
        lastr = max(k for k, (t, i, n) in enumerate(seq) if t == 'r' and i <= rnd)
        hw = sum(n for t, i, n in seq[lastr + 1:] if t == 'r')
        if cw == hw:
            a(f"s_waitcnt vmcnt({cw})")
        else:
            lab[0] += 1
            a(f"s_cmp_ge_u32 s{sW}, 4")
            a(f"s_cbranch_scc1 L_wh{lab[0]}")
            a(f"s_waitcnt vmcnt({cw})")
            a(f"s_branch L_wd{lab[0]}")
            a.label(f"L_wh{lab[0]}")
            a(f"s_waitcnt vmcnt({hw})")
            a.label(f"L_wd{lab[0]}")

    for r_ in range(AHEAD):
        pq_issue(r_)
    dnext()

    def preads(ml):
        b = PB + (ml % 3) * 16
        return [f"ds_read_b128 v[{b+(hh*2+tl)*4}:{b+(hh*2+tl)*4+3}], v{vCb+hh} offset:{(tl*28+ml)*1024}"
                for hh in range(2) for tl in range(2)]

    def mf2(ml):
        b = PB + (ml % 3) * 16
        return [f"v_mfma_f32_16x16x32_bf16 v[{ACC2+(e*2+tl)*4}:{ACC2+(e*2+tl)*4+3}], v[{df(ml,e)}:{df(ml,e)+3}], "
                f"v[{b+(hh*2+tl)*4}:{b+(hh*2+tl)*4+3}], v[{ACC2+(e*2+tl)*4}:{ACC2+(e*2+tl)*4+3}]"
                for hh in range(2) for e in range(2) for tl in range(2)]

    for rnd in range(len(RB_) - 1):
        lo, hi = RB_[rnd], RB_[rnd + 1]
        issued = RB_[min(rnd + AHEAD, len(RB_) - 1)]
        if OPT("FINE") and rnd < 2:
            st()
        wait_round(rnd)
        a("s_barrier")
        if OPT("FINE") and rnd < 2:
            st()
            a("s_waitcnt lgkmcnt(0)")
        for i in preads(lo) + (preads(lo + 1) if lo + 1 < hi else []):
            a(i)
        pq_issue(rnd + AHEAD)
        dnext()
        for ml in range(lo, hi):
            nxt_ = preads(ml + 2) if ml + 2 < hi else []
            a(f"s_waitcnt lgkmcnt({4 if ml + 1 < hi else 0})")
            for i in interleave(mf2(ml), nxt_, per=1):
                a(i)
    st()
    a(f"s_lshl_b32 s{sT0}, s{sW}, 11")
    a(f"s_add_u32 s{sT0}, s{sT0}, {LDS_XCH}")
    a(f"s_xor_b32 s{sT1}, s{sT0}, 2048")
    a(f"v_add_u32 v{vT}, s{sT0}, v{vL16}")
    a(f"v_add_u32 v{vT+1}, s{sT1}, v{vL16}")
    srd(a, sA, 14, X_BYTES)
    a(f"v_and_b32 v{vT+2}, 15, v{vLane}")
    a(f"v_mul_u32_u24 v{vT+2}, 896, v{vT+2}")
    a(f"v_lshrrev_b32 v{vT+3}, 4, v{vLane}")
    a(f"v_lshl_add_u32 v{vT+2}, v{vT+3}, 3, v{vT+2}")
    a(f"s_lshl_b32 s{sT0}, s{sRB}, 6")
    a(f"s_lshl_b32 s{sT1}, s{sH}, 5")
    a(f"s_add_u32 s{sT0}, s{sT0}, s{sT1}")
    a(f"s_and_b32 s{sT2}, s{sW}, 1")
    a(f"s_lshl_b32 s{sT1}, s{sT2}, 4")
    a(f"s_add_u32 s{sT0}, s{sT0}, s{sT1}")
    a(f"s_mul_i32 s{sT0}, s{sT0}, 896")
    a(f"s_mul_i32 s{sT1}, s{sJ}, 224")
    a(f"s_add_u32 s{sT0}, s{sT0}, s{sT1}")
    a(f"s_lshr_b32 s{sT1}, s{sW}, 1")
    a(f"s_lshl_b32 s{sT1}, s{sT1}, 6")
    a(f"s_add_u32 s{sT0}, s{sT0}, s{sT1}")
    a(f"s_cmp_eq_u32 s{sT2}, 0")
    a("s_cbranch_scc1 L_x0")
    for e in range(2):
        for k in range(4):
            a(f"v_swap_b32 v{ACC2+(e*2)*4+k}, v{ACC2+(e*2+1)*4+k}")
    a.label("L_x0")
    for e in range(2):
        r = ACC2 + (e * 2 + 1) * 4
        a(f"ds_write_b128 v{vT}, v[{r}:{r+3}] offset:{e*1024}")
    a("s_waitcnt lgkmcnt(0)")
    a("s_barrier")
    for e in range(2):
        a(f"ds_read_b128 v[{PB+e*4}:{PB+e*4+3}], v{vT+1} offset:{e*1024}")
    for e in range(2):
        if e == 1:
            a(f"s_cmp_ge_u32 s{sW}, 6")
            a("s_cbranch_scc1 L_fin")
        a(f"s_waitcnt lgkmcnt({1-e})")
        r = ACC2 + (e * 2) * 4
        for k in range(4):
            a(f"v_add_f32 v{r+k}, v{r+k}, v{PB+e*4+k}")
        a(f"v_cvt_pk_bf16_f32 v{PB+8+e*2}, v{r}, v{r+1}")
        a(f"v_cvt_pk_bf16_f32 v{PB+9+e*2}, v{r+2}, v{r+3}")
        a(f"buffer_store_dwordx2 v[{PB+8+e*2}:{PB+9+e*2}], v{vT+2}, s[{sA}:{sA+3}], s{sT0} offen offset:{e*32} {os.environ.get('OUTPOL', '')}")
    a.label("L_fin")
    if OPT("DBGSTAMP"):
        a("s_waitcnt vmcnt(0)")
        st()
        a("s_waitcnt lgkmcnt(0)")
        a(f"s_xor_b32 s{sT0}, s2, {OPT('DW', 5)}")
        a(f"s_add_u32 s{sT0}, s{sT0}, s{sW}")
        a(f"s_lshl_b32 s{sT0}, s{sT0}, 8")
        srd(a, sA, 56, 32)
        a(f"v_mov_b32 v{vT+1}, 0")
        for i in range(1, st.n):
            a(f"s_sub_u32 s{sT1}, s{64+i*4+2}, s66")
            a(f"v_mov_b32 v{vT}, s{sT1}")
            a(f"buffer_store_dword v{vT}, v{vT+1}, s[{sA}:{sA+3}], s{sT0} offen offset:{i*4}")
    if OPT("STAMP"):
        a(f"s_cmp_ge_u32 s{sW}, 4")
        a("s_cbranch_scc1 L_done")
        a("s_waitcnt vmcnt(0)")
        st.dump(sWS, sT0, vT, sW)
    if OPT("TRACE"):
        a(f"v_writelane_b32 v0, s64, 0")
        a(f"s_lshl_b32 s{sT0}, s2, 2")
        a(f"s_add_u32 s{sT0}, s{sT0}, s{sW}")
        a(f"s_lshl_b32 s{sT0}, s{sT0}, 8")
        a(f"s_add_u32 s{sT0}, s{sT0}, {STAMP_OFF + 3 * (1 << 20)}")
        a(f"v_lshlrev_b32 v{vT}, 2, v{vLane}")
        a(f"buffer_store_dword v0, v{vT}, s[{sWS}:{sWS+3}], s{sT0} offen")
    a("s_endpgm")

    sth = Stamps(a, 64, 2)

    def loader_loop(tag, n, issue, stepbytes):
        adv = [f"s_add_u32 s{sRot}, s{sRot}, 1",
               f"s_and_b32 s{sRot}, s{sRot}, 15",
               f"s_mul_i32 s{sOff}, s{sRot}, {stepbytes}",] if ROT != 6 else [
               f"s_add_u32 s{sRot}, s{sRot}, 1",
               f"s_and_b32 s{sRot}, s{sRot}, {WS-1}",
               f"s_add_u32 s{sOff}, s{sIt}, 1",
               f"s_and_b32 s{sOff}, s{sOff}, {16-WS}",
               f"s_add_u32 s{sOff}, s{sOff}, s{sRot}",
               f"s_mul_i32 s{sOff}, s{sOff}, {stepbytes}"]
        adv += [
               f"s_add_u32 s{sOff}, s{sOff}, s{sBase}",
               f"s_add_u32 s{sSlot}, s{sSlot}, {SLOT}",
               f"s_cmp_eq_u32 s{sSlot}, {SLOT*NSLOT}",
               f"s_cselect_b32 s{sSlot}, 0, s{sSlot}"]
        a(f"s_mul_i32 s{sOff}, s{sRot}, {stepbytes}")
        a(f"s_add_u32 s{sOff}, s{sOff}, s{sBase}")
        a(f"s_mov_b32 s{sSlot}, 0")
        a(f"s_mov_b32 s{sIt}, 0")
        if OPT("LSTAMP"):
            sth.n = 1
            sth()
        if OPT("LPRIO", 0):
            a(f"s_setprio {OPT('LPRIO', 0)}")
        a.label(f"L_{tag}_loop")
        a(f"s_cmp_lt_u32 s{sIt}, {PDEPTH}")
        a(f"s_cbranch_scc1 L_{tag}_issue")
        a(f"s_waitcnt vmcnt({(PDEPTH-1)*n})")
        a("s_barrier")
        a.label(f"L_{tag}_issue")
        for i in issue():
            a(i)
        for i in adv:
            a(i)
        a(f"s_add_u32 s{sIt}, s{sIt}, 1")
        a(f"s_cmp_lt_u32 s{sIt}, {NSTAGE}")
        a(f"s_cbranch_scc1 L_{tag}_loop")
        a("s_branch L_ldtail")

    a.label("L_ldc")
    a(f"v_lshrrev_b32 v{vT}, 3, v{vLane}")
    a(f"v_lshlrev_b32 v{vT}, 12, v{vT}")
    a(f"v_and_b32 v{vT+1}, 7, v{vLane}")
    a(f"v_lshrrev_b32 v{vT+2}, 4, v{vLane}")
    a(f"v_xor_b32 v{vT+1}, v{vT+1}, v{vT+2}")
    a(f"v_lshl_add_u32 v{vO}, v{vT+1}, 4, v{vT}")
    a(f"v_xor_b32 v{vT+1}, 4, v{vT+1}")
    a(f"v_lshl_add_u32 v{vO+1}, v{vT+1}, 4, v{vT}")
    a(f"v_add_u32 v{vO+1}, {8*4096-1024}, v{vO+1}")
    a(f"v_add_u32 v{vO+2}, {16*4096-2048}, v{vO}")
    a(f"v_add_u32 v{vO+3}, {16*4096-2048}, v{vO+1}")
    a(f"s_lshl_b32 s{sBase}, s{sRB}, 18")
    a(f"s_lshl_b32 s{sT0}, s{sH}, 11")
    a(f"s_add_u32 s{sBase}, s{sBase}, s{sT0}")
    a("s_waitcnt lgkmcnt(0)")
    srd(a, sA, 6, C_BYTES)
    srd(a, sB, 8, C_BYTES)

    def issue_c():
        ins = [f"s_add_u32 s{sOff2}, s{sOff}, {32*4096}"]
        for grp in range(4):
            s_ = sA if grp < 2 else sB
            o_ = sOff if grp % 2 == 0 else sOff2
            ins.append(f"s_add_u32 m0, s{sSlot}, {grp*4096}")
            ins.append("s_nop 0")
            for q in range(4):
                ins.append(f"buffer_load_dwordx4 v{vO+q}, s[{s_}:{s_+3}], s{o_} offen offset:{q*1024} lds")
        return ins
    loader_loop("ldc", 16, issue_c, 128)

    a.label("L_ldx")
    for q in range(7):
        if q:
            a(f"v_add_u32 v{vT}, {64*q}, v{vLane}")
            src = vT
        else:
            src = vLane
        a(f"v_mul_u32_u24 v{vT+1}, 4682, v{src}")
        a(f"v_lshrrev_b32 v{vT+1}, 16, v{vT+1}")
        a(f"v_lshlrev_b32 v{vT+2}, 4, v{src}")
        a(f"v_mul_u32_u24 v{vT+3}, 224, v{vT+1}")
        a(f"v_sub_u32 v{vT+2}, v{vT+2}, v{vT+3}")
        a(f"v_lshrrev_b32 v{vT+3}, 1, v{vT+1}")
        a(f"v_and_b32 v{vT+3}, 4, v{vT+3}")
        a(f"v_xor_b32 v{vT+1}, v{vT+1}, v{vT+3}")
        a(f"v_mul_u32_u24 v{vT+1}, 896, v{vT+1}")
        a(f"v_add_u32 v{vO+q}, v{vT+2}, v{vT+1}")
        a(f"v_add_u32 v{vO+q+7}, {32*896 - 1024*((q+7)%4)}, v{vO+q}")
        if q % 4:
            a(f"v_subrev_u32 v{vO+q}, {1024*(q%4)}, v{vO+q}")
    a(f"s_mul_i32 s{sBase}, s{sH}, {1024*896}")
    a(f"s_mul_i32 s{sT0}, s{sJ}, 224")
    a(f"s_add_u32 s{sBase}, s{sBase}, s{sT0}")
    a("s_waitcnt lgkmcnt(0)")
    srd(a, sA, 4, X_BYTES)

    def issue_x():
        ins = []
        for q in range(14):
            if q % 4 == 0:
                ins.append(f"s_add_u32 m0, s{sSlot}, {XOFF + q*1024}")
                ins.append("s_nop 0")
            ins.append(f"buffer_load_dwordx4 v{vO+q}, s[{sA}:{sA+3}], s{sOff} offen offset:{(q%4)*1024} lds")
        return ins
    loader_loop("ldx", 14, issue_x, 64 * 896)

    a.label("L_ldtail")
    if OPT("LPRIO", 0):
        a("s_setprio 0")
    if OPT("LSTAMP"):
        srd(a, sWS, 58, WS_BYTES)
        a(f"s_sub_u32 s{sT3}, s{sW}, 4")
        sth.dump(sWS, sT0, vT, sT3)
    srd(a, sWS, 58, WS_BYTES)
    p2_offsets()
    dload_setup()
    assert PDEPTH == 3
    DS = [int(c) for c in os.environ.get("DSCHED", "022")]
    assert sum(DS) == 4
    nd = 0
    for k in range(PDEPTH):
        a(f"s_waitcnt vmcnt({(PDEPTH-1-k)*14 + 7*nd})")
        a("s_barrier")
        for q in range(nd, nd + DS[k]):
            for i in dloads(q):
                a(i)
        nd += DS[k]
    a("s_branch L_p2")

    a.label("L_aux")
    a(f"s_lshl_b32 s{sFl}, s{sRB}, 3")
    a(f"s_lshl_b32 s{sT0}, s{sH}, 2")
    a(f"s_add_u32 s{sFl}, s{sFl}, s{sT0}")
    a(f"s_add_u32 s{sFl}, s{sFl}, s{sJ}")
    a(f"s_mov_b32 s{sIt}, 0")
    a("s_waitcnt lgkmcnt(0)")
    srd(a, sWS, 58, WS_BYTES)
    a(f"s_cmp_eq_u32 s{sW}, 7")
    a("s_cbranch_scc1 L_aux7")
    a(f"v_and_b32 v{vT}, 15, v{vLane}")
    a(f"v_mul_u32_u24 v{vT}, 896, v{vT}")
    a(f"v_lshrrev_b32 v{vT+1}, 4, v{vLane}")
    a(f"v_lshl_add_u32 v{vT}, v{vT+1}, 3, v{vT}")
    a(f"s_mul_i32 s{sT0}, s{sFl}, 9363")
    a(f"s_lshr_b32 s{sT0}, s{sT0}, 16")
    a(f"s_mul_i32 s{sT1}, s{sT0}, 7")
    a(f"s_sub_u32 s{sT1}, s{sFl}, s{sT1}")
    a(f"s_mul_i32 s{sT0}, s{sT0}, {16*896}")
    a(f"s_lshl_b32 s{sT1}, s{sT1}, 7")
    a(f"s_add_u32 s{sT0}, s{sT0}, s{sT1}")
    srd(a, sB, 10, D_BYTES)
    srd(a, sE, 12, D_BYTES)
    for i in range(4):
        r = FX + i * 4
        a(f"buffer_load_dwordx2 v[{r}:{r+1}], v{vT}, s[{sB}:{sB+3}], s{sT0} offen offset:{i*32}")
        a(f"buffer_load_dwordx2 v[{r+2}:{r+3}], v{vT}, s[{sE}:{sE+3}], s{sT0} offen offset:{i*32}")
    a(f"s_lshl_b32 s{sT1}, s{sRB}, 7")
    a(f"s_and_b32 s{sT2}, s{sFl}, 7")
    a(f"s_lshl_b32 s{sT2}, s{sT2}, 2")
    a(f"s_add_u32 s{sT1}, s{sT1}, s{sT2}")
    a(f"s_add_u32 s{sT1}, s{sT1}, {LFOFF}")
    a(f"v_mov_b32 v{vT+2}, 0")
    a("s_mov_b64 exec, 1")
    a(f"buffer_store_dword v{vT+2}, v{vT+2}, s[{sWS}:{sWS+3}], s{sT1} offen")
    if OPT("LFPRE", 1):
        a(f"buffer_load_dword v{vT+3}, v{vT+2}, s[{sWS}:{sWS+3}], s{sT1} offen sc1")
    a("s_mov_b64 exec, -1")
    a(f"s_getreg_b32 s{sByte}, hwreg(HW_REG_XCC_ID)")
    a(f"s_and_b32 s{sByte}, s{sByte}, 7")
    a(f"s_lshr_b32 s{sT1}, s{sRB}, 3")
    a(f"s_lshl_b32 s{sT1}, s{sT1}, 6")
    a(f"s_and_b32 s{sT2}, s{sRB}, 7")
    a(f"s_lshl_b32 s{sT2}, s{sT2}, 2")
    a(f"s_add_u32 s{sT1}, s{sT1}, s{sT2}")
    a(f"s_add_u32 s{sT1}, s{sT1}, 32")
    a(f"s_add_u32 s{sCl}, s56, s{sT1}")
    a(f"s_addc_u32 s{sCl+1}, s57, 0")
    a(f"s_cmp_ge_u32 s{sFl}, 196")
    a("s_cbranch_scc1 L_aux_nod")
    a(f"s_lshl_b32 s{sT0}, s{sFl}, 12")
    a(f"s_add_u32 s{sT0}, s{sT0}, {DOFF}")
    a("s_waitcnt vmcnt(0)")
    for i in range(4):
        r = FX + i * 4
        a(f"v_xor_b32 v{r+2}, 0x80008000, v{r+2}")
        a(f"v_xor_b32 v{r+3}, 0x80008000, v{r+3}")
        a(f"buffer_store_dwordx4 v[{r}:{r+3}], v{vL16}, s[{sWS}:{sWS+3}], s{sT0} offen offset:{i*1024} sc1")
    a.label("L_aux_nod")
    for k in range(NB1):
        a("s_barrier")
    a("s_waitcnt vmcnt(0)")
    a(f"s_and_b32 s{sT0}, s{sFl}, 7")
    a(f"s_mul_i32 s{sT0}, s{sT0}, 3")
    a(f"s_lshl_b32 s{sT0}, s{sByte}, s{sT0}")
    a(f"s_add_u32 s{sT0}, s{sT0}, 0x1000000")
    a(f"s_atomic_add s{sT0}, s[{sCl}:{sCl+1}], 0")
    a(f"s_cmp_ge_u32 s{sFl}, 196")
    a("s_cbranch_scc1 L_aux_nod2")
    a(f"s_mul_i32 s{sT1}, s{sFl}, 1338")
    a(f"s_lshr_b32 s{sT1}, s{sT1}, 16")
    a(f"s_lshl_b32 s{sT1}, s{sT1}, 6")
    a(f"s_add_u32 s{sDc}, s56, s{sT1}")
    a(f"s_addc_u32 s{sDc+1}, s57, 0")
    a(f"s_mov_b32 s{sT1}, 1")
    a(f"s_atomic_add s{sT1}, s[{sDc}:{sDc+1}], 0")
    a.label("L_aux_nod2")
    for k in range(NB1, NB2):
        a("s_barrier")
    a("s_waitcnt lgkmcnt(0)")
    a(f"s_lshl_b32 s{sT1}, s{sJ}, 6")
    a(f"s_add_u32 s{sDc}, s56, s{sT1}")
    a(f"s_addc_u32 s{sDc+1}, s57, 0")
    a(f"s_mov_b32 s{sT2}, 0")
    a(f"s_mov_b32 s{sT3}, 0")
    a(f"s_atomic_add s{sT2}, s[{sCl}:{sCl+1}], 0 glc")
    a(f"s_atomic_add s{sT3}, s[{sDc}:{sDc+1}], 0 glc")
    for k in range(NBG):
        a("s_barrier")
    a.label("L_poll1")
    a("s_waitcnt lgkmcnt(0)")
    a(f"s_add_u32 s{sIt}, s{sIt}, 1")
    a(f"s_lshr_b32 s{sT0}, s{sT2}, 24")
    a(f"s_and_b32 s{sT0}, s{sT0}, 15")
    a(f"s_lshl_b32 s{sT0}, s{sT0}, 8")
    a(f"s_add_u32 s{sT0}, s{sT0}, s{sT3}")
    a(f"s_cmp_eq_u32 s{sT0}, {8*256+49}")
    a("s_cbranch_scc1 L_poll1_done")
    a(f"s_cmp_ge_u32 s{sIt}, {SPIN}")
    a("s_cbranch_scc1 L_poll1_done")
    a("s_sleep 16")
    a(f"s_mov_b32 s{sT2}, 0")
    a(f"s_mov_b32 s{sT3}, 0")
    a(f"s_atomic_add s{sT2}, s[{sCl}:{sCl+1}], 0 glc")
    a(f"s_atomic_add s{sT3}, s[{sDc}:{sDc+1}], 0 glc")
    a("s_branch L_poll1")
    a.label("L_poll1_done")
    a(f"s_mul_i32 s{sT0}, s{sByte}, 0x249249")
    a(f"s_and_b32 s{sT2}, s{sT2}, 0xffffff")
    a(f"s_cmp_eq_u32 s{sT2}, s{sT0}")
    a(f"s_cselect_b32 s{sLoc}, {0 if OPT('FORCESLOW') else 1}, 0")
    a("s_branch L_aux_pre")
    a.label("L_aux7")
    if OPT("TLBPF", 0):
        srd(a, sA, 14, X_BYTES)
        a(f"v_lshlrev_b32 v{vCb}, 17, v{vLane}")
        a(f"buffer_load_dword v{vCb+1}, v{vCb}, s[{sWS}:{sWS+3}], 0 offen")
        a(f"s_mul_i32 s{sT0}, s{sRB}, {64*896}")
        a(f"v_lshlrev_b32 v{vCb}, 10, v{vLane}")
        a(f"buffer_load_dword v{vCb+1}, v{vCb}, s[{sA}:{sA+3}], s{sT0} offen")
    if OPT("CODEPF", 2) == 2:
        a("s_waitcnt vmcnt(0)")
    if OPT("CODEPF", 2) == 1:
        a("s_getpc_b64 s[60:61]")
        a.label("L_pc")
        a(f"s_sub_u32 s60, s60, L_pc-{NAME}")
        a("s_subb_u32 s61, s61, 0")
        a(f"v_lshlrev_b32 v{vT}, 7, v{vLane}")
        a(f"v_min_u32 v{vT}, L_end-{NAME}-4, v{vT}")
        a(f"global_load_dword v{vT+2}, v{vT}, s[60:61]")
        a("s_waitcnt vmcnt(0)")
    for k in range(NB2 + NBG):
        a("s_barrier")
        if k + 1 == OPT("PQPF7", 0):
            a(f"s_lshl_b32 s{sT0}, s{sH}, 7")
            a(f"s_lshl_b32 s{sT1}, s{sRB}, 2")
            a(f"s_add_u32 s{sT0}, s{sT0}, s{sT1}")
            a(f"s_mul_i32 s{sT0}, s{sT0}, 28")
            a(f"s_mul_i32 s{sT1}, s{sJ}, 7")
            a(f"s_add_u32 s{sT0}, s{sT0}, s{sT1}")
            a(f"s_lshl_b32 s{sT0}, s{sT0}, 10")
            a(f"v_lshlrev_b32 v{vCb}, 7, v{vLane}")
            a(f"v_min_u32 v{vCb}, {7168-128}, v{vCb}")
            for t in range(4):
                a(f"buffer_load_dword v{vCb+1}, v{vCb}, s[{sWS}:{sWS+3}], s{sT0} offen sc1")
                a(f"s_add_u32 s{sT0}, s{sT0}, {28*1024}")
    a.label("L_aux_pre")
    p2_offsets()
    dload_setup()
    nb = NB2 + NBG
    assert nb <= 13
    if OPT("DPF", 0):
        a(f"s_lshr_b32 s{sT0}, s2, 5")
        a(f"s_mul_i32 s{sT0}, s{sT0}, 25088")
        a(f"s_mul_i32 s{sT1}, s{sJ}, 200704")
        a(f"s_add_u32 s{sT0}, s{sT0}, s{sT1}")
        a(f"s_add_u32 s{sT0}, s{sT0}, {DOFF}")
        a(f"s_sub_u32 s{sT1}, s{sW}, 6")
        a(f"s_lshl_b32 s{sT1}, s{sT1}, 14")
        a(f"v_lshlrev_b32 v{vCb}, 7, v{vLane}")
        a(f"v_add_u32 v{vCb}, s{sT1}, v{vCb}")
        a(f"v_add_u32 v{vCb+1}, 8192, v{vCb}")
        a(f"v_min_u32 v{vCb+1}, {25088-128}, v{vCb+1}")
        a(f"buffer_load_dword v{vXb}, v{vCb}, s[{sWS}:{sWS+3}], s{sT0} offen sc1")
        a(f"buffer_load_dword v{vXb}, v{vCb+1}, s[{sWS}:{sWS+3}], s{sT0} offen sc1")
        for k in range(OPT("DPFGAP", 2)):
            a("s_barrier")
            nb += 1
    DS2 = [int(c) for c in os.environ.get("DSCHED2", os.environ.get("DSCHED", "022"))]
    nd = 0
    while nb < 16:
        a("s_barrier")
        nb += 1
        if nb - 1 == OPT("PQPF", 0):
            a(f"s_lshl_b32 s{sT0}, s{sH}, 7")
            a(f"s_lshl_b32 s{sT1}, s{sRB}, 2")
            a(f"s_add_u32 s{sT0}, s{sT0}, s{sT1}")
            a(f"s_sub_u32 s{sT1}, s{sW}, 6")
            a(f"s_lshl_b32 s{sT1}, s{sT1}, 1")
            a(f"s_add_u32 s{sT0}, s{sT0}, s{sT1}")
            a(f"s_mul_i32 s{sT0}, s{sT0}, 28")
            a(f"s_mul_i32 s{sT1}, s{sJ}, 7")
            a(f"s_add_u32 s{sT0}, s{sT0}, s{sT1}")
            a(f"s_lshl_b32 s{sT0}, s{sT0}, 10")
            a(f"s_add_u32 s{sT1}, s{sT0}, {28*1024}")
            a(f"v_lshlrev_b32 v{vCb}, 7, v{vLane}")
            a(f"v_min_u32 v{vCb}, {7168-128}, v{vCb}")
            a(f"buffer_load_dword v{vCb+1}, v{vCb}, s[{sWS}:{sWS+3}], s{sT0} offen sc1")
            a(f"buffer_load_dword v{vCb+1}, v{vCb}, s[{sWS}:{sWS+3}], s{sT1} offen sc1")
        if nb - 1 == OPT("CPF2", 0):
            a(f"s_getpc_b64 s[{sA}:{sA+1}]")
            a.label("L_pc2")
            a(f"s_sub_u32 s{sA}, s{sA}, L_pc2-{NAME}")
            a(f"s_subb_u32 s{sA+1}, s{sA+1}, 0")
            a(f"v_lshlrev_b32 v{vCb}, 7, v{vLane}")
            a(f"v_min_u32 v{vCb}, L_end-{NAME}-4, v{vCb}")
            a(f"global_load_dword v{vCb+1}, v{vCb}, s[{sA}:{sA+1}]")
        k = nb - 1 - (16 - len(DS2))
        if k >= 0:
            for q in range(nd, nd + DS2[k]):
                for i in dloads(q):
                    a(i)
            nd += DS2[k]
    assert nd == 4
    a("s_branch L_p2")
    a.label("L_done")
    a("s_endpgm")
    a.label("L_end")
    return name, 256, 0, NSLOT * SLOT, 512


def main():
    a = Asm()
    a.raw('.amdgcn_target "amdgcn-amd-amdhsa--gfx950"')
    a.raw(".text")
    name, nv, na, lds, blk = gen(a)
    out = HEADER
    out += f"; @launch grid=(256,1,1) block=({blk},1,1) lds={lds}\n"
    txt = a.text()
    if OPT("REORD", 1):
        import re
        parts = re.split(r"^;;BLOCK (\w+)\n", txt, flags=re.M)
        blk = {"head": parts[0]}
        for k in range(1, len(parts), 2):
            blk[parts[k]] = parts[k + 1]
        if OPT("REORD", 1) == 2:
            rest, tail = blk["rest"].split("L_done:\n")
            txt = blk["head"] + blk["ld"] + rest + blk["comp"] + "L_done:\n" + tail
        else:
            txt = blk["head"] + blk["ld"] + blk["comp"] + blk["rest"]
    out += txt
    out += '.section .rodata,"a"\n'
    out += G.descriptor(name, nv, na)
    path = sys.argv[1] if len(sys.argv) > 1 else "standalone__spectral_fnet__prompt.s"
    open(path, "w").write(out)


if __name__ == "__main__":
    main()
```

```python
import sys, os, math
import gen as G
from gen import OPT, Asm, Stamps, srd, interleave, flat, X_BYTES, C_BYTES, D_BYTES, DOFF, STAMP_OFF, HEADER

NSLOT, SLOT, XOFF, NSTAGE = 5, 30720, 16384, 16
ROT = OPT("ROT", 6)
WS = OPT("WS", 8)
PDEPTH = OPT('PDEPTH', 3)
SPIN = 1 << 14
NAME = "standalone__spectral_fnet__prompt_kernel"
DF_END = DOFF + 784 * 1024
LFOFF = DF_END
WS_BYTES = LFOFF + 32 * 128
LDS_DEC = NSLOT * SLOT
LDS_XCH = 114688
NB1 = OPT("NB1", 2)
NB2 = OPT("NB2", 10)
NBG = OPT("NBG", 2)


def gen(a):
    name = NAME
    a.raw(f".globl {name}")
    a.raw(".p2align 8")
    a.raw(f".type {name},@function")
    a.label(name)
    sA, sB, sWS, sE = 16, 20, 24, 28
    sCl, sDc = 32, 34
    sW = 36
    sT0, sT1, sT2, sT3 = 37, 38, 39, 40
    sH, sRB, sJ = 41, 42, 43
    sRot, sBase, sOff, sOff2, sSlot, sIt = 46, 47, 48, 49, 50, 51
    sFl, sLoc, sByte = 52, 53, 54
    sD0, sD1 = 60, 61
    sPQ = 62
    sPL = 63

    vLane = 1
    vT = 2
    vCb0 = 6
    vXb0 = 8
    vCb = 10
    vXb = 12
    vL16 = 14
    vO = 16
    FX, FY = 16, 52
    ACC = 88
    DFR = 144
    ACC2 = 88
    PB = 16

    def cfrag(b, n):
        return b + n * 4

    def xfrag(b, m):
        return b + 8 + m * 4

    def acc(m, n):
        return ACC + (m * 2 + n) * 4

    def df(ml, e):
        return DFR + (ml * 2 + e) * 4

    st = Stamps(a, 64, 0)
    a("s_cmp_ge_u32 s2, 256")
    a("s_cbranch_scc1 L_done")
    st()
    a("s_load_dwordx8 s[4:11], s[0:1], 0")
    a("s_load_dwordx4 s[12:15], s[0:1], 32")
    a("s_load_dwordx4 s[56:59], s[0:1], 48")
    a(f"v_lshrrev_b32 v{vT}, 6, v0")
    a(f"v_and_b32 v{vLane}, 63, v0")
    a(f"v_readfirstlane_b32 s{sW}, v{vT}")
    if OPT("CODEPF", 2) == 2:
        a(f"s_cmp_lg_u32 s{sW}, 7")
        a("s_cbranch_scc1 L_nopf")
        a("s_getpc_b64 s[60:61]")
        a.label("L_pc")
        a(f"v_lshlrev_b32 v{vT}, 7, v{vLane}")
        a(f"v_min_u32 v{vT}, L_end-L_pc-4, v{vT}")
        a(f"global_load_dword v{vT+2}, v{vT}, s[60:61]")
        a.label("L_nopf")
    a(f"s_and_b32 s{sT0}, s2, 7")
    a(f"s_lshr_b32 s{sT1}, s2, 3")
    a(f"s_and_b32 s{sJ}, s{sT1}, 3")
    if OPT("MAPA"):
        a(f"s_and_b32 s{sH}, s{sT0}, 1")
        a(f"s_lshr_b32 s{sRB}, s{sT0}, 1")
        a(f"s_lshr_b32 s{sRot}, s{sT1}, 2")
        a(f"s_lshl_b32 s{sT2}, s{sRot}, 2")
        a(f"s_add_u32 s{sRB}, s{sRB}, s{sT2}")
    else:
        a(f"s_lshr_b32 s{sH}, s{sT1}, 2")
        a(f"s_and_b32 s{sH}, s{sH}, 1")
        a(f"s_lshr_b32 s{sRot}, s{sT1}, 3")
        a(f"s_lshl_b32 s{sRB}, s{sRot}, 3")
        a(f"s_add_u32 s{sRB}, s{sRB}, s{sT0}")
    if ROT == 2:
        a(f"s_add_u32 s{sRot}, s{sRot}, s{sJ}")
        a(f"s_lshl_b32 s{sRot}, s{sRot}, 2")
    elif ROT == 5:
        a(f"s_lshl_b32 s{sRot}, s{sRot}, 2")
        a(f"s_lshr_b32 s{sT2}, s{sJ}, 1")
        a(f"s_lshl_b32 s{sT2}, s{sT2}, 3")
        a(f"s_add_u32 s{sRot}, s{sRot}, s{sT2}")
    elif ROT == 1:
        a(f"s_lshl_b32 s{sRot}, s{sRot}, 2")
    elif ROT == 6:
        a(f"s_mul_i32 s{sRot}, s{sRot}, {OPT('XO', 4)}")
        a(f"s_lshr_b32 s{sT2}, s{sJ}, {OPT('JS', 1)}")
        a(f"s_mul_i32 s{sT2}, s{sT2}, {OPT('JO', WS // 2)}")
        a(f"s_add_u32 s{sRot}, s{sRot}, s{sT2}")
        a(f"s_and_b32 s{sRot}, s{sRot}, {WS-1}")
    elif ROT == 7:
        a(f"s_lshr_b32 s{sRot}, s{sRot}, 1")
        a(f"s_lshr_b32 s{sT2}, s{sJ}, 1")
        a(f"s_xor_b32 s{sRot}, s{sRot}, s{sT2}")
        a(f"s_lshl_b32 s{sRot}, s{sRot}, 3")
    else:
        a(f"s_mov_b32 s{sRot}, 0")
    a(f"s_and_b32 s{sRot}, s{sRot}, 15")
    a(f"v_lshlrev_b32 v{vL16}, 4, v{vLane}")
    if OPT("REORD", 1):
        a(f"s_cmp_eq_u32 s{sW}, 5")
        a("s_cbranch_scc1 L_ldx")
        a(f"s_cmp_ge_u32 s{sW}, 6")
        a("s_cbranch_scc1 L_aux")
        a(f"s_cmp_lt_u32 s{sW}, 4")
        a("s_cbranch_scc1 L_comp")
    else:
        a(f"s_cmp_eq_u32 s{sW}, 4")
        a("s_cbranch_scc1 L_ldc")
        a(f"s_cmp_eq_u32 s{sW}, 5")
        a("s_cbranch_scc1 L_ldx")
        a(f"s_cmp_ge_u32 s{sW}, 6")
        a("s_cbranch_scc1 L_aux")

    def p2_offsets():
        a(f"s_and_b32 s{sT0}, s{sW}, 1")
        a(f"s_mul_i32 s{sT0}, s{sT0}, 14")
        a(f"s_lshr_b32 s{sT1}, s{sW}, 1")
        a(f"s_mul_i32 s{sT2}, s{sT1}, 56")
        a(f"s_add_u32 s{sT0}, s{sT0}, s{sT2}")
        a(f"s_mul_i32 s{sT2}, s{sJ}, 196")
        a(f"s_add_u32 s{sT0}, s{sT0}, s{sT2}")
        a(f"s_lshl_b32 s{sT0}, s{sT0}, 10")
        a(f"s_add_u32 s{sD0}, s{sT0}, {DOFF}")
        a(f"s_add_u32 s{sD1}, s{sT0}, {DOFF + 28*1024}")
        a(f"s_cmp_eq_u32 s{sT1}, 3")
        a(f"s_cselect_b32 s{sD1}, 0x7f000000, s{sD1}")
        a(f"s_and_b32 s{sT0}, s{sW}, 3")
        a(f"s_lshr_b32 s{sT1}, s{sW}, 2")
        a(f"s_mul_i32 s{sT1}, s{sT1}, 14")
        a(f"s_mul_i32 s{sPL}, s{sT0}, 28")
        a(f"s_add_u32 s{sPL}, s{sPL}, s{sT1}")
        a(f"s_lshl_b32 s{sPL}, s{sPL}, 10")
        a(f"s_lshr_b32 s{sT2}, s{sT0}, 1")
        a(f"s_lshl_b32 s{sT2}, s{sT2}, 7")
        a(f"s_and_b32 s{sT0}, s{sT0}, 1")
        a(f"s_add_u32 s{sT0}, s{sT0}, s{sT2}")
        a(f"s_lshl_b32 s{sT2}, s{sRB}, 2")
        a(f"s_add_u32 s{sT0}, s{sT0}, s{sT2}")
        a(f"s_lshl_b32 s{sT2}, s{sH}, 1")
        a(f"s_add_u32 s{sT0}, s{sT0}, s{sT2}")
        a(f"s_mul_i32 s{sT0}, s{sT0}, 28")
        a(f"s_add_u32 s{sT0}, s{sT0}, s{sT1}")
        a(f"s_lshl_b32 s{sPQ}, s{sT0}, 10")
        if OPT("NOPQ"):
            a(f"s_mov_b32 s{sPQ}, 0x7f000000")

    def dloads(q):
        ins = []
        idx = list(range(q * 7, q * 7 + 7))
        for t in idx:
            ml, e = t >> 1, t & 1
            r = df(ml, e)
            grp, off = ml // 4, (ml % 4) * 1024
            ins.append((grp, f"buffer_load_dwordx4 v[{r}:{r+3}], v{{V}}, s[{sWS}:{sWS+3}], s{sD0+e} offen offset:{off} sc1"))
        out = []
        for grp, i in ins:
            out.append(i.replace("{V}", str(vT + grp)))
        return out

    def dload_setup():
        a(f"v_mov_b32 v{vT}, v{vL16}")
        for g_ in range(1, 4):
            a(f"v_add_u32 v{vT+g_}, {4096*g_}, v{vL16}")

    a.label("L_comp")
    a(f"v_and_b32 v{vT}, 15, v{vLane}")
    a(f"v_lshrrev_b32 v{vT+1}, 4, v{vLane}")
    a(f"v_lshrrev_b32 v{vT+3}, 1, v{vT}")
    a(f"v_xor_b32 v{vT+2}, v{vT+1}, v{vT+3}")
    a(f"v_lshlrev_b32 v{vT+2}, 4, v{vT+2}")
    a(f"v_lshl_add_u32 v{vCb0}, v{vT}, 7, v{vT+2}")
    a(f"s_lshl_b32 s{sT0}, s{sW}, 11")
    a(f"v_add_u32 v{vCb0}, s{sT0}, v{vCb0}")
    a(f"v_xor_b32 v{vCb0+1}, 64, v{vCb0}")
    a(f"v_lshlrev_b32 v{vT+2}, 3, v{vT+1}")
    a(f"v_lshrrev_b32 v{vT+3}, 2, v{vT}")
    a(f"v_add_u32 v{vT+2}, v{vT+2}, v{vT+3}")
    a(f"v_and_b32 v{vT+3}, 1, v{vT+1}")
    a(f"v_lshlrev_b32 v{vT+3}, 2, v{vT+3}")
    a(f"v_add_u32 v{vXb0}, v{vT+2}, v{vT+3}")
    a(f"v_xor_b32 v{vT+3}, 4, v{vT+3}")
    a(f"v_add_u32 v{vXb0+1}, v{vT+2}, v{vT+3}")
    a(f"v_and_b32 v{vT}, 3, v{vT}")
    a(f"v_lshlrev_b32 v{vT}, 3, v{vT}")
    a(f"v_add_u32 v{vT}, {XOFF}, v{vT}")
    a(f"v_mov_b32 v{vT+1}, 224")
    a(f"v_mad_u32_u24 v{vXb0}, v{vXb0}, v{vT+1}, v{vT}")
    a(f"v_mad_u32_u24 v{vXb0+1}, v{vXb0+1}, v{vT+1}, v{vT}")
    for r in range(36 + 56):
        a(f"v_mov_b32 v{FY+r}, 0")
    for r in range(2):
        a(f"v_mov_b32 v{vCb+r}, v{vCb0+r}")
        a(f"v_mov_b32 v{vXb+r}, v{vXb0+r}")
    a(f"v_add_u32 v{vL16+1}, 4096, v{vL16}")
    a(f"s_lshl_b32 s{sOff}, s{sH}, 7")
    a(f"s_lshl_b32 s{sT1}, s{sRB}, 2")
    a(f"s_add_u32 s{sOff}, s{sOff}, s{sT1}")
    a(f"s_add_u32 s{sOff}, s{sOff}, s{sW}")
    a(f"s_mul_i32 s{sOff}, s{sOff}, 28")
    a(f"s_mul_i32 s{sT1}, s{sJ}, 7")
    a(f"s_add_u32 s{sOff}, s{sOff}, s{sT1}")
    a(f"s_lshl_b32 s{sOff}, s{sOff}, 10")
    p2_offsets()
    dload_setup()
    a("s_waitcnt lgkmcnt(0)")
    srd(a, sWS, 58, WS_BYTES)

    def frag_reads(b, kk):
        ins = []

        def xr(m):
            return [f"ds_read_b64_tr_b16 v[{xfrag(b,m)}:{xfrag(b,m)+1}], v{vXb} offset:{m*32+kk*7168}",
                    f"ds_read_b64_tr_b16 v[{xfrag(b,m)+2}:{xfrag(b,m)+3}], v{vXb+1} offset:{m*32+kk*7168}"]
        ins += xr(0)
        for n in range(2):
            ins.append(f"ds_read_b128 v[{cfrag(b,n)}:{cfrag(b,n)+3}], v{vCb+kk} offset:{n*8192}")
        for m in range(1, 7):
            ins += xr(m)
        return ins

    def mfmas(b):
        return [f"v_mfma_f32_16x16x32_bf16 v[{acc(m,n)}:{acc(m,n)+3}], v[{xfrag(b,m)}:{xfrag(b,m)+3}], "
                f"v[{cfrag(b,n)}:{cfrag(b,n)+3}], v[{acc(m,n)}:{acc(m,n)+3}]"
                for m in range(7) for n in range(2)]

    a(f"s_mov_b32 s{sSlot}, 0")
    a(f"s_mov_b32 s{sIt}, 0")
    if OPT("TRACE"):
        a("s_mov_b32 s98, 5")
    DIT = OPT("DIT", 0)
    DQ0 = OPT("DQ0", 4)
    a.label("L_loop")
    a("s_waitcnt lgkmcnt(0)")
    a("s_barrier")
    if DIT:
        a(f"s_cmp_eq_u32 s{sIt}, {DIT}")
        a("s_cbranch_scc1 L_dl")
        a.label("L_dl_back")
    if OPT("TRACE"):
        a("s_memtime s[96:97]")
        a("s_waitcnt lgkmcnt(0)")
        a(f"s_mov_b32 m0, s98")
        a("s_add_u32 s98, s98, 1")
        a(f"v_writelane_b32 v0, s96, m0")
    for i in interleave(mfmas(FY), frag_reads(FX, 0) + [[f"s_add_u32 s{sSlot}, s{sSlot}, {SLOT}",
                                                          f"s_cmp_eq_u32 s{sSlot}, {SLOT*NSLOT}",
                                                          f"s_cselect_b32 s{sSlot}, 0, s{sSlot}"]], per=2):
        a(i)
    a("s_waitcnt lgkmcnt(0)")
    nxt = [f"v_add_u32 v{vCb+r}, s{sSlot}, v{vCb0+r}" for r in range(2)] + \
          [f"v_add_u32 v{vXb+r}, s{sSlot}, v{vXb0+r}" for r in range(2)] + \
          [[f"s_add_u32 s{sIt}, s{sIt}, 1", f"s_cmp_lt_u32 s{sIt}, {NSTAGE}"]]
    for i in interleave(mfmas(FX), frag_reads(FY, 1) + nxt, per=2):
        a(i)
    a("s_cbranch_scc1 L_loop")
    a("s_waitcnt lgkmcnt(0)")
    for i in mfmas(FY):
        a(i)
    if not OPT("FINE"):
        st()
    a("s_nop 4")
    for m in range(7):
        p, q = acc(m, 0), acc(m, 1)
        o = FX + m * 4
        a(f"v_cvt_pk_bf16_f32 v{o}, v{p}, v{p+1}")
        a(f"v_cvt_pk_bf16_f32 v{o+1}, v{p+2}, v{p+3}")
        a(f"v_cvt_pk_bf16_f32 v{o+2}, v{q}, v{q+1}")
        a(f"v_cvt_pk_bf16_f32 v{o+3}, v{q+2}, v{q+3}")
        a(f"buffer_store_dwordx4 v[{o}:{o+3}], v{vL16 + (m // 4)}, s[{sWS}:{sWS+3}], s{sOff} offen offset:{(m%4)*1024} sc1")
    a.label("L_st_done")
    if DIT:
        a("s_waitcnt vmcnt(0)")
        a("s_branch L_p2")
        a.label("L_dl")
        for q in range(4):
            for i in dloads(q):
                a(i)
        a("s_branch L_dl_back")
    elif OPT("DLATE", 1):
        DPRE = OPT("DPRE", 2)
        for q in range(DPRE):
            for i in dloads(q):
                a(i)
        a(f"s_waitcnt vmcnt({7*DPRE})")
        a("s_barrier")
        if OPT("P2", 1):
            a("s_barrier")
        for q in range(DPRE, DQ0):
            for i in dloads(q):
                a(i)
        a("s_branch L_p2_after")
    else:
        for q in range(4):
            for i in dloads(q):
                a(i)
        a("s_waitcnt vmcnt(28)")

    a.label("L_p2")
    a("s_barrier")
    if OPT("P2", 1):
        a(f"s_cmp_eq_u32 s{sW}, 6")
        a("s_cbranch_scc1 L_p2_after")
        a("s_barrier")
    a.label("L_p2_after")
    if not OPT("FINE"):
        st()
    for r in range(16):
        a(f"v_mov_b32 v{ACC2+r}, 0")
    a(f"s_cmp_eq_u32 s{sW}, 6")
    a("s_cbranch_scc0 L_p2_wait")
    a(f"v_mov_b32 v{vT}, 0")
    a(f"s_mov_b32 s{sIt}, 0")
    a(f"s_cmp_eq_u32 s{sLoc}, 1")
    a("s_cbranch_scc1 L_pub_loc")
    a(f"s_mov_b32 s{sT0}, 0x10000000")
    a(f"s_atomic_add s{sT0}, s[{sCl}:{sCl+1}], 0")
    if OPT("P2", 1):
        a("s_barrier")
    a.label("L_poll2")
    a(f"s_mov_b32 s{sT2}, 0")
    a(f"s_atomic_add s{sT2}, s[{sCl}:{sCl+1}], 0 glc")
    a("s_waitcnt lgkmcnt(0)")
    a(f"s_add_u32 s{sIt}, s{sIt}, 1")
    a(f"s_lshr_b32 s{sT2}, s{sT2}, 28")
    a(f"s_cmp_eq_u32 s{sT2}, 8")
    a("s_cbranch_scc1 L_poll_done")
    a("s_sleep 16")
    a(f"s_cmp_lt_u32 s{sIt}, {SPIN}")
    a("s_cbranch_scc1 L_poll2")
    a("s_branch L_poll_done")
    a.label("L_pub_loc")
    a(f"s_lshl_b32 s{sT1}, s{sRB}, 7")
    a(f"s_add_u32 s{sT1}, s{sT1}, {LFOFF}")
    a(f"s_and_b32 s{sT0}, s{sFl}, 7")
    a(f"s_lshl_b32 s{sT0}, s{sT0}, 2")
    a(f"s_add_u32 s{sT0}, s{sT0}, s{sT1}")
    a(f"v_mov_b32 v{vT+1}, 1")
    a(f"v_lshlrev_b32 v{vT+3}, 2, v{vLane}")
    a("s_mov_b64 exec, 1")
    a(f"buffer_store_dword v{vT+1}, v{vT}, s[{sWS}:{sWS+3}], s{sT0} offen")
    a("s_mov_b64 exec, 0xff")
    if OPT("P2", 1):
        a(f"buffer_load_dword v{vT+2}, v{vT+3}, s[{sWS}:{sWS+3}], s{sT1} offen sc1")
        a("s_barrier")
        a("s_branch L_poll3b")
    a.label("L_poll3")
    a(f"buffer_load_dword v{vT+2}, v{vT+3}, s[{sWS}:{sWS+3}], s{sT1} offen sc1")
    a.label("L_poll3b")
    a("s_waitcnt vmcnt(0)")
    a(f"v_cmp_ne_u32 vcc, 1, v{vT+2}")
    a(f"s_add_u32 s{sIt}, s{sIt}, 1")
    a("s_nop 3")
    a("s_cmp_eq_u64 vcc, 0")
    a("s_cbranch_scc1 L_poll_done")
    a(f"s_cmp_lt_u32 s{sIt}, {SPIN}")
    a("s_cbranch_scc1 L_poll3")
    a.label("L_poll_done")
    a("s_mov_b64 exec, -1")
    a.label("L_p2_wait")
    a(f"s_and_b32 s{sT0}, s{sW}, 1")
    a(f"s_mul_i32 s{sT0}, s{sT0}, 14336")
    a(f"v_add_u32 v{vCb}, s{sT0}, v{vL16}")
    a(f"v_add_u32 v{vCb+1}, 57344, v{vCb}")
    if OPT("WDRAIN"):
        a("s_waitcnt vmcnt(0)")
    a("s_barrier")
    st()
    RB_ = [int(x) for x in os.environ.get("RNDS", "0,2,5,8,11,14").split(",")]
    AHEAD = OPT("AHEAD", 2)

    def pqdma(rnd):
        if rnd >= len(RB_) - 1:
            return
        lo, hi = RB_[rnd], RB_[rnd + 1]
        for i in range(lo, hi):
            if (i - lo) % 4 == 0:
                a(f"s_add_u32 m0, s{sPL}, {i*1024}")
                a(f"s_add_u32 s{sT1}, s{sPQ}, {i*1024}")
            a(f"buffer_load_dwordx4 v{vL16}, s[{sWS}:{sWS+3}], s{sT1} offen offset:{((i-lo)%4)*1024} {'' if OPT('PQPLAIN') else 'sc1 '}lds")
    lab = [0]
    seq = []
    dq = [DQ0]

    def dnext():
        if dq[0] >= 4:
            return
        lab[0] += 1
        a(f"s_cmp_ge_u32 s{sW}, 4")
        a(f"s_cbranch_scc1 L_dq{lab[0]}")
        for i in dloads(dq[0]):
            a(i)
        a.label(f"L_dq{lab[0]}")
        seq.append(('q', dq[0], 7))
        dq[0] += 1

    def pq_issue(rnd):
        if rnd < len(RB_) - 1:
            pqdma(rnd)
            seq.append(('r', rnd, RB_[rnd + 1] - RB_[rnd]))

    def wait_round(rnd):
        hi = RB_[rnd + 1]
        qneed = (2 * hi - 1) // 7
        last = -1
        for k, (t, i, n) in enumerate(seq):
            if (t == 'r' and i <= rnd) or (t == 'q' and i <= qneed):
                last = k
        assert dq[0] > qneed, "D quarter not issued yet"
        cw = sum(n for t, i, n in seq[last + 1:])
        lastr = max(k for k, (t, i, n) in enumerate(seq) if t == 'r' and i <= rnd)
        hw = sum(n for t, i, n in seq[lastr + 1:] if t == 'r')
        if cw == hw:
            a(f"s_waitcnt vmcnt({cw})")
        else:
            lab[0] += 1
            a(f"s_cmp_ge_u32 s{sW}, 4")
            a(f"s_cbranch_scc1 L_wh{lab[0]}")
            a(f"s_waitcnt vmcnt({cw})")
            a(f"s_branch L_wd{lab[0]}")
            a.label(f"L_wh{lab[0]}")
            a(f"s_waitcnt vmcnt({hw})")
            a.label(f"L_wd{lab[0]}")

    for r_ in range(AHEAD):
        pq_issue(r_)
    dnext()

    def preads(ml):
        b = PB + (ml % 3) * 16
        return [f"ds_read_b128 v[{b+(hh*2+tl)*4}:{b+(hh*2+tl)*4+3}], v{vCb+hh} offset:{(tl*28+ml)*1024}"
                for hh in range(2) for tl in range(2)]

    def mf2(ml):
        b = PB + (ml % 3) * 16
        return [f"v_mfma_f32_16x16x32_bf16 v[{ACC2+(e*2+tl)*4}:{ACC2+(e*2+tl)*4+3}], v[{df(ml,e)}:{df(ml,e)+3}], "
                f"v[{b+(hh*2+tl)*4}:{b+(hh*2+tl)*4+3}], v[{ACC2+(e*2+tl)*4}:{ACC2+(e*2+tl)*4+3}]"
                for hh in range(2) for e in range(2) for tl in range(2)]

    for rnd in range(len(RB_) - 1):
        lo, hi = RB_[rnd], RB_[rnd + 1]
        issued = RB_[min(rnd + AHEAD, len(RB_) - 1)]
        if OPT("FINE") and rnd < 2:
            st()
        wait_round(rnd)
        a("s_barrier")
        if OPT("FINE") and rnd < 2:
            st()
            a("s_waitcnt lgkmcnt(0)")
        for i in preads(lo) + (preads(lo + 1) if lo + 1 < hi else []):
            a(i)
        pq_issue(rnd + AHEAD)
        dnext()
        for ml in range(lo, hi):
            nxt_ = preads(ml + 2) if ml + 2 < hi else []
            a(f"s_waitcnt lgkmcnt({4 if ml + 1 < hi else 0})")
            for i in interleave(mf2(ml), nxt_, per=1):
                a(i)
    st()
    a(f"s_lshl_b32 s{sT0}, s{sW}, 11")
    a(f"s_add_u32 s{sT0}, s{sT0}, {LDS_XCH}")
    a(f"s_xor_b32 s{sT1}, s{sT0}, 2048")
    a(f"v_add_u32 v{vT}, s{sT0}, v{vL16}")
    a(f"v_add_u32 v{vT+1}, s{sT1}, v{vL16}")
    srd(a, sA, 14, X_BYTES)
    a(f"v_and_b32 v{vT+2}, 15, v{vLane}")
    a(f"v_mul_u32_u24 v{vT+2}, 896, v{vT+2}")
    a(f"v_lshrrev_b32 v{vT+3}, 4, v{vLane}")
    a(f"v_lshl_add_u32 v{vT+2}, v{vT+3}, 3, v{vT+2}")
    a(f"s_lshl_b32 s{sT0}, s{sRB}, 6")
    a(f"s_lshl_b32 s{sT1}, s{sH}, 5")
    a(f"s_add_u32 s{sT0}, s{sT0}, s{sT1}")
    a(f"s_and_b32 s{sT2}, s{sW}, 1")
    a(f"s_lshl_b32 s{sT1}, s{sT2}, 4")
    a(f"s_add_u32 s{sT0}, s{sT0}, s{sT1}")
    a(f"s_mul_i32 s{sT0}, s{sT0}, 896")
    a(f"s_mul_i32 s{sT1}, s{sJ}, 224")
    a(f"s_add_u32 s{sT0}, s{sT0}, s{sT1}")
    a(f"s_lshr_b32 s{sT1}, s{sW}, 1")
    a(f"s_lshl_b32 s{sT1}, s{sT1}, 6")
    a(f"s_add_u32 s{sT0}, s{sT0}, s{sT1}")
    a(f"s_cmp_eq_u32 s{sT2}, 0")
    a("s_cbranch_scc1 L_x0")
    for e in range(2):
        for k in range(4):
            a(f"v_swap_b32 v{ACC2+(e*2)*4+k}, v{ACC2+(e*2+1)*4+k}")
    a.label("L_x0")
    for e in range(2):
        r = ACC2 + (e * 2 + 1) * 4
        a(f"ds_write_b128 v{vT}, v[{r}:{r+3}] offset:{e*1024}")
    a("s_waitcnt lgkmcnt(0)")
    a("s_barrier")
    for e in range(2):
        a(f"ds_read_b128 v[{PB+e*4}:{PB+e*4+3}], v{vT+1} offset:{e*1024}")
    for e in range(2):
        if e == 1:
            a(f"s_cmp_ge_u32 s{sW}, 6")
            a("s_cbranch_scc1 L_fin")
        a(f"s_waitcnt lgkmcnt({1-e})")
        r = ACC2 + (e * 2) * 4
        for k in range(4):
            a(f"v_add_f32 v{r+k}, v{r+k}, v{PB+e*4+k}")
        a(f"v_cvt_pk_bf16_f32 v{PB+8+e*2}, v{r}, v{r+1}")
        a(f"v_cvt_pk_bf16_f32 v{PB+9+e*2}, v{r+2}, v{r+3}")
        a(f"buffer_store_dwordx2 v[{PB+8+e*2}:{PB+9+e*2}], v{vT+2}, s[{sA}:{sA+3}], s{sT0} offen offset:{e*32} {os.environ.get('OUTPOL', '')}")
    a.label("L_fin")
    if OPT("DBGSTAMP"):
        a("s_waitcnt vmcnt(0)")
        st()
        a("s_waitcnt lgkmcnt(0)")
        a(f"s_xor_b32 s{sT0}, s2, {OPT('DW', 5)}")
        a(f"s_add_u32 s{sT0}, s{sT0}, s{sW}")
        a(f"s_lshl_b32 s{sT0}, s{sT0}, 8")
        srd(a, sA, 56, 32)
        a(f"v_mov_b32 v{vT+1}, 0")
        for i in range(1, st.n):
            a(f"s_sub_u32 s{sT1}, s{64+i*4+2}, s66")
            a(f"v_mov_b32 v{vT}, s{sT1}")
            a(f"buffer_store_dword v{vT}, v{vT+1}, s[{sA}:{sA+3}], s{sT0} offen offset:{i*4}")
    if OPT("STAMP"):
        a(f"s_cmp_ge_u32 s{sW}, 4")
        a("s_cbranch_scc1 L_done")
        a("s_waitcnt vmcnt(0)")
        st.dump(sWS, sT0, vT, sW)
    if OPT("TRACE"):
        a(f"v_writelane_b32 v0, s64, 0")
        a(f"s_lshl_b32 s{sT0}, s2, 2")
        a(f"s_add_u32 s{sT0}, s{sT0}, s{sW}")
        a(f"s_lshl_b32 s{sT0}, s{sT0}, 8")
        a(f"s_add_u32 s{sT0}, s{sT0}, {STAMP_OFF + 3 * (1 << 20)}")
        a(f"v_lshlrev_b32 v{vT}, 2, v{vLane}")
        a(f"buffer_store_dword v0, v{vT}, s[{sWS}:{sWS+3}], s{sT0} offen")
    a("s_endpgm")

    sth = Stamps(a, 64, 2)

    def loader_loop(tag, n, issue, stepbytes):
        adv = [f"s_add_u32 s{sRot}, s{sRot}, 1",
               f"s_and_b32 s{sRot}, s{sRot}, 15",
               f"s_mul_i32 s{sOff}, s{sRot}, {stepbytes}",] if ROT != 6 else [
               f"s_add_u32 s{sRot}, s{sRot}, 1",
               f"s_and_b32 s{sRot}, s{sRot}, {WS-1}",
               f"s_add_u32 s{sOff}, s{sIt}, 1",
               f"s_and_b32 s{sOff}, s{sOff}, {16-WS}",
               f"s_add_u32 s{sOff}, s{sOff}, s{sRot}",
               f"s_mul_i32 s{sOff}, s{sOff}, {stepbytes}"]
        adv += [
               f"s_add_u32 s{sOff}, s{sOff}, s{sBase}",
               f"s_add_u32 s{sSlot}, s{sSlot}, {SLOT}",
               f"s_cmp_eq_u32 s{sSlot}, {SLOT*NSLOT}",
               f"s_cselect_b32 s{sSlot}, 0, s{sSlot}"]
        a(f"s_mul_i32 s{sOff}, s{sRot}, {stepbytes}")
        a(f"s_add_u32 s{sOff}, s{sOff}, s{sBase}")
        a(f"s_mov_b32 s{sSlot}, 0")
        a(f"s_mov_b32 s{sIt}, 0")
        if OPT("LSTAMP"):
            sth.n = 1
            sth()
        if OPT("LPRIO", 0):
            a(f"s_setprio {OPT('LPRIO', 0)}")
        a.label(f"L_{tag}_loop")
        a(f"s_cmp_lt_u32 s{sIt}, {PDEPTH}")
        a(f"s_cbranch_scc1 L_{tag}_issue")
        a(f"s_waitcnt vmcnt({(PDEPTH-1)*n})")
        a("s_barrier")
        a.label(f"L_{tag}_issue")
        for i in issue():
            a(i)
        for i in adv:
            a(i)
        a(f"s_add_u32 s{sIt}, s{sIt}, 1")
        a(f"s_cmp_lt_u32 s{sIt}, {NSTAGE}")
        a(f"s_cbranch_scc1 L_{tag}_loop")
        a("s_branch L_ldtail")

    a.label("L_ldc")
    a(f"v_lshrrev_b32 v{vT}, 3, v{vLane}")
    a(f"v_lshlrev_b32 v{vT}, 12, v{vT}")
    a(f"v_and_b32 v{vT+1}, 7, v{vLane}")
    a(f"v_lshrrev_b32 v{vT+2}, 4, v{vLane}")
    a(f"v_xor_b32 v{vT+1}, v{vT+1}, v{vT+2}")
    a(f"v_lshl_add_u32 v{vO}, v{vT+1}, 4, v{vT}")
    a(f"v_xor_b32 v{vT+1}, 4, v{vT+1}")
    a(f"v_lshl_add_u32 v{vO+1}, v{vT+1}, 4, v{vT}")
    a(f"v_add_u32 v{vO+1}, {8*4096-1024}, v{vO+1}")
    a(f"v_add_u32 v{vO+2}, {16*4096-2048}, v{vO}")
    a(f"v_add_u32 v{vO+3}, {16*4096-2048}, v{vO+1}")
    a(f"s_lshl_b32 s{sBase}, s{sRB}, 18")
    a(f"s_lshl_b32 s{sT0}, s{sH}, 11")
    a(f"s_add_u32 s{sBase}, s{sBase}, s{sT0}")
    a("s_waitcnt lgkmcnt(0)")
    srd(a, sA, 6, C_BYTES)
    srd(a, sB, 8, C_BYTES)

    def issue_c():
        ins = [f"s_add_u32 s{sOff2}, s{sOff}, {32*4096}"]
        for grp in range(4):
            s_ = sA if grp < 2 else sB
            o_ = sOff if grp % 2 == 0 else sOff2
            ins.append(f"s_add_u32 m0, s{sSlot}, {grp*4096}")
            ins.append("s_nop 0")
            for q in range(4):
                ins.append(f"buffer_load_dwordx4 v{vO+q}, s[{s_}:{s_+3}], s{o_} offen offset:{q*1024} lds")
        return ins
    loader_loop("ldc", 16, issue_c, 128)

    a.label("L_ldx")
    for q in range(7):
        if q:
            a(f"v_add_u32 v{vT}, {64*q}, v{vLane}")
            src = vT
        else:
            src = vLane
        a(f"v_mul_u32_u24 v{vT+1}, 4682, v{src}")
        a(f"v_lshrrev_b32 v{vT+1}, 16, v{vT+1}")
        a(f"v_lshlrev_b32 v{vT+2}, 4, v{src}")
        a(f"v_mul_u32_u24 v{vT+3}, 224, v{vT+1}")
        a(f"v_sub_u32 v{vT+2}, v{vT+2}, v{vT+3}")
        a(f"v_lshrrev_b32 v{vT+3}, 1, v{vT+1}")
        a(f"v_and_b32 v{vT+3}, 4, v{vT+3}")
        a(f"v_xor_b32 v{vT+1}, v{vT+1}, v{vT+3}")
        a(f"v_mul_u32_u24 v{vT+1}, 896, v{vT+1}")
        a(f"v_add_u32 v{vO+q}, v{vT+2}, v{vT+1}")
        a(f"v_add_u32 v{vO+q+7}, {32*896 - 1024*((q+7)%4)}, v{vO+q}")
        if q % 4:
            a(f"v_subrev_u32 v{vO+q}, {1024*(q%4)}, v{vO+q}")
    a(f"s_mul_i32 s{sBase}, s{sH}, {1024*896}")
    a(f"s_mul_i32 s{sT0}, s{sJ}, 224")
    a(f"s_add_u32 s{sBase}, s{sBase}, s{sT0}")
    a("s_waitcnt lgkmcnt(0)")
    srd(a, sA, 4, X_BYTES)

    def issue_x():
        ins = []
        for q in range(14):
            if q % 4 == 0:
                ins.append(f"s_add_u32 m0, s{sSlot}, {XOFF + q*1024}")
                ins.append("s_nop 0")
            ins.append(f"buffer_load_dwordx4 v{vO+q}, s[{sA}:{sA+3}], s{sOff} offen offset:{(q%4)*1024} lds")
        return ins
    loader_loop("ldx", 14, issue_x, 64 * 896)

    a.label("L_ldtail")
    if OPT("LPRIO", 0):
        a("s_setprio 0")
    if OPT("LSTAMP"):
        srd(a, sWS, 58, WS_BYTES)
        a(f"s_sub_u32 s{sT3}, s{sW}, 4")
        sth.dump(sWS, sT0, vT, sT3)
    srd(a, sWS, 58, WS_BYTES)
    p2_offsets()
    dload_setup()
    DS = [int(c) for c in os.environ.get("DSCHED", "121")]
    assert sum(DS) == 4 and len(DS) == PDEPTH
    nd = 0
    for k in range(PDEPTH):
        a(f"s_waitcnt vmcnt({(PDEPTH-1-k)*14 + 7*nd})")
        a("s_barrier")
        for q in range(nd, nd + DS[k]):
            for i in dloads(q):
                a(i)
        nd += DS[k]
    a("s_branch L_p2")

    a.label("L_aux")
    a(f"s_lshl_b32 s{sFl}, s{sRB}, 3")
    a(f"s_lshl_b32 s{sT0}, s{sH}, 2")
    a(f"s_add_u32 s{sFl}, s{sFl}, s{sT0}")
    a(f"s_add_u32 s{sFl}, s{sFl}, s{sJ}")
    a(f"s_mov_b32 s{sIt}, 0")
    a("s_waitcnt lgkmcnt(0)")
    srd(a, sWS, 58, WS_BYTES)
    a(f"s_cmp_eq_u32 s{sW}, 7")
    a("s_cbranch_scc1 L_aux7")
    a(f"v_and_b32 v{vT}, 15, v{vLane}")
    a(f"v_mul_u32_u24 v{vT}, 896, v{vT}")
    a(f"v_lshrrev_b32 v{vT+1}, 4, v{vLane}")
    a(f"v_lshl_add_u32 v{vT}, v{vT+1}, 3, v{vT}")
    a(f"s_mul_i32 s{sT0}, s{sFl}, 9363")
    a(f"s_lshr_b32 s{sT0}, s{sT0}, 16")
    a(f"s_mul_i32 s{sT1}, s{sT0}, 7")
    a(f"s_sub_u32 s{sT1}, s{sFl}, s{sT1}")
    a(f"s_mul_i32 s{sT0}, s{sT0}, {16*896}")
    a(f"s_lshl_b32 s{sT1}, s{sT1}, 7")
    a(f"s_add_u32 s{sT0}, s{sT0}, s{sT1}")
    srd(a, sB, 10, D_BYTES)
    srd(a, sE, 12, D_BYTES)
    for i in range(4):
        r = FX + i * 4
        a(f"buffer_load_dwordx2 v[{r}:{r+1}], v{vT}, s[{sB}:{sB+3}], s{sT0} offen offset:{i*32}")
        a(f"buffer_load_dwordx2 v[{r+2}:{r+3}], v{vT}, s[{sE}:{sE+3}], s{sT0} offen offset:{i*32}")
    a(f"s_lshl_b32 s{sT1}, s{sRB}, 7")
    a(f"s_and_b32 s{sT2}, s{sFl}, 7")
    a(f"s_lshl_b32 s{sT2}, s{sT2}, 2")
    a(f"s_add_u32 s{sT1}, s{sT1}, s{sT2}")
    a(f"s_add_u32 s{sT1}, s{sT1}, {LFOFF}")
    a(f"v_mov_b32 v{vT+2}, 0")
    a("s_mov_b64 exec, 1")
    a(f"buffer_store_dword v{vT+2}, v{vT+2}, s[{sWS}:{sWS+3}], s{sT1} offen")
    if OPT("LFPRE", 1):
        a(f"buffer_load_dword v{vT+3}, v{vT+2}, s[{sWS}:{sWS+3}], s{sT1} offen sc1")
    a("s_mov_b64 exec, -1")
    a(f"s_getreg_b32 s{sByte}, hwreg(HW_REG_XCC_ID)")
    a(f"s_and_b32 s{sByte}, s{sByte}, 7")
    a(f"s_lshr_b32 s{sT1}, s{sRB}, 3")
    a(f"s_lshl_b32 s{sT1}, s{sT1}, 6")
    a(f"s_and_b32 s{sT2}, s{sRB}, 7")
    a(f"s_lshl_b32 s{sT2}, s{sT2}, 2")
    a(f"s_add_u32 s{sT1}, s{sT1}, s{sT2}")
    a(f"s_add_u32 s{sT1}, s{sT1}, 32")
    a(f"s_add_u32 s{sCl}, s56, s{sT1}")
    a(f"s_addc_u32 s{sCl+1}, s57, 0")
    a(f"s_cmp_ge_u32 s{sFl}, 196")
    a("s_cbranch_scc1 L_aux_nod")
    a(f"s_lshl_b32 s{sT0}, s{sFl}, 12")
    a(f"s_add_u32 s{sT0}, s{sT0}, {DOFF}")
    a("s_waitcnt vmcnt(0)")
    for i in range(4):
        r = FX + i * 4
        a(f"v_xor_b32 v{r+2}, 0x80008000, v{r+2}")
        a(f"v_xor_b32 v{r+3}, 0x80008000, v{r+3}")
        a(f"buffer_store_dwordx4 v[{r}:{r+3}], v{vL16}, s[{sWS}:{sWS+3}], s{sT0} offen offset:{i*1024} sc1")
    a.label("L_aux_nod")
    for k in range(NB1):
        a("s_barrier")
    a("s_waitcnt vmcnt(0)")
    a(f"s_and_b32 s{sT0}, s{sFl}, 7")
    a(f"s_mul_i32 s{sT0}, s{sT0}, 3")
    a(f"s_lshl_b32 s{sT0}, s{sByte}, s{sT0}")
    a(f"s_add_u32 s{sT0}, s{sT0}, 0x1000000")
    a(f"s_atomic_add s{sT0}, s[{sCl}:{sCl+1}], 0")
    a(f"s_cmp_ge_u32 s{sFl}, 196")
    a("s_cbranch_scc1 L_aux_nod2")
    a(f"s_mul_i32 s{sT1}, s{sFl}, 1338")
    a(f"s_lshr_b32 s{sT1}, s{sT1}, 16")
    a(f"s_lshl_b32 s{sT1}, s{sT1}, 6")
    a(f"s_add_u32 s{sDc}, s56, s{sT1}")
    a(f"s_addc_u32 s{sDc+1}, s57, 0")
    a(f"s_mov_b32 s{sT1}, 1")
    a(f"s_atomic_add s{sT1}, s[{sDc}:{sDc+1}], 0")
    a.label("L_aux_nod2")
    for k in range(NB1, NB2):
        a("s_barrier")
    a("s_waitcnt lgkmcnt(0)")
    a(f"s_lshl_b32 s{sT1}, s{sJ}, 6")
    a(f"s_add_u32 s{sDc}, s56, s{sT1}")
    a(f"s_addc_u32 s{sDc+1}, s57, 0")
    a(f"s_mov_b32 s{sT2}, 0")
    a(f"s_mov_b32 s{sT3}, 0")
    a(f"s_atomic_add s{sT2}, s[{sCl}:{sCl+1}], 0 glc")
    a(f"s_atomic_add s{sT3}, s[{sDc}:{sDc+1}], 0 glc")
    for k in range(NBG):
        a("s_barrier")
    a.label("L_poll1")
    a("s_waitcnt lgkmcnt(0)")
    a(f"s_add_u32 s{sIt}, s{sIt}, 1")
    a(f"s_lshr_b32 s{sT0}, s{sT2}, 24")
    a(f"s_and_b32 s{sT0}, s{sT0}, 15")
    a(f"s_lshl_b32 s{sT0}, s{sT0}, 8")
    a(f"s_add_u32 s{sT0}, s{sT0}, s{sT3}")
    a(f"s_cmp_eq_u32 s{sT0}, {8*256+49}")
    a("s_cbranch_scc1 L_poll1_done")
    a(f"s_cmp_ge_u32 s{sIt}, {SPIN}")
    a("s_cbranch_scc1 L_poll1_done")
    a("s_sleep 16")
    a(f"s_mov_b32 s{sT2}, 0")
    a(f"s_mov_b32 s{sT3}, 0")
    a(f"s_atomic_add s{sT2}, s[{sCl}:{sCl+1}], 0 glc")
    a(f"s_atomic_add s{sT3}, s[{sDc}:{sDc+1}], 0 glc")
    a("s_branch L_poll1")
    a.label("L_poll1_done")
    a(f"s_mul_i32 s{sT0}, s{sByte}, 0x249249")
    a(f"s_and_b32 s{sT2}, s{sT2}, 0xffffff")
    a(f"s_cmp_eq_u32 s{sT2}, s{sT0}")
    a(f"s_cselect_b32 s{sLoc}, {0 if OPT('FORCESLOW') else 1}, 0")
    a("s_branch L_aux_pre")
    a.label("L_aux7")
    if OPT("TLBPF", 0):
        srd(a, sA, 14, X_BYTES)
        a(f"v_lshlrev_b32 v{vCb}, 17, v{vLane}")
        a(f"buffer_load_dword v{vCb+1}, v{vCb}, s[{sWS}:{sWS+3}], 0 offen")
        a(f"s_mul_i32 s{sT0}, s{sRB}, {64*896}")
        a(f"v_lshlrev_b32 v{vCb}, 10, v{vLane}")
        a(f"buffer_load_dword v{vCb+1}, v{vCb}, s[{sA}:{sA+3}], s{sT0} offen")
    if OPT("CODEPF", 2) == 2:
        a("s_waitcnt vmcnt(0)")
    if OPT("CODEPF", 2) == 1:
        a("s_getpc_b64 s[60:61]")
        a.label("L_pc")
        a(f"s_sub_u32 s60, s60, L_pc-{NAME}")
        a("s_subb_u32 s61, s61, 0")
        a(f"v_lshlrev_b32 v{vT}, 7, v{vLane}")
        a(f"v_min_u32 v{vT}, L_end-{NAME}-4, v{vT}")
        a(f"global_load_dword v{vT+2}, v{vT}, s[60:61]")
        a("s_waitcnt vmcnt(0)")
    for k in range(NB2 + NBG):
        a("s_barrier")
        if k + 1 == OPT("PQPF7", 0):
            a(f"s_lshl_b32 s{sT0}, s{sH}, 7")
            a(f"s_lshl_b32 s{sT1}, s{sRB}, 2")
            a(f"s_add_u32 s{sT0}, s{sT0}, s{sT1}")
            a(f"s_mul_i32 s{sT0}, s{sT0}, 28")
            a(f"s_mul_i32 s{sT1}, s{sJ}, 7")
            a(f"s_add_u32 s{sT0}, s{sT0}, s{sT1}")
            a(f"s_lshl_b32 s{sT0}, s{sT0}, 10")
            a(f"v_lshlrev_b32 v{vCb}, 7, v{vLane}")
            a(f"v_min_u32 v{vCb}, {7168-128}, v{vCb}")
            for t in range(4):
                a(f"buffer_load_dword v{vCb+1}, v{vCb}, s[{sWS}:{sWS+3}], s{sT0} offen sc1")
                a(f"s_add_u32 s{sT0}, s{sT0}, {28*1024}")
    a.label("L_aux_pre")
    p2_offsets()
    dload_setup()
    nb = NB2 + NBG
    assert nb <= 13
    if OPT("DPF", 0):
        a(f"s_lshr_b32 s{sT0}, s2, 5")
        a(f"s_mul_i32 s{sT0}, s{sT0}, 25088")
        a(f"s_mul_i32 s{sT1}, s{sJ}, 200704")
        a(f"s_add_u32 s{sT0}, s{sT0}, s{sT1}")
        a(f"s_add_u32 s{sT0}, s{sT0}, {DOFF}")
        a(f"s_sub_u32 s{sT1}, s{sW}, 6")
        a(f"s_lshl_b32 s{sT1}, s{sT1}, 14")
        a(f"v_lshlrev_b32 v{vCb}, 7, v{vLane}")
        a(f"v_add_u32 v{vCb}, s{sT1}, v{vCb}")
        a(f"v_add_u32 v{vCb+1}, 8192, v{vCb}")
        a(f"v_min_u32 v{vCb+1}, {25088-128}, v{vCb+1}")
        a(f"buffer_load_dword v{vXb}, v{vCb}, s[{sWS}:{sWS+3}], s{sT0} offen sc1")
        a(f"buffer_load_dword v{vXb}, v{vCb+1}, s[{sWS}:{sWS+3}], s{sT0} offen sc1")
        for k in range(OPT("DPFGAP", 2)):
            a("s_barrier")
            nb += 1
    DS2 = [int(c) for c in os.environ.get("DSCHED2", "121")]
    nd = 0
    while nb < 16:
        a("s_barrier")
        nb += 1
        if nb - 1 == OPT("PQPF", 0):
            a(f"s_lshl_b32 s{sT0}, s{sH}, 7")
            a(f"s_lshl_b32 s{sT1}, s{sRB}, 2")
            a(f"s_add_u32 s{sT0}, s{sT0}, s{sT1}")
            a(f"s_sub_u32 s{sT1}, s{sW}, 6")
            a(f"s_lshl_b32 s{sT1}, s{sT1}, 1")
            a(f"s_add_u32 s{sT0}, s{sT0}, s{sT1}")
            a(f"s_mul_i32 s{sT0}, s{sT0}, 28")
            a(f"s_mul_i32 s{sT1}, s{sJ}, 7")
            a(f"s_add_u32 s{sT0}, s{sT0}, s{sT1}")
            a(f"s_lshl_b32 s{sT0}, s{sT0}, 10")
            a(f"s_add_u32 s{sT1}, s{sT0}, {28*1024}")
            a(f"v_lshlrev_b32 v{vCb}, 7, v{vLane}")
            a(f"v_min_u32 v{vCb}, {7168-128}, v{vCb}")
            a(f"buffer_load_dword v{vCb+1}, v{vCb}, s[{sWS}:{sWS+3}], s{sT0} offen sc1")
            a(f"buffer_load_dword v{vCb+1}, v{vCb}, s[{sWS}:{sWS+3}], s{sT1} offen sc1")
        if nb - 1 == OPT("CPF2", 0):
            a(f"s_getpc_b64 s[{sA}:{sA+1}]")
            a.label("L_pc2")
            a(f"s_sub_u32 s{sA}, s{sA}, L_pc2-{NAME}")
            a(f"s_subb_u32 s{sA+1}, s{sA+1}, 0")
            a(f"v_lshlrev_b32 v{vCb}, 7, v{vLane}")
            a(f"v_min_u32 v{vCb}, L_end-{NAME}-4, v{vCb}")
            a(f"global_load_dword v{vCb+1}, v{vCb}, s[{sA}:{sA+1}]")
        k = nb - 1 - (16 - len(DS2))
        if k >= 0:
            for q in range(nd, nd + DS2[k]):
                for i in dloads(q):
                    a(i)
            nd += DS2[k]
    assert nd == 4
    a("s_branch L_p2")
    a.label("L_done")
    a("s_endpgm")
    a.label("L_end")
    return name, 256, 0, NSLOT * SLOT, 512


def main():
    a = Asm()
    a.raw('.amdgcn_target "amdgcn-amd-amdhsa--gfx950"')
    a.raw(".text")
    name, nv, na, lds, blk = gen(a)
    out = HEADER
    out += f"; @launch grid=(256,1,1) block=({blk},1,1) lds={lds}\n"
    txt = a.text()
    if OPT("REORD", 1):
        import re
        parts = re.split(r"^;;BLOCK (\w+)\n", txt, flags=re.M)
        blk = {"head": parts[0]}
        for k in range(1, len(parts), 2):
            blk[parts[k]] = parts[k + 1]
        if OPT("REORD", 1) == 2:
            rest, tail = blk["rest"].split("L_done:\n")
            txt = blk["head"] + blk["ld"] + rest + blk["comp"] + "L_done:\n" + tail
        else:
            txt = blk["head"] + blk["ld"] + blk["comp"] + blk["rest"]
    out += txt
    out += '.section .rodata,"a"\n'
    out += G.descriptor(name, nv, na)
    path = sys.argv[1] if len(sys.argv) > 1 else "standalone__spectral_fnet__prompt.s"
    open(path, "w").write(out)


if __name__ == "__main__":
    main()
```

```python
import sys, os, math, re
import gen as G
from gen import OPT, Asm, Stamps, srd, interleave, flat, X_BYTES, C_BYTES, D_BYTES, STAMP_OFF, HEADER

NSLOT, SLOT, XOFF, NSTAGE = 5, 30720, 16384, 16
WS = 8
PDEPTH = 3
SPIN = 1 << 14
NAME = "standalone__spectral_fnet__prompt_kernel"
YBYTES = 32 * 8 * 8 * 7 * 1024
DOFF = YBYTES
LFOFF = DOFF + 784 * 1024
WS_BYTES = LFOFF + 32 * 128
LDS_PQ = 2 * SLOT
NB1, NB2, NBG = OPT("NB1", 2), OPT("NB2", 10), OPT("NBG", 2)


def gen(a):
    name = NAME
    a.raw(f".globl {name}")
    a.raw(".p2align 8")
    a.raw(f".type {name},@function")
    a.label(name)
    sA, sB, sWS, sE = 16, 20, 24, 28
    sCl, sDc = 32, 34
    sW = 36
    sT0, sT1, sT2, sT3 = 37, 38, 39, 40
    sH, sRB, sJ = 41, 42, 43
    sY = 44
    sRot, sBase, sOff, sOff2, sSlot, sIt = 46, 47, 48, 49, 50, 51
    sFl, sLoc, sByte = 52, 53, 54
    sD = 60

    vLane = 1
    vT = 2
    vCb0, vXb0, vCb, vXb = 6, 8, 10, 12
    vL16 = 14
    vO = 16
    FX, FY = 16, 52
    ACC = 88
    DFR = 144
    ACC2 = 16
    PB = 80

    def cfrag(b, n): return b + n * 4
    def xfrag(b, m): return b + 8 + m * 4
    def acc(m, n): return ACC + (m * 2 + n) * 4
    def df(e, m): return DFR + (e * 7 + m) * 4
    def acc2(e, tt): return ACC2 + (e * 4 + tt) * 4

    st = Stamps(a, 64, 0)
    a("s_cmp_ge_u32 s2, 256")
    a("s_cbranch_scc1 L_done")
    st()
    a("s_load_dwordx8 s[4:11], s[0:1], 0")
    a("s_load_dwordx4 s[12:15], s[0:1], 32")
    a("s_load_dwordx4 s[56:59], s[0:1], 48")
    a(f"v_lshrrev_b32 v{vT}, 6, v0")
    a(f"v_and_b32 v{vLane}, 63, v0")
    a(f"v_readfirstlane_b32 s{sW}, v{vT}")
    a(f"s_cmp_lg_u32 s{sW}, 7")
    a("s_cbranch_scc1 L_nopf")
    a("s_getpc_b64 s[60:61]")
    a.label("L_pc")
    a(f"v_lshlrev_b32 v{vT}, 7, v{vLane}")
    a(f"v_min_u32 v{vT}, L_end-L_pc-4, v{vT}")
    a(f"global_load_dword v{vT+2}, v{vT}, s[60:61]")
    a.label("L_nopf")
    a(f"s_and_b32 s{sT0}, s2, 7")
    a(f"s_lshr_b32 s{sT1}, s2, 3")
    a(f"s_and_b32 s{sJ}, s{sT1}, 3")
    a(f"s_lshr_b32 s{sH}, s{sT1}, 2")
    a(f"s_and_b32 s{sH}, s{sH}, 1")
    a(f"s_lshr_b32 s{sRot}, s{sT1}, 3")
    a(f"s_lshl_b32 s{sRB}, s{sRot}, 3")
    a(f"s_add_u32 s{sRB}, s{sRB}, s{sT0}")
    a(f"s_lshr_b32 s{sT2}, s{sJ}, 1")
    a(f"s_add_u32 s{sRot}, s{sRot}, s{sT2}")
    a(f"s_lshl_b32 s{sRot}, s{sRot}, 2")
    a(f"s_and_b32 s{sRot}, s{sRot}, {WS-1}")
    a(f"v_lshlrev_b32 v{vL16}, 4, v{vLane}")
    a(f"s_cmp_eq_u32 s{sW}, 5")
    a("s_cbranch_scc1 L_ldx")
    a(f"s_cmp_ge_u32 s{sW}, 6")
    a("s_cbranch_scc1 L_aux")
    a(f"s_cmp_lt_u32 s{sW}, 4")
    a("s_cbranch_scc1 L_comp")

    def p2_offsets(e0):
        a(f"v_add_u32 v{vL16+1}, 4096, v{vL16}")
        a(f"s_and_b32 s{sT0}, s{sW}, 3")
        a(f"s_mul_i32 s{sT1}, s{sT0}, 196")
        a(f"s_mul_i32 s{sT2}, s{sJ}, 7")
        a(f"s_add_u32 s{sT1}, s{sT1}, s{sT2}")
        a(f"s_lshl_b32 s{sT1}, s{sT1}, 10")
        for e in range(4 if e0 == 0 else 3):
            a(f"s_add_u32 s{sD+e}, s{sT1}, {DOFF + (e0+e)*28*1024}")
        a(f"s_lshl_b32 s{sT1}, s{sRB}, 3")
        a(f"s_add_u32 s{sT1}, s{sT1}, s{sT0}")
        a(f"s_lshl_b32 s{sT1}, s{sT1}, 3")
        a(f"s_lshl_b32 s{sT2}, s{sH}, 2")
        a(f"s_add_u32 s{sT1}, s{sT1}, s{sT2}")
        a(f"s_add_u32 s{sT1}, s{sT1}, s{sJ}")
        a(f"s_mul_i32 s{sT1}, s{sT1}, 7")
        a(f"s_add_u32 s{sT1}, s{sT1}, {e0}")
        a(f"s_lshl_b32 s{sY}, s{sT1}, 10")

    def dload(e, m):
        r = df(e, m)
        return f"buffer_load_dwordx4 v[{r}:{r+3}], v{vL16 + m // 4}, s[{sWS}:{sWS+3}], s{sD+e} offen offset:{(m%4)*1024} sc1"

    a.label("L_comp")
    a(f"v_and_b32 v{vT}, 15, v{vLane}")
    a(f"v_lshrrev_b32 v{vT+1}, 4, v{vLane}")
    a(f"v_lshrrev_b32 v{vT+3}, 1, v{vT}")
    a(f"v_xor_b32 v{vT+2}, v{vT+1}, v{vT+3}")
    a(f"v_lshlrev_b32 v{vT+2}, 4, v{vT+2}")
    a(f"v_lshl_add_u32 v{vCb0}, v{vT}, 7, v{vT+2}")
    a(f"s_lshl_b32 s{sT0}, s{sW}, 11")
    a(f"v_add_u32 v{vCb0}, s{sT0}, v{vCb0}")
    a(f"v_xor_b32 v{vCb0+1}, 64, v{vCb0}")
    a(f"v_lshlrev_b32 v{vT+2}, 3, v{vT+1}")
    a(f"v_lshrrev_b32 v{vT+3}, 2, v{vT}")
    a(f"v_add_u32 v{vT+2}, v{vT+2}, v{vT+3}")
    a(f"v_and_b32 v{vT+3}, 1, v{vT+1}")
    a(f"v_lshlrev_b32 v{vT+3}, 2, v{vT+3}")
    a(f"v_add_u32 v{vXb0}, v{vT+2}, v{vT+3}")
    a(f"v_xor_b32 v{vT+3}, 4, v{vT+3}")
    a(f"v_add_u32 v{vXb0+1}, v{vT+2}, v{vT+3}")
    a(f"v_and_b32 v{vT}, 3, v{vT}")
    a(f"v_lshlrev_b32 v{vT}, 3, v{vT}")
    a(f"v_add_u32 v{vT}, {XOFF}, v{vT}")
    a(f"v_mov_b32 v{vT+1}, 224")
    a(f"v_mad_u32_u24 v{vXb0}, v{vXb0}, v{vT+1}, v{vT}")
    a(f"v_mad_u32_u24 v{vXb0+1}, v{vXb0+1}, v{vT+1}, v{vT}")
    for r in range(36 + 56):
        a(f"v_mov_b32 v{FY+r}, 0")
    for r in range(2):
        a(f"v_mov_b32 v{vCb+r}, v{vCb0+r}")
        a(f"v_mov_b32 v{vXb+r}, v{vXb0+r}")
    p2_offsets(4)
    a(f"s_mul_i32 s{sT0}, s{sW}, 7168")
    a(f"s_add_u32 s{sT0}, s{sT0}, {LDS_PQ}")
    a(f"v_add_u32 v{vT}, s{sT0}, v{vL16}")
    a("s_waitcnt lgkmcnt(0)")
    srd(a, sWS, 58, WS_BYTES)

    def frag_reads(b, kk):
        def xr(m):
            return [f"ds_read_b64_tr_b16 v[{xfrag(b,m)}:{xfrag(b,m)+1}], v{vXb} offset:{m*32+kk*7168}",
                    f"ds_read_b64_tr_b16 v[{xfrag(b,m)+2}:{xfrag(b,m)+3}], v{vXb+1} offset:{m*32+kk*7168}"]
        ins = xr(0)
        for n in range(2):
            ins.append(f"ds_read_b128 v[{cfrag(b,n)}:{cfrag(b,n)+3}], v{vCb+kk} offset:{n*8192}")
        for m in range(1, 7):
            ins += xr(m)
        return ins

    def mfmas(b):
        return [f"v_mfma_f32_16x16x32_bf16 v[{acc(m,n)}:{acc(m,n)+3}], v[{xfrag(b,m)}:{xfrag(b,m)+3}], "
                f"v[{cfrag(b,n)}:{cfrag(b,n)+3}], v[{acc(m,n)}:{acc(m,n)+3}]"
                for m in range(7) for n in range(2)]

    a(f"s_mov_b32 s{sSlot}, 0")
    a(f"s_mov_b32 s{sIt}, 0")
    DIT = OPT("DIT", 0)
    a.label("L_loop")
    a("s_waitcnt lgkmcnt(0)")
    a("s_barrier")
    if DIT:
        a(f"s_cmp_eq_u32 s{sIt}, {DIT}")
        a("s_cbranch_scc1 L_dl")
        a.label("L_dl_back")
    for i in interleave(mfmas(FY), frag_reads(FX, 0) + [[f"s_add_u32 s{sSlot}, s{sSlot}, {SLOT}",
                                                          f"s_cmp_eq_u32 s{sSlot}, {SLOT*NSLOT}",
                                                          f"s_cselect_b32 s{sSlot}, 0, s{sSlot}"]], per=2):
        a(i)
    a("s_waitcnt lgkmcnt(0)")
    nxt = [f"v_add_u32 v{vCb+r}, s{sSlot}, v{vCb0+r}" for r in range(2)] + \
          [f"v_add_u32 v{vXb+r}, s{sSlot}, v{vXb0+r}" for r in range(2)] + \
          [[f"s_add_u32 s{sIt}, s{sIt}, 1", f"s_cmp_lt_u32 s{sIt}, {NSTAGE}"]]
    for i in interleave(mfmas(FX), frag_reads(FY, 1) + nxt, per=2):
        a(i)
    a("s_cbranch_scc1 L_loop")
    a("s_waitcnt lgkmcnt(0)")
    for i in mfmas(FY):
        a(i)
    st()
    a("s_nop 4")
    for m in range(7):
        p, q = acc(m, 0), acc(m, 1)
        o = FX + m * 4
        a(f"v_cvt_pk_bf16_f32 v{o}, v{p}, v{p+1}")
        a(f"v_cvt_pk_bf16_f32 v{o+1}, v{p+2}, v{p+3}")
        a(f"v_cvt_pk_bf16_f32 v{o+2}, v{q}, v{q+1}")
        a(f"v_cvt_pk_bf16_f32 v{o+3}, v{q+2}, v{q+3}")
        a(f"ds_write_b128 v{vT}, v[{o}:{o+3}] offset:{m*1024}")
    a("s_waitcnt lgkmcnt(0)")
    a("s_barrier")
    if not DIT:
        for m in range(7):
            for e in range(3):
                a(dload(e, m))
    a("s_mov_b64 vcc, -1")
    a("s_branch L_p2")
    if DIT:
        a.label("L_dl")
        for m in range(7):
            for e in range(3):
                a(dload(e, m))
        a("s_branch L_dl_back")

    a.label("L_p2h")
    a("s_waitcnt vmcnt(0)")
    a("s_barrier")
    a("s_mov_b64 vcc, 0")
    a.label("L_p2")
    a(f"v_add_u32 v{vCb}, {LDS_PQ}, v{vL16}")

    def preads(m):
        b = PB + (m % 3) * 16
        return [f"ds_read_b128 v[{b+tt*4}:{b+tt*4+3}], v{vCb} offset:{(tt*7+m)*1024}" for tt in range(4)]

    def mf2(m, e):
        b = PB + (m % 3) * 16
        return [f"v_mfma_f32_16x16x32_bf16 v[{acc2(e,tt)}:{acc2(e,tt)+3}], v[{df(e,m)}:{df(e,m)+3}], "
                f"v[{b+tt*4}:{b+tt*4+3}], " + ("0" if m == 0 else f"v[{acc2(e,tt)}:{acc2(e,tt)+3}]")
                for tt in range(4)]

    for i in preads(0) + preads(1):
        a(i)
    for m in range(7):
        a(f"s_waitcnt vmcnt({3*(6-m)}) lgkmcnt({4 if m < 6 else 0})")
        for i in interleave(mf2(m, 0) + mf2(m, 1) + mf2(m, 2), preads(m + 2) if m + 2 < 7 else [], per=1):
            a(i)
        a(f"s_cbranch_vccnz L_sk{m}")
        for i in mf2(m, 3):
            a(i)
        a.label(f"L_sk{m}")
    st()
    a(f"s_add_u32 s{sT1}, s{sY}, {4*8*7*1024}")
    a("s_nop 2")
    for e in range(4):
        if e == 3:
            a("s_cbranch_vccnz L_yst")
        for hp in range(2):
            o = PB + (e * 2 + hp) * 4
            for tl in range(2):
                r = acc2(e, hp * 2 + tl)
                a(f"v_cvt_pk_bf16_f32 v{o+tl*2}, v{r}, v{r+1}")
                a(f"v_cvt_pk_bf16_f32 v{o+tl*2+1}, v{r+2}, v{r+3}")
            a(f"buffer_store_dwordx4 v[{o}:{o+3}], v{vL16}, s[{sWS}:{sWS+3}], s{sY if hp == 0 else sT1} offen offset:{e*1024} sc1")
    a.label("L_yst")
    a(f"s_lshl_b32 s{sT0}, s{sRB}, 3")
    a(f"s_lshl_b32 s{sT1}, s{sH}, 2")
    a(f"s_add_u32 s{sT0}, s{sT0}, s{sT1}")
    a(f"s_add_u32 s{sT0}, s{sT0}, s{sJ}")
    a(f"s_mul_i32 s{sT0}, s{sT0}, 56")
    a(f"s_add_u32 s{sT0}, s{sT0}, s{sW}")
    a(f"s_lshl_b32 s{sOff}, s{sT0}, 10")
    srd(a, sA, 14, X_BYTES)
    a(f"v_and_b32 v{vXb}, 15, v{vLane}")
    a(f"v_mul_u32_u24 v{vXb}, 896, v{vXb}")
    a(f"v_lshrrev_b32 v{vXb+1}, 4, v{vLane}")
    a(f"v_lshl_add_u32 v{vXb}, v{vXb+1}, 3, v{vXb}")
    a(f"s_lshl_b32 s{sT0}, s{sRB}, 6")
    a(f"s_lshl_b32 s{sT1}, s{sH}, 5")
    a(f"s_add_u32 s{sT0}, s{sT0}, s{sT1}")
    a(f"s_mul_i32 s{sT0}, s{sT0}, 896")
    a(f"s_mul_i32 s{sT1}, s{sJ}, 224")
    a(f"s_add_u32 s{sT0}, s{sT0}, s{sT1}")
    a(f"s_lshl_b32 s{sT1}, s{sW}, 5")
    a(f"s_add_u32 s{sOff2}, s{sT0}, s{sT1}")
    a("s_waitcnt vmcnt(0)")
    a("s_barrier")
    st()
    a(f"s_cmp_eq_u32 s{sW}, 6")
    a("s_cbranch_scc0 L_wait")
    a(f"v_mov_b32 v{vT}, 0")
    a(f"s_mov_b32 s{sIt}, 0")
    a(f"s_cmp_eq_u32 s{sLoc}, 1")
    a("s_cbranch_scc1 L_pub_loc")
    a(f"s_mov_b32 s{sT0}, 0x10000000")
    a(f"s_atomic_add s{sT0}, s[{sCl}:{sCl+1}], 0")
    a.label("L_poll2")
    a(f"s_mov_b32 s{sT2}, 0")
    a(f"s_atomic_add s{sT2}, s[{sCl}:{sCl+1}], 0 glc")
    a("s_waitcnt lgkmcnt(0)")
    a(f"s_add_u32 s{sIt}, s{sIt}, 1")
    a(f"s_lshr_b32 s{sT2}, s{sT2}, 28")
    a(f"s_cmp_eq_u32 s{sT2}, 8")
    a("s_cbranch_scc1 L_poll_done")
    a("s_sleep 16")
    a(f"s_cmp_lt_u32 s{sIt}, {SPIN}")
    a("s_cbranch_scc1 L_poll2")
    a("s_branch L_poll_done")
    a.label("L_pub_loc")
    a(f"s_lshl_b32 s{sT1}, s{sRB}, 7")
    a(f"s_add_u32 s{sT1}, s{sT1}, {LFOFF}")
    a(f"s_and_b32 s{sT0}, s{sFl}, 7")
    a(f"s_lshl_b32 s{sT0}, s{sT0}, 2")
    a(f"s_add_u32 s{sT0}, s{sT0}, s{sT1}")
    a(f"v_mov_b32 v{vT+1}, 1")
    a(f"v_lshlrev_b32 v{vT+3}, 2, v{vLane}")
    a("s_mov_b64 exec, 1")
    a(f"buffer_store_dword v{vT+1}, v{vT}, s[{sWS}:{sWS+3}], s{sT0} offen")
    a("s_mov_b64 exec, 0xff")
    a.label("L_poll3")
    a(f"buffer_load_dword v{vT+2}, v{vT+3}, s[{sWS}:{sWS+3}], s{sT1} offen sc1")
    a("s_waitcnt vmcnt(0)")
    a(f"v_cmp_ne_u32 vcc, 1, v{vT+2}")
    a(f"s_add_u32 s{sIt}, s{sIt}, 1")
    a("s_nop 3")
    a("s_cmp_eq_u64 vcc, 0")
    a("s_cbranch_scc1 L_poll_done")
    a(f"s_cmp_lt_u32 s{sIt}, {SPIN}")
    a("s_cbranch_scc1 L_poll3")
    a.label("L_poll_done")
    a("s_mov_b64 exec, -1")
    a.label("L_wait")
    a("s_barrier")
    st()
    a(f"s_cmp_eq_u32 s{sW}, 7")
    a("s_cbranch_scc1 L_done")
    YR = 16
    for s_ in range(8):
        a(f"buffer_load_dwordx4 v[{YR+s_*4}:{YR+s_*4+3}], v{vL16}, s[{sWS}:{sWS+3}], s{sOff} offen sc1")
        if s_ < 7:
            a(f"s_add_u32 s{sOff}, s{sOff}, 7168")
    SUM = 64
    TMP = 72
    a(f"s_mov_b32 s{sT2}, 0xffff0000")
    for s_ in range(8):
        a(f"s_waitcnt vmcnt({7-s_})")
        for d in range(4):
            src = YR + s_ * 4 + d
            if s_ == 0:
                a(f"v_lshlrev_b32 v{SUM+2*d}, 16, v{src}")
                a(f"v_and_b32 v{SUM+2*d+1}, s{sT2}, v{src}")
            else:
                a(f"v_lshlrev_b32 v{TMP+2*d}, 16, v{src}")
                a(f"v_and_b32 v{TMP+2*d+1}, s{sT2}, v{src}")
        if s_:
            for k in range(8):
                a(f"v_add_f32 v{SUM+k}, v{SUM+k}, v{TMP+k}")
    a(f"s_add_u32 s{sT1}, s{sOff2}, {16*896}")
    for tl in range(2):
        a(f"v_cvt_pk_bf16_f32 v{TMP+tl*2}, v{SUM+tl*4}, v{SUM+tl*4+1}")
        a(f"v_cvt_pk_bf16_f32 v{TMP+tl*2+1}, v{SUM+tl*4+2}, v{SUM+tl*4+3}")
        a(f"buffer_store_dwordx2 v[{TMP+tl*2}:{TMP+tl*2+1}], v{vXb}, s[{sA}:{sA+3}], s{sOff2 if tl == 0 else sT1} offen")
    if OPT("STAMP"):
        a(f"s_cmp_ge_u32 s{sW}, 4")
        a("s_cbranch_scc1 L_done")
        a("s_waitcnt vmcnt(0)")
        st.dump(sWS, sT0, vT, sW)
    a("s_endpgm")

    def loader_loop(tag, n, issue, stepbytes):
        adv = [f"s_add_u32 s{sRot}, s{sRot}, 1",
               f"s_and_b32 s{sRot}, s{sRot}, {WS-1}",
               f"s_add_u32 s{sOff}, s{sIt}, 1",
               f"s_and_b32 s{sOff}, s{sOff}, {16-WS}",
               f"s_add_u32 s{sOff}, s{sOff}, s{sRot}",
               f"s_mul_i32 s{sOff}, s{sOff}, {stepbytes}",
               f"s_add_u32 s{sOff}, s{sOff}, s{sBase}",
               f"s_add_u32 s{sSlot}, s{sSlot}, {SLOT}",
               f"s_cmp_eq_u32 s{sSlot}, {SLOT*NSLOT}",
               f"s_cselect_b32 s{sSlot}, 0, s{sSlot}"]
        a(f"s_mul_i32 s{sOff}, s{sRot}, {stepbytes}")
        a(f"s_add_u32 s{sOff}, s{sOff}, s{sBase}")
        a(f"s_mov_b32 s{sSlot}, 0")
        a(f"s_mov_b32 s{sIt}, 0")
        a.label(f"L_{tag}_loop")
        a(f"s_cmp_lt_u32 s{sIt}, {PDEPTH}")
        a(f"s_cbranch_scc1 L_{tag}_issue")
        a(f"s_waitcnt vmcnt({(PDEPTH-1)*n})")
        a("s_barrier")
        a.label(f"L_{tag}_issue")
        for i in issue():
            a(i)
        for i in adv:
            a(i)
        a(f"s_add_u32 s{sIt}, s{sIt}, 1")
        a(f"s_cmp_lt_u32 s{sIt}, {NSTAGE}")
        a(f"s_cbranch_scc1 L_{tag}_loop")
        a("s_branch L_ldtail")

    a.label("L_ldc")
    a(f"v_lshrrev_b32 v{vT}, 3, v{vLane}")
    a(f"v_lshlrev_b32 v{vT}, 12, v{vT}")
    a(f"v_and_b32 v{vT+1}, 7, v{vLane}")
    a(f"v_lshrrev_b32 v{vT+2}, 4, v{vLane}")
    a(f"v_xor_b32 v{vT+1}, v{vT+1}, v{vT+2}")
    a(f"v_lshl_add_u32 v{vO}, v{vT+1}, 4, v{vT}")
    a(f"v_xor_b32 v{vT+1}, 4, v{vT+1}")
    a(f"v_lshl_add_u32 v{vO+1}, v{vT+1}, 4, v{vT}")
    a(f"v_add_u32 v{vO+1}, {8*4096-1024}, v{vO+1}")
    a(f"v_add_u32 v{vO+2}, {16*4096-2048}, v{vO}")
    a(f"v_add_u32 v{vO+3}, {16*4096-2048}, v{vO+1}")
    a(f"s_lshl_b32 s{sBase}, s{sRB}, 18")
    a(f"s_lshl_b32 s{sT0}, s{sH}, 11")
    a(f"s_add_u32 s{sBase}, s{sBase}, s{sT0}")
    a("s_waitcnt lgkmcnt(0)")
    srd(a, sA, 6, C_BYTES)
    srd(a, sB, 8, C_BYTES)

    def issue_c():
        ins = [f"s_add_u32 s{sOff2}, s{sOff}, {32*4096}"]
        for grp in range(4):
            s_ = sA if grp < 2 else sB
            o_ = sOff if grp % 2 == 0 else sOff2
            ins.append(f"s_add_u32 m0, s{sSlot}, {grp*4096}")
            ins.append("s_nop 0")
            for q in range(4):
                ins.append(f"buffer_load_dwordx4 v{vO+q}, s[{s_}:{s_+3}], s{o_} offen offset:{q*1024} lds")
        return ins
    loader_loop("ldc", 16, issue_c, 128)

    a.label("L_ldx")
    for q in range(7):
        if q:
            a(f"v_add_u32 v{vT}, {64*q}, v{vLane}")
            src = vT
        else:
            src = vLane
        a(f"v_mul_u32_u24 v{vT+1}, 4682, v{src}")
        a(f"v_lshrrev_b32 v{vT+1}, 16, v{vT+1}")
        a(f"v_lshlrev_b32 v{vT+2}, 4, v{src}")
        a(f"v_mul_u32_u24 v{vT+3}, 224, v{vT+1}")
        a(f"v_sub_u32 v{vT+2}, v{vT+2}, v{vT+3}")
        a(f"v_lshrrev_b32 v{vT+3}, 1, v{vT+1}")
        a(f"v_and_b32 v{vT+3}, 4, v{vT+3}")
        a(f"v_xor_b32 v{vT+1}, v{vT+1}, v{vT+3}")
        a(f"v_mul_u32_u24 v{vT+1}, 896, v{vT+1}")
        a(f"v_add_u32 v{vO+q}, v{vT+2}, v{vT+1}")
        a(f"v_add_u32 v{vO+q+7}, {32*896 - 1024*((q+7)%4)}, v{vO+q}")
        if q % 4:
            a(f"v_subrev_u32 v{vO+q}, {1024*(q%4)}, v{vO+q}")
    a(f"s_mul_i32 s{sBase}, s{sH}, {1024*896}")
    a(f"s_mul_i32 s{sT0}, s{sJ}, 224")
    a(f"s_add_u32 s{sBase}, s{sBase}, s{sT0}")
    a("s_waitcnt lgkmcnt(0)")
    srd(a, sA, 4, X_BYTES)

    def issue_x():
        ins = []
        for q in range(14):
            if q % 4 == 0:
                ins.append(f"s_add_u32 m0, s{sSlot}, {XOFF + q*1024}")
                ins.append("s_nop 0")
            ins.append(f"buffer_load_dwordx4 v{vO+q}, s[{sA}:{sA+3}], s{sOff} offen offset:{(q%4)*1024} lds")
        return ins
    loader_loop("ldx", 14, issue_x, 64 * 896)

    DS = [int(c) for c in os.environ.get("DSCHED", "121")]
    a.label("L_ldtail")
    srd(a, sWS, 58, WS_BYTES)
    p2_offsets(0)
    nd = 0
    for k in range(PDEPTH):
        a(f"s_waitcnt vmcnt({(PDEPTH-1-k)*14 + 7*nd})")
        a("s_barrier")
        for e in range(nd, nd + DS[k]):
            for m in range(7):
                a(dload(e, m))
        nd += DS[k]
    a("s_branch L_p2h")

    a.label("L_aux")
    a(f"s_lshl_b32 s{sFl}, s{sRB}, 3")
    a(f"s_lshl_b32 s{sT0}, s{sH}, 2")
    a(f"s_add_u32 s{sFl}, s{sFl}, s{sT0}")
    a(f"s_add_u32 s{sFl}, s{sFl}, s{sJ}")
    a(f"s_mov_b32 s{sIt}, 0")
    a("s_waitcnt lgkmcnt(0)")
    srd(a, sWS, 58, WS_BYTES)
    a(f"s_cmp_eq_u32 s{sW}, 7")
    a("s_cbranch_scc1 L_aux7")
    a(f"v_and_b32 v{vT}, 15, v{vLane}")
    a(f"v_mul_u32_u24 v{vT}, 896, v{vT}")
    a(f"v_lshrrev_b32 v{vT+1}, 4, v{vLane}")
    a(f"v_lshl_add_u32 v{vT}, v{vT+1}, 3, v{vT}")
    a(f"v_add_u32 v{vL16+1}, 4096, v{vL16}")
    a(f"s_lshr_b32 s{sT0}, s{sFl}, 2")
    a(f"s_mul_i32 s{sT0}, s{sT0}, {16*896}")
    a(f"s_mul_i32 s{sT1}, s{sJ}, 224")
    a(f"s_add_u32 s{sT0}, s{sT0}, s{sT1}")
    srd(a, sB, 10, D_BYTES)
    srd(a, sE, 12, D_BYTES)
    a(f"s_cmp_ge_u32 s{sFl}, 112")
    a("s_cbranch_scc1 L_aux_nol")
    for i in range(7):
        r = FX + i * 4
        a(f"buffer_load_dwordx2 v[{r}:{r+1}], v{vT}, s[{sB}:{sB+3}], s{sT0} offen offset:{i*32}")
        a(f"buffer_load_dwordx2 v[{r+2}:{r+3}], v{vT}, s[{sE}:{sE+3}], s{sT0} offen offset:{i*32}")
    a.label("L_aux_nol")
    a(f"s_lshl_b32 s{sT1}, s{sRB}, 7")
    a(f"s_and_b32 s{sT2}, s{sFl}, 7")
    a(f"s_lshl_b32 s{sT2}, s{sT2}, 2")
    a(f"s_add_u32 s{sT1}, s{sT1}, s{sT2}")
    a(f"s_add_u32 s{sT1}, s{sT1}, {LFOFF}")
    a(f"v_mov_b32 v{vT+2}, 0")
    a("s_mov_b64 exec, 1")
    a(f"buffer_store_dword v{vT+2}, v{vT+2}, s[{sWS}:{sWS+3}], s{sT1} offen")
    a(f"buffer_load_dword v{vT+3}, v{vT+2}, s[{sWS}:{sWS+3}], s{sT1} offen sc1")
    a("s_mov_b64 exec, -1")
    a(f"s_getreg_b32 s{sByte}, hwreg(HW_REG_XCC_ID)")
    a(f"s_and_b32 s{sByte}, s{sByte}, 7")
    a(f"s_lshr_b32 s{sT1}, s{sRB}, 3")
    a(f"s_lshl_b32 s{sT1}, s{sT1}, 6")
    a(f"s_and_b32 s{sT2}, s{sRB}, 7")
    a(f"s_lshl_b32 s{sT2}, s{sT2}, 2")
    a(f"s_add_u32 s{sT1}, s{sT1}, s{sT2}")
    a(f"s_add_u32 s{sT1}, s{sT1}, 32")
    a(f"s_add_u32 s{sCl}, s56, s{sT1}")
    a(f"s_addc_u32 s{sCl+1}, s57, 0")
    a(f"s_lshl_b32 s{sT1}, s{sJ}, 6")
    a(f"s_add_u32 s{sDc}, s56, s{sT1}")
    a(f"s_addc_u32 s{sDc+1}, s57, 0")
    a(f"s_cmp_ge_u32 s{sFl}, 112")
    a("s_cbranch_scc1 L_aux_nod")
    a(f"s_mul_i32 s{sT0}, s{sFl}, 7168")
    a(f"s_add_u32 s{sT0}, s{sT0}, {DOFF}")
    a("s_waitcnt vmcnt(0)")
    for i in range(7):
        r = FX + i * 4
        a(f"v_xor_b32 v{r+2}, 0x80008000, v{r+2}")
        a(f"v_xor_b32 v{r+3}, 0x80008000, v{r+3}")
        a(f"buffer_store_dwordx4 v[{r}:{r+3}], v{vL16 + i // 4}, s[{sWS}:{sWS+3}], s{sT0} offen offset:{(i%4)*1024} sc1")
    a.label("L_aux_nod")
    for k in range(NB1):
        a("s_barrier")
    a("s_waitcnt vmcnt(0)")
    a(f"s_and_b32 s{sT0}, s{sFl}, 7")
    a(f"s_mul_i32 s{sT0}, s{sT0}, 3")
    a(f"s_lshl_b32 s{sT0}, s{sByte}, s{sT0}")
    a(f"s_add_u32 s{sT0}, s{sT0}, 0x1000000")
    a(f"s_atomic_add s{sT0}, s[{sCl}:{sCl+1}], 0")
    a(f"s_cmp_ge_u32 s{sFl}, 112")
    a("s_cbranch_scc1 L_aux_nod2")
    a(f"s_mov_b32 s{sT1}, 1")
    a(f"s_atomic_add s{sT1}, s[{sDc}:{sDc+1}], 0")
    a.label("L_aux_nod2")
    for k in range(NB1, NB2):
        a("s_barrier")
    a("s_waitcnt lgkmcnt(0)")
    a(f"s_mov_b32 s{sT2}, 0")
    a(f"s_mov_b32 s{sT3}, 0")
    a(f"s_atomic_add s{sT2}, s[{sCl}:{sCl+1}], 0 glc")
    a(f"s_atomic_add s{sT3}, s[{sDc}:{sDc+1}], 0 glc")
    for k in range(NBG):
        a("s_barrier")
    a.label("L_poll1")
    a("s_waitcnt lgkmcnt(0)")
    a(f"s_add_u32 s{sIt}, s{sIt}, 1")
    a(f"s_lshr_b32 s{sT0}, s{sT2}, 24")
    a(f"s_and_b32 s{sT0}, s{sT0}, 15")
    a(f"s_lshl_b32 s{sT0}, s{sT0}, 8")
    a(f"s_add_u32 s{sT0}, s{sT0}, s{sT3}")
    a(f"s_cmp_eq_u32 s{sT0}, {8*256+28}")
    a("s_cbranch_scc1 L_poll1_done")
    a(f"s_cmp_ge_u32 s{sIt}, {SPIN}")
    a("s_cbranch_scc1 L_poll1_done")
    a("s_sleep 16")
    a(f"s_mov_b32 s{sT2}, 0")
    a(f"s_mov_b32 s{sT3}, 0")
    a(f"s_atomic_add s{sT2}, s[{sCl}:{sCl+1}], 0 glc")
    a(f"s_atomic_add s{sT3}, s[{sDc}:{sDc+1}], 0 glc")
    a("s_branch L_poll1")
    a.label("L_poll1_done")
    a(f"s_mul_i32 s{sT0}, s{sByte}, 0x249249")
    a(f"s_and_b32 s{sT2}, s{sT2}, 0xffffff")
    a(f"s_cmp_eq_u32 s{sT2}, s{sT0}")
    a(f"s_cselect_b32 s{sLoc}, {0 if OPT('FORCESLOW') else 1}, 0")
    a("s_branch L_aux_pre")
    a.label("L_aux7")
    a("s_waitcnt vmcnt(0)")
    for k in range(NB2 + NBG):
        a("s_barrier")
    a.label("L_aux_pre")
    p2_offsets(0)
    nb = NB2 + NBG
    assert nb <= 13
    nd = 0
    while nb < 16:
        a("s_barrier")
        nb += 1
        k = nb - 1 - 13
        if k >= 0:
            for e in range(nd, nd + DS[k]):
                for m in range(7):
                    a(dload(e, m))
            nd += DS[k]
    assert nd == 4
    a("s_branch L_p2h")
    a.label("L_done")
    a("s_endpgm")
    a.label("L_end")
    return name, 256, 0, NSLOT * SLOT, 512


def main():
    a = Asm()
    a.raw('.amdgcn_target "amdgcn-amd-amdhsa--gfx950"')
    a.raw(".text")
    name, nv, na, lds, blk = gen(a)
    out = HEADER
    out += f"; @launch grid=(256,1,1) block=({blk},1,1) lds={lds}\n"
    parts = re.split(r"^;;BLOCK (\w+)\n", a.text(), flags=re.M)
    blk_ = {"head": parts[0]}
    for k in range(1, len(parts), 2):
        blk_[parts[k]] = parts[k + 1]
    out += blk_["head"] + blk_["ld"] + blk_["comp"] + blk_["rest"]
    out += '.section .rodata,"a"\n'
    out += G.descriptor(name, nv, na)
    path = sys.argv[1] if len(sys.argv) > 1 else "standalone__spectral_fnet__prompt.s"
    open(path, "w").write(out)


if __name__ == "__main__":
    main()
```

```python
import sys, os, math
import gen as G
from gen import OPT, Asm, Stamps, srd, interleave, flat, X_BYTES, C_BYTES, D_BYTES, DOFF, STAMP_OFF, HEADER

NSLOT, SLOT, XOFF, NSTAGE = 5, 30720, 16384, 16
ROT = OPT("ROT", 6)
WS = OPT("WS", 8)
PDEPTH = OPT('PDEPTH', 3)
SPIN = 1 << 14
NAME = "standalone__spectral_fnet__prompt_kernel"
DF_END = DOFF + 784 * 1024
LFOFF = DF_END
WS_BYTES = LFOFF + 32 * 128
LDS_DEC = NSLOT * SLOT
LDS_XCH = 114688
NB1 = OPT("NB1", 2)
NB2 = OPT("NB2", 10)
NBG = OPT("NBG", 2)


def gen(a):
    name = NAME
    a.raw(f".globl {name}")
    a.raw(".p2align 8")
    a.raw(f".type {name},@function")
    a.label(name)
    sA, sB, sWS, sE = 16, 20, 24, 28
    sCl, sDc = 32, 34
    sW = 36
    sT0, sT1, sT2, sT3 = 37, 38, 39, 40
    sH, sRB, sJ = 41, 42, 43
    sRot, sBase, sOff, sOff2, sSlot, sIt = 46, 47, 48, 49, 50, 51
    sFl, sLoc, sByte = 52, 53, 54
    sR = 55
    sTab = 44
    sD0, sD1 = 60, 61
    sPQ = 62
    sPL = 63

    vLane = 1
    vT = 2
    vCb0 = 6
    vXb0 = 8
    vCb = 10
    vXb = 12
    vL16 = 14
    vO = 16
    FX, FY = 16, 52
    ACC = 88
    DFR = 144
    ACC2 = 88
    PB = 16

    def cfrag(b, n):
        return b + n * 4

    def xfrag(b, m):
        return b + 8 + m * 4

    def acc(m, n):
        return ACC + (m * 2 + n) * 4

    def df(ml, e):
        return DFR + (ml * 2 + e) * 4

    st = Stamps(a, 64, 0)
    a("s_cmp_ge_u32 s2, 256")
    a("s_cbranch_scc1 L_done")
    st()
    a("s_load_dwordx8 s[4:11], s[0:1], 0")
    a("s_load_dwordx4 s[12:15], s[0:1], 32")
    a("s_load_dwordx4 s[56:59], s[0:1], 48")
    a(f"v_lshrrev_b32 v{vT}, 6, v0")
    a(f"v_and_b32 v{vLane}, 63, v0")
    a(f"v_readfirstlane_b32 s{sW}, v{vT}")
    if OPT("CODEPF", 2) == 2:
        a(f"s_cmp_lg_u32 s{sW}, 7")
        a("s_cbranch_scc1 L_nopf")
        a("s_getpc_b64 s[60:61]")
        a.label("L_pc")
        a(f"v_lshlrev_b32 v{vT}, 7, v{vLane}")
        a(f"v_min_u32 v{vT}, L_end-L_pc-4, v{vT}")
        a(f"global_load_dword v{vT+2}, v{vT}, s[60:61]")
        a.label("L_nopf")
    a(f"s_and_b32 s{sT0}, s2, 7")
    a(f"s_lshr_b32 s{sT1}, s2, 3")
    a(f"s_and_b32 s{sJ}, s{sT1}, 3")
    if OPT("MAPA"):
        a(f"s_and_b32 s{sH}, s{sT0}, 1")
        a(f"s_lshr_b32 s{sRB}, s{sT0}, 1")
        a(f"s_lshr_b32 s{sRot}, s{sT1}, 2")
        a(f"s_lshl_b32 s{sT2}, s{sRot}, 2")
        a(f"s_add_u32 s{sRB}, s{sRB}, s{sT2}")
    else:
        a(f"s_lshr_b32 s{sH}, s{sT1}, 2")
        a(f"s_and_b32 s{sH}, s{sH}, 1")
        a(f"s_lshr_b32 s{sRot}, s{sT1}, 3")
        a(f"s_lshl_b32 s{sRB}, s{sRot}, 3")
        a(f"s_add_u32 s{sRB}, s{sRB}, s{sT0}")
    if ROT == 2:
        a(f"s_add_u32 s{sRot}, s{sRot}, s{sJ}")
        a(f"s_lshl_b32 s{sRot}, s{sRot}, 2")
    elif ROT == 5:
        a(f"s_lshl_b32 s{sRot}, s{sRot}, 2")
        a(f"s_lshr_b32 s{sT2}, s{sJ}, 1")
        a(f"s_lshl_b32 s{sT2}, s{sT2}, 3")
        a(f"s_add_u32 s{sRot}, s{sRot}, s{sT2}")
    elif ROT == 1:
        a(f"s_lshl_b32 s{sRot}, s{sRot}, 2")
    elif ROT == 6:
        a(f"s_mul_i32 s{sRot}, s{sRot}, {OPT('XO', 4)}")
        a(f"s_lshr_b32 s{sT2}, s{sJ}, {OPT('JS', 1)}")
        a(f"s_mul_i32 s{sT2}, s{sT2}, {OPT('JO', WS // 2)}")
        a(f"s_add_u32 s{sRot}, s{sRot}, s{sT2}")
        a(f"s_and_b32 s{sRot}, s{sRot}, {WS-1}")
    elif ROT == 8:
        def order(ws, p):
            o, base = [], 0
            for w_ in ws:
                o += [base + ((i + p * w_ // 2) % w_) for i in range(w_)]
                base += w_
            assert sorted(o) == list(range(16))
            return sum(v << (4 * i) for i, v in enumerate(o))
        WA = [int(x) for x in os.environ.get("WA", "8,8").split(",")]
        WB = [int(x) for x in os.environ.get("WB", "4,8,4").split(",")]
        a(f"s_lshr_b32 s{sT2}, s{sJ}, 1")
        a(f"s_add_u32 s{sT2}, s{sT2}, s{sRot}")
        a(f"s_and_b32 s{sT2}, s{sT2}, 1")
        if OPT("GSEL", 0) == 0:
            a(f"s_mov_b32 s{sT3}, s{sH}")
        else:
            a(f"s_lshr_b32 s{sT3}, s{sRot}, 1")
        a(f"s_lshl_b32 s{sT3}, s{sT3}, 1")
        a(f"s_add_u32 s{sT2}, s{sT2}, s{sT3}")
        for c, (ws_, p) in enumerate(((WA, 0), (WA, 1), (WB, 0), (WB, 1))):
            t = order(ws_, p)
            if c == 0:
                a(f"s_mov_b32 s{sTab}, {t & 0xffffffff:#x}")
                a(f"s_mov_b32 s{sTab+1}, {t >> 32:#x}")
            else:
                a(f"s_cmp_eq_u32 s{sT2}, {c}")
                a(f"s_cselect_b32 s{sTab}, {t & 0xffffffff:#x}, s{sTab}")
                a(f"s_cselect_b32 s{sTab+1}, {t >> 32:#x}, s{sTab+1}")
        a(f"s_and_b32 s{sRot}, s{sTab}, 15")
    elif ROT == 7:
        a(f"s_lshr_b32 s{sRot}, s{sRot}, 1")
        a(f"s_lshr_b32 s{sT2}, s{sJ}, 1")
        a(f"s_xor_b32 s{sRot}, s{sRot}, s{sT2}")
        a(f"s_lshl_b32 s{sRot}, s{sRot}, 3")
    else:
        a(f"s_mov_b32 s{sRot}, 0")
    a(f"s_and_b32 s{sRot}, s{sRot}, 15")
    a(f"v_lshlrev_b32 v{vL16}, 4, v{vLane}")
    a(f"s_xor_b32 s{sR}, s{sW}, {OPT('RX', 4)}")
    if OPT("REORD", 1):
        a(f"s_cmp_eq_u32 s{sW}, 5")
        a("s_cbranch_scc1 L_ldx")
        a(f"s_cmp_ge_u32 s{sW}, 6")
        a("s_cbranch_scc1 L_aux")
        a(f"s_cmp_lt_u32 s{sW}, 4")
        a("s_cbranch_scc1 L_comp")
    else:
        a(f"s_cmp_eq_u32 s{sW}, 4")
        a("s_cbranch_scc1 L_ldc")
        a(f"s_cmp_eq_u32 s{sW}, 5")
        a("s_cbranch_scc1 L_ldx")
        a(f"s_cmp_ge_u32 s{sW}, 6")
        a("s_cbranch_scc1 L_aux")

    def p2_offsets():
        a(f"s_and_b32 s{sT0}, s{sR}, 1")
        a(f"s_mul_i32 s{sT0}, s{sT0}, 14")
        a(f"s_lshr_b32 s{sT1}, s{sR}, 1")
        a(f"s_mul_i32 s{sT2}, s{sT1}, 56")
        a(f"s_add_u32 s{sT0}, s{sT0}, s{sT2}")
        a(f"s_mul_i32 s{sT2}, s{sJ}, 196")
        a(f"s_add_u32 s{sT0}, s{sT0}, s{sT2}")
        a(f"s_lshl_b32 s{sT0}, s{sT0}, 10")
        a(f"s_add_u32 s{sD0}, s{sT0}, {DOFF}")
        a(f"s_add_u32 s{sD1}, s{sT0}, {DOFF + 28*1024}")
        a(f"s_cmp_eq_u32 s{sT1}, 3")
        a(f"s_cselect_b32 s{sD1}, 0x7f000000, s{sD1}")
        a(f"s_and_b32 s{sT0}, s{sW}, 3")
        if OPT("SPLIT2", 0):
            a(f"s_mov_b32 s{sT1}, 0")
        else:
            a(f"s_lshr_b32 s{sT1}, s{sW}, 2")
            a(f"s_mul_i32 s{sT1}, s{sT1}, 14")
        a(f"s_mul_i32 s{sPL}, s{sT0}, 28")
        a(f"s_add_u32 s{sPL}, s{sPL}, s{sT1}")
        a(f"s_lshl_b32 s{sPL}, s{sPL}, 10")
        a(f"s_lshr_b32 s{sT2}, s{sT0}, 1")
        a(f"s_lshl_b32 s{sT2}, s{sT2}, 7")
        a(f"s_and_b32 s{sT0}, s{sT0}, 1")
        a(f"s_add_u32 s{sT0}, s{sT0}, s{sT2}")
        a(f"s_lshl_b32 s{sT2}, s{sRB}, 2")
        a(f"s_add_u32 s{sT0}, s{sT0}, s{sT2}")
        a(f"s_lshl_b32 s{sT2}, s{sH}, 1")
        a(f"s_add_u32 s{sT0}, s{sT0}, s{sT2}")
        a(f"s_mul_i32 s{sT0}, s{sT0}, 28")
        a(f"s_add_u32 s{sT0}, s{sT0}, s{sT1}")
        a(f"s_lshl_b32 s{sPQ}, s{sT0}, 10")
        if OPT("NOPQ"):
            a(f"s_mov_b32 s{sPQ}, 0x7f000000")

    def dloads(q, only0=False):
        ins = []
        idx = list(range(q * 7, q * 7 + 7))
        for t in idx:
            e, ml = t // 14, t % 14
            r = df(ml, e)
            grp, off = ml // 4, (ml % 4) * 1024
            ins.append((grp, f"buffer_load_dwordx4 v[{r}:{r+3}], v{{V}}, s[{sWS}:{sWS+3}], s{sD0+e} offen offset:{off} sc1"))
        out = []
        for grp, i in ins:
            out.append(i.replace("{V}", str(vT + grp)))
        return out

    def dload_setup():
        a(f"v_mov_b32 v{vT}, v{vL16}")
        for g_ in range(1, 4):
            a(f"v_add_u32 v{vT+g_}, {4096*g_}, v{vL16}")

    a.label("L_comp")
    a(f"v_and_b32 v{vT}, 15, v{vLane}")
    a(f"v_lshrrev_b32 v{vT+1}, 4, v{vLane}")
    a(f"v_lshrrev_b32 v{vT+3}, 1, v{vT}")
    a(f"v_xor_b32 v{vT+2}, v{vT+1}, v{vT+3}")
    a(f"v_lshlrev_b32 v{vT+2}, 4, v{vT+2}")
    a(f"v_lshl_add_u32 v{vCb0}, v{vT}, 7, v{vT+2}")
    a(f"s_lshl_b32 s{sT0}, s{sW}, 11")
    a(f"v_add_u32 v{vCb0}, s{sT0}, v{vCb0}")
    a(f"v_xor_b32 v{vCb0+1}, 64, v{vCb0}")
    a(f"v_lshlrev_b32 v{vT+2}, 3, v{vT+1}")
    a(f"v_lshrrev_b32 v{vT+3}, 2, v{vT}")
    a(f"v_add_u32 v{vT+2}, v{vT+2}, v{vT+3}")
    a(f"v_and_b32 v{vT+3}, 1, v{vT+1}")
    a(f"v_lshlrev_b32 v{vT+3}, 2, v{vT+3}")
    a(f"v_add_u32 v{vXb0}, v{vT+2}, v{vT+3}")
    a(f"v_xor_b32 v{vT+3}, 4, v{vT+3}")
    a(f"v_add_u32 v{vXb0+1}, v{vT+2}, v{vT+3}")
    a(f"v_and_b32 v{vT}, 3, v{vT}")
    a(f"v_lshlrev_b32 v{vT}, 3, v{vT}")
    a(f"v_add_u32 v{vT}, {XOFF}, v{vT}")
    a(f"v_mov_b32 v{vT+1}, 224")
    a(f"v_mad_u32_u24 v{vXb0}, v{vXb0}, v{vT+1}, v{vT}")
    a(f"v_mad_u32_u24 v{vXb0+1}, v{vXb0+1}, v{vT+1}, v{vT}")
    for r in range(36 + 56):
        a(f"v_mov_b32 v{FY+r}, 0")
    for r in range(2):
        a(f"v_mov_b32 v{vCb+r}, v{vCb0+r}")
        a(f"v_mov_b32 v{vXb+r}, v{vXb0+r}")
    a(f"v_add_u32 v{vL16+1}, 4096, v{vL16}")
    a(f"s_lshl_b32 s{sOff}, s{sH}, 7")
    a(f"s_lshl_b32 s{sT1}, s{sRB}, 2")
    a(f"s_add_u32 s{sOff}, s{sOff}, s{sT1}")
    a(f"s_add_u32 s{sOff}, s{sOff}, s{sW}")
    a(f"s_mul_i32 s{sOff}, s{sOff}, 28")
    a(f"s_mul_i32 s{sT1}, s{sJ}, 7")
    a(f"s_add_u32 s{sOff}, s{sOff}, s{sT1}")
    a(f"s_lshl_b32 s{sOff}, s{sOff}, 10")
    p2_offsets()
    dload_setup()
    a("s_waitcnt lgkmcnt(0)")
    srd(a, sWS, 58, WS_BYTES)

    def frag_reads(b, kk):
        ins = []

        def xr(m):
            return [f"ds_read_b64_tr_b16 v[{xfrag(b,m)}:{xfrag(b,m)+1}], v{vXb} offset:{m*32+kk*7168}",
                    f"ds_read_b64_tr_b16 v[{xfrag(b,m)+2}:{xfrag(b,m)+3}], v{vXb+1} offset:{m*32+kk*7168}"]
        ins += xr(0)
        for n in range(2):
            ins.append(f"ds_read_b128 v[{cfrag(b,n)}:{cfrag(b,n)+3}], v{vCb+kk} offset:{n*8192}")
        for m in range(1, 7):
            ins += xr(m)
        return ins

    def mfmas(b):
        return [f"v_mfma_f32_16x16x32_bf16 v[{acc(m,n)}:{acc(m,n)+3}], v[{xfrag(b,m)}:{xfrag(b,m)+3}], "
                f"v[{cfrag(b,n)}:{cfrag(b,n)+3}], v[{acc(m,n)}:{acc(m,n)+3}]"
                for m in range(7) for n in range(2)]

    a(f"s_mov_b32 s{sSlot}, 0")
    a(f"s_mov_b32 s{sIt}, 0")
    if OPT("TRACE"):
        a("s_mov_b32 s98, 5")
    DIT = OPT("DIT", 0)
    DQ0 = OPT("DQ0", 4)
    a.label("L_loop")
    a("s_waitcnt lgkmcnt(0)")
    a("s_barrier")
    if DIT:
        a(f"s_cmp_eq_u32 s{sIt}, {DIT}")
        a("s_cbranch_scc1 L_dl")
        a.label("L_dl_back")
    if OPT("TRACE"):
        a("s_memtime s[96:97]")
        a("s_waitcnt lgkmcnt(0)")
        a(f"s_mov_b32 m0, s98")
        a("s_add_u32 s98, s98, 1")
        a(f"v_writelane_b32 v0, s96, m0")
    for i in interleave(mfmas(FY), frag_reads(FX, 0) + [[f"s_add_u32 s{sSlot}, s{sSlot}, {SLOT}",
                                                          f"s_cmp_eq_u32 s{sSlot}, {SLOT*NSLOT}",
                                                          f"s_cselect_b32 s{sSlot}, 0, s{sSlot}"]], per=2):
        a(i)
    a("s_waitcnt lgkmcnt(0)")
    nxt = [f"v_add_u32 v{vCb+r}, s{sSlot}, v{vCb0+r}" for r in range(2)] + \
          [f"v_add_u32 v{vXb+r}, s{sSlot}, v{vXb0+r}" for r in range(2)] + \
          [[f"s_add_u32 s{sIt}, s{sIt}, 1", f"s_cmp_lt_u32 s{sIt}, {NSTAGE}"]]
    for i in interleave(mfmas(FX), frag_reads(FY, 1) + nxt, per=2):
        a(i)
    a("s_cbranch_scc1 L_loop")
    a("s_waitcnt lgkmcnt(0)")
    for i in mfmas(FY):
        a(i)
    if not OPT("FINE"):
        st()
    a("s_nop 4")
    for m in range(7):
        p, q = acc(m, 0), acc(m, 1)
        o = FX + m * 4
        a(f"v_cvt_pk_bf16_f32 v{o}, v{p}, v{p+1}")
        a(f"v_cvt_pk_bf16_f32 v{o+1}, v{p+2}, v{p+3}")
        a(f"v_cvt_pk_bf16_f32 v{o+2}, v{q}, v{q+1}")
        a(f"v_cvt_pk_bf16_f32 v{o+3}, v{q+2}, v{q+3}")
        a(f"buffer_store_dwordx4 v[{o}:{o+3}], v{vL16 + (m // 4)}, s[{sWS}:{sWS+3}], s{sOff} offen offset:{(m%4)*1024} {'' if OPT('PLAINST') else 'sc1'}")
    a.label("L_st_done")
    if DIT:
        a("s_waitcnt vmcnt(0)")
        a("s_branch L_p2")
        a.label("L_dl")
        for q in range(4):
            for i in dloads(q):
                a(i)
        a("s_branch L_dl_back")
    elif OPT("DLATE", 1):
        DPRE = OPT("DPRE", 2)
        for q in range(DPRE):
            for i in dloads(q):
                a(i)
        a(f"s_waitcnt vmcnt({7*DPRE})")
        a("s_barrier")
        if OPT("P2", 1):
            a("s_barrier")
        assert DPRE == 2 and DQ0 == 4
        a(f"s_cmp_ge_u32 s{sR}, 6")
        a("s_cbranch_scc1 L_p2_after")
        for q in range(DPRE, DQ0 - OPT("DPOST", 1) * OPT("SPLIT2", 0)):
            for i in dloads(q):
                a(i)
        a("s_branch L_p2_after")
    else:
        for q in range(4):
            for i in dloads(q):
                a(i)
        a("s_waitcnt vmcnt(28)")

    a.label("L_p2")
    a("s_barrier")
    if OPT("P2", 1):
        a(f"s_cmp_eq_u32 s{sW}, 6")
        a("s_cbranch_scc1 L_p2_after")
        a("s_barrier")
    a.label("L_p2_after")
    if not OPT("FINE"):
        st()
    for r in range(16):
        a(f"v_mov_b32 v{ACC2+r}, 0")
    a(f"s_cmp_eq_u32 s{sW}, 6")
    a("s_cbranch_scc0 L_p2_wait")
    a(f"v_mov_b32 v{vT}, 0")
    a(f"s_mov_b32 s{sIt}, 0")
    a(f"s_cmp_eq_u32 s{sLoc}, 1")
    a("s_cbranch_scc1 L_pub_loc")
    a(f"s_mov_b32 s{sT0}, 0x10000000")
    a(f"s_atomic_add s{sT0}, s[{sCl}:{sCl+1}], 0")
    if OPT("P2", 1):
        a("s_barrier")
    a.label("L_poll2")
    a(f"s_mov_b32 s{sT2}, 0")
    a(f"s_atomic_add s{sT2}, s[{sCl}:{sCl+1}], 0 glc")
    a("s_waitcnt lgkmcnt(0)")
    a(f"s_add_u32 s{sIt}, s{sIt}, 1")
    a(f"s_lshr_b32 s{sT2}, s{sT2}, 28")
    a(f"s_cmp_eq_u32 s{sT2}, 8")
    a("s_cbranch_scc1 L_poll_done")
    a("s_sleep 16")
    a(f"s_cmp_lt_u32 s{sIt}, {SPIN}")
    a("s_cbranch_scc1 L_poll2")
    a("s_branch L_poll_done")
    a.label("L_pub_loc")
    a(f"s_lshl_b32 s{sT1}, s{sRB}, 7")
    a(f"s_add_u32 s{sT1}, s{sT1}, {LFOFF}")
    a(f"s_and_b32 s{sT0}, s{sFl}, 7")
    a(f"s_lshl_b32 s{sT0}, s{sT0}, 2")
    a(f"s_add_u32 s{sT0}, s{sT0}, s{sT1}")
    a(f"v_mov_b32 v{vT+1}, 1")
    a(f"v_lshlrev_b32 v{vT+3}, 2, v{vLane}")
    a("s_mov_b64 exec, 1")
    a(f"buffer_store_dword v{vT+1}, v{vT}, s[{sWS}:{sWS+3}], s{sT0} offen")
    a("s_mov_b64 exec, 0xff")
    if OPT("P2", 1):
        a(f"buffer_load_dword v{vT+2}, v{vT+3}, s[{sWS}:{sWS+3}], s{sT1} offen sc1")
        a("s_barrier")
        a("s_branch L_poll3b")
    a.label("L_poll3")
    a(f"buffer_load_dword v{vT+2}, v{vT+3}, s[{sWS}:{sWS+3}], s{sT1} offen sc1")
    a.label("L_poll3b")
    a("s_waitcnt vmcnt(0)")
    a(f"v_cmp_ne_u32 vcc, 1, v{vT+2}")
    a(f"s_add_u32 s{sIt}, s{sIt}, 1")
    a("s_nop 3")
    a("s_cmp_eq_u64 vcc, 0")
    a("s_cbranch_scc1 L_poll_done")
    a(f"s_cmp_lt_u32 s{sIt}, {SPIN}")
    a("s_cbranch_scc1 L_poll3")
    a.label("L_poll_done")
    a("s_mov_b64 exec, -1")
    a.label("L_p2_wait")
    a(f"s_and_b32 s{sT0}, s{sW}, 1")
    a(f"s_mul_i32 s{sT0}, s{sT0}, 14336")
    a(f"v_add_u32 v{vCb}, s{sT0}, v{vL16}")
    a(f"v_add_u32 v{vCb+1}, 57344, v{vCb}")
    a(f"s_cmp_ge_u32 s{sR}, 6")
    a("s_cselect_b64 vcc, -1, 0")
    if OPT("WDRAIN"):
        a("s_waitcnt vmcnt(0)")
    a("s_barrier")
    st()
    RB_ = [int(x) for x in os.environ.get("RNDS", "0,2,5,8,11,14").split(",")]
    AHEAD = OPT("AHEAD", 2)

    def pqdma(rnd):
        if rnd >= len(RB_) - 1:
            return
        lo, hi = RB_[rnd], RB_[rnd + 1]
        for i in range(lo, hi):
            if (i - lo) % 4 == 0:
                a(f"s_add_u32 m0, s{sPL}, {i*1024}")
                a(f"s_add_u32 s{sT1}, s{sPQ}, {i*1024}")
            a(f"buffer_load_dwordx4 v{vL16}, s[{sWS}:{sWS+3}], s{sT1} offen offset:{((i-lo)%4)*1024} {'' if OPT('PQPLAIN') else 'sc1 '}lds")
    lab = [0]
    seq = []
    dq = [DQ0]

    def dnext():
        if dq[0] >= 4:
            return
        lab[0] += 1
        a(f"s_cmp_ge_u32 s{sW}, 4")
        a(f"s_cbranch_scc1 L_dq{lab[0]}")
        for i in dloads(dq[0]):
            a(i)
        a.label(f"L_dq{lab[0]}")
        seq.append(('q', dq[0], 7))
        dq[0] += 1

    def pq_issue(rnd):
        if rnd < len(RB_) - 1:
            pqdma(rnd)
            seq.append(('r', rnd, RB_[rnd + 1] - RB_[rnd]))

    def wait_round(rnd):
        hi = RB_[rnd + 1]
        qneed = (2 * hi - 1) // 7
        last = -1
        for k, (t, i, n) in enumerate(seq):
            if (t == 'r' and i <= rnd) or (t == 'q' and i <= qneed):
                last = k
        assert dq[0] > qneed, "D quarter not issued yet"
        cw = sum(n for t, i, n in seq[last + 1:])
        lastr = max(k for k, (t, i, n) in enumerate(seq) if t == 'r' and i <= rnd)
        hw = sum(n for t, i, n in seq[lastr + 1:] if t == 'r')
        if cw == hw:
            a(f"s_waitcnt vmcnt({cw})")
        else:
            lab[0] += 1
            a(f"s_cmp_ge_u32 s{sW}, 4")
            a(f"s_cbranch_scc1 L_wh{lab[0]}")
            a(f"s_waitcnt vmcnt({cw})")
            a(f"s_branch L_wd{lab[0]}")
            a.label(f"L_wh{lab[0]}")
            a(f"s_waitcnt vmcnt({hw})")
            a.label(f"L_wd{lab[0]}")

    if not OPT("SPLIT2", 0):
        for r_ in range(AHEAD):
            pq_issue(r_)
        dnext()

    def preads(ml):
        b = PB + (ml % 3) * 16
        return [f"ds_read_b128 v[{b+(hh*2+tl)*4}:{b+(hh*2+tl)*4+3}], v{vCb+hh} offset:{(tl*28+ml)*1024}"
                for hh in range(2) for tl in range(2)]

    def mf2(ml):
        b = PB + (ml % 3) * 16
        return [f"v_mfma_f32_16x16x32_bf16 v[{ACC2+(e*2+tl)*4}:{ACC2+(e*2+tl)*4+3}], v[{df(ml,e)}:{df(ml,e)+3}], "
                f"v[{b+(hh*2+tl)*4}:{b+(hh*2+tl)*4+3}], v[{ACC2+(e*2+tl)*4}:{ACC2+(e*2+tl)*4+3}]"
                for e in range(2) for hh in range(2) for tl in range(2)]

    NR = len(RB_) - 1

    def process(rnd, tag, mid=None):
        lo, hi = RB_[rnd], RB_[rnd + 1]
        for i in preads(lo) + (preads(lo + 1) if lo + 1 < hi else []):
            a(i)
        if mid:
            mid()
        for ml in range(lo, hi):
            nxt_ = preads(ml + 2) if ml + 2 < hi else []
            a(f"s_waitcnt lgkmcnt({4 if ml + 1 < hi else 0})")
            mm = mf2(ml)
            for i in interleave(mm[:4], nxt_, per=1):
                a(i)
            a(f"s_cbranch_vccnz L_{tag}{ml}")
            for i in mm[4:]:
                a(i)
            a.label(f"L_{tag}{ml}")

    def hdma(rnd):
        if rnd >= NR:
            return
        lo, hi = RB_[rnd], RB_[rnd + 1]
        for half in range(2):
            for i in range(lo, hi):
                if (i - lo) % 4 == 0:
                    a(f"s_add_u32 m0, s{sPL}, {(14*half+i)*1024}")
                    a(f"s_add_u32 s{sT1}, s{sPQ}, {(14*half+i)*1024}")
                a(f"buffer_load_dwordx4 v{vL16}, s[{sWS}:{sWS+3}], s{sT1} offen offset:{((i-lo)%4)*1024} sc1 lds")

    if OPT("SPLIT2", 0):
        LAG = OPT("LAG", 2)
        a(f"s_cmp_lt_u32 s{sW}, 4")
        a("s_cbranch_scc1 L_c2")
        for r_ in range(AHEAD):
            hdma(r_)
        for rnd in range(NR):
            a(f"s_waitcnt vmcnt({2*(RB_[min(rnd + AHEAD, NR)] - RB_[rnd+1])})")
            a("s_barrier")
            process(rnd, "hk", lambda: hdma(rnd + AHEAD))
        a("s_branch L_p2_end")
        a.label("L_c2")
        a("s_cbranch_vccnz L_c2_nod")
        for q in range(DQ0 - OPT("DPOST", 1), DQ0):
            for i in dloads(q):
                a(i)
        a.label("L_c2_nod")
        for rnd in range(NR + LAG):
            if rnd < NR:
                a("s_barrier")
            if rnd == LAG:
                a("s_waitcnt vmcnt(0)")
            if rnd >= LAG:
                process(rnd - LAG, "ck")
        a.label("L_p2_end")

    for rnd in range(0 if OPT("SPLIT2", 0) else NR):
        lo, hi = RB_[rnd], RB_[rnd + 1]
        issued = RB_[min(rnd + AHEAD, len(RB_) - 1)]
        if OPT("FINE") and rnd < 2:
            st()
        wait_round(rnd)
        a("s_barrier")
        if OPT("FINE") and rnd < 2:
            st()
            a("s_waitcnt lgkmcnt(0)")
        for i in preads(lo) + (preads(lo + 1) if lo + 1 < hi else []):
            a(i)
        pq_issue(rnd + AHEAD)
        dnext()
        if OPT("WBL2") and rnd == OPT("WBR", 2):
            a(f"s_cmp_lg_u32 s{sW}, 7")
            a("s_cbranch_scc1 L_nowb")
            if OPT("WBL2") == 2:
                a(f"s_lshr_b32 s{sT0}, s2, 3")
                a(f"s_and_b32 s{sT0}, s{sT0}, 7")
                a(f"s_cmp_lg_u32 s{sT0}, 0")
                a("s_cbranch_scc1 L_nowb")
            a("buffer_wbl2 sc1")
            a.label("L_nowb")
        for ml in range(lo, hi):
            nxt_ = preads(ml + 2) if ml + 2 < hi else []
            a(f"s_waitcnt lgkmcnt({4 if ml + 1 < hi else 0})")
            if OPT("SKIPD", 1):
                mm = mf2(ml)
                for i in interleave(mm[:4], nxt_, per=1):
                    a(i)
                a(f"s_cbranch_vccnz L_sk{ml}")
                for i in mm[4:]:
                    a(i)
                a.label(f"L_sk{ml}")
            else:
                for i in interleave(mf2(ml), nxt_, per=1):
                    a(i)
    st()
    a(f"s_lshl_b32 s{sT0}, s{sW}, 11")
    a(f"s_add_u32 s{sT0}, s{sT0}, {LDS_XCH}")
    a(f"s_xor_b32 s{sT1}, s{sT0}, 2048")
    a(f"v_add_u32 v{vT}, s{sT0}, v{vL16}")
    a(f"v_add_u32 v{vT+1}, s{sT1}, v{vL16}")
    srd(a, sA, 14, X_BYTES)
    a(f"v_and_b32 v{vT+2}, 15, v{vLane}")
    a(f"v_mul_u32_u24 v{vT+2}, 896, v{vT+2}")
    a(f"v_lshrrev_b32 v{vT+3}, 4, v{vLane}")
    a(f"v_lshl_add_u32 v{vT+2}, v{vT+3}, 3, v{vT+2}")
    a(f"s_lshl_b32 s{sT0}, s{sRB}, 6")
    a(f"s_lshl_b32 s{sT1}, s{sH}, 5")
    a(f"s_add_u32 s{sT0}, s{sT0}, s{sT1}")
    a(f"s_and_b32 s{sT2}, s{sW}, 1")
    a(f"s_lshl_b32 s{sT1}, s{sT2}, 4")
    a(f"s_add_u32 s{sT0}, s{sT0}, s{sT1}")
    a(f"s_mul_i32 s{sT0}, s{sT0}, 896")
    a(f"s_mul_i32 s{sT1}, s{sJ}, 224")
    a(f"s_add_u32 s{sT0}, s{sT0}, s{sT1}")
    a(f"s_lshr_b32 s{sT1}, s{sR}, 1")
    a(f"s_lshl_b32 s{sT1}, s{sT1}, 6")
    a(f"s_add_u32 s{sT0}, s{sT0}, s{sT1}")
    a(f"s_cmp_eq_u32 s{sT2}, 0")
    a("s_cbranch_scc1 L_x0")
    for e in range(2):
        for k in range(4):
            a(f"v_swap_b32 v{ACC2+(e*2)*4+k}, v{ACC2+(e*2+1)*4+k}")
    a.label("L_x0")
    for e in range(2):
        r = ACC2 + (e * 2 + 1) * 4
        a(f"ds_write_b128 v{vT}, v[{r}:{r+3}] offset:{e*1024}")
    a("s_waitcnt lgkmcnt(0)")
    a("s_barrier")
    for e in range(2):
        a(f"ds_read_b128 v[{PB+e*4}:{PB+e*4+3}], v{vT+1} offset:{e*1024}")
    for e in range(2):
        if e == 1:
            a(f"s_cmp_ge_u32 s{sR}, 6")
            a("s_cbranch_scc1 L_fin")
        a(f"s_waitcnt lgkmcnt({1-e})")
        r = ACC2 + (e * 2) * 4
        for k in range(4):
            a(f"v_add_f32 v{r+k}, v{r+k}, v{PB+e*4+k}")
        a(f"v_cvt_pk_bf16_f32 v{PB+8+e*2}, v{r}, v{r+1}")
        a(f"v_cvt_pk_bf16_f32 v{PB+9+e*2}, v{r+2}, v{r+3}")
        a(f"buffer_store_dwordx2 v[{PB+8+e*2}:{PB+9+e*2}], v{vT+2}, s[{sA}:{sA+3}], s{sT0} offen offset:{e*32} {os.environ.get('OUTPOL', '')}")
    a.label("L_fin")
    if OPT("DBGSTAMP"):
        a("s_waitcnt vmcnt(0)")
        st()
        a("s_waitcnt lgkmcnt(0)")
        a(f"s_xor_b32 s{sT0}, s2, {OPT('DW', 5)}")
        a(f"s_add_u32 s{sT0}, s{sT0}, s{sW}")
        a(f"s_lshl_b32 s{sT0}, s{sT0}, 8")
        srd(a, sA, 56, 32)
        a(f"v_mov_b32 v{vT+1}, 0")
        for i in range(1, st.n):
            a(f"s_sub_u32 s{sT1}, s{64+i*4+2}, s66")
            a(f"v_mov_b32 v{vT}, s{sT1}")
            a(f"buffer_store_dword v{vT}, v{vT+1}, s[{sA}:{sA+3}], s{sT0} offen offset:{i*4}")
    if OPT("STAMP"):
        a(f"s_cmp_ge_u32 s{sW}, 4")
        a("s_cbranch_scc1 L_done")
        a("s_waitcnt vmcnt(0)")
        st.dump(sWS, sT0, vT, sW)
    if OPT("TRACE"):
        a(f"v_writelane_b32 v0, s64, 0")
        a(f"s_lshl_b32 s{sT0}, s2, 2")
        a(f"s_add_u32 s{sT0}, s{sT0}, s{sW}")
        a(f"s_lshl_b32 s{sT0}, s{sT0}, 8")
        a(f"s_add_u32 s{sT0}, s{sT0}, {STAMP_OFF + 3 * (1 << 20)}")
        a(f"v_lshlrev_b32 v{vT}, 2, v{vLane}")
        a(f"buffer_store_dword v0, v{vT}, s[{sWS}:{sWS+3}], s{sT0} offen")
    a("s_endpgm")

    sth = Stamps(a, 64, 2)

    def loader_loop(tag, n, issue, stepbytes):
        adv = [f"s_add_u32 s{sRot}, s{sRot}, 1",
               f"s_and_b32 s{sRot}, s{sRot}, 15",
               f"s_mul_i32 s{sOff}, s{sRot}, {stepbytes}",] if ROT != 6 else [
               f"s_add_u32 s{sRot}, s{sRot}, 1",
               f"s_and_b32 s{sRot}, s{sRot}, {WS-1}",
               f"s_add_u32 s{sOff}, s{sIt}, 1",
               f"s_and_b32 s{sOff}, s{sOff}, {16-WS}",
               f"s_add_u32 s{sOff}, s{sOff}, s{sRot}",
               f"s_mul_i32 s{sOff}, s{sOff}, {stepbytes}"]
        if ROT == 8:
            adv = [f"s_lshr_b64 s[{sTab}:{sTab+1}], s[{sTab}:{sTab+1}], 4",
                   f"s_and_b32 s{sOff}, s{sTab}, 15",
                   f"s_mul_i32 s{sOff}, s{sOff}, {stepbytes}"]
        adv += [
               f"s_add_u32 s{sOff}, s{sOff}, s{sBase}",
               f"s_add_u32 s{sSlot}, s{sSlot}, {SLOT}",
               f"s_cmp_eq_u32 s{sSlot}, {SLOT*NSLOT}",
               f"s_cselect_b32 s{sSlot}, 0, s{sSlot}"]
        a(f"s_mul_i32 s{sOff}, s{sRot}, {stepbytes}")
        a(f"s_add_u32 s{sOff}, s{sOff}, s{sBase}")
        a(f"s_mov_b32 s{sSlot}, 0")
        a(f"s_mov_b32 s{sIt}, 0")
        if OPT("LSTAMP"):
            sth.n = 1
            sth()
        if OPT("LPRIO", 0):
            a(f"s_setprio {OPT('LPRIO', 0)}")
        a.label(f"L_{tag}_loop")
        a(f"s_cmp_lt_u32 s{sIt}, {PDEPTH}")
        a(f"s_cbranch_scc1 L_{tag}_issue")
        a(f"s_waitcnt vmcnt({(PDEPTH-1)*n})")
        a("s_barrier")
        a.label(f"L_{tag}_issue")
        for i in issue():
            a(i)
        for i in adv:
            a(i)
        a(f"s_add_u32 s{sIt}, s{sIt}, 1")
        a(f"s_cmp_lt_u32 s{sIt}, {NSTAGE}")
        a(f"s_cbranch_scc1 L_{tag}_loop")
        a("s_branch L_ldtail")

    a.label("L_ldc")
    a(f"v_lshrrev_b32 v{vT}, 3, v{vLane}")
    a(f"v_lshlrev_b32 v{vT}, 12, v{vT}")
    a(f"v_and_b32 v{vT+1}, 7, v{vLane}")
    a(f"v_lshrrev_b32 v{vT+2}, 4, v{vLane}")
    a(f"v_xor_b32 v{vT+1}, v{vT+1}, v{vT+2}")
    a(f"v_lshl_add_u32 v{vO}, v{vT+1}, 4, v{vT}")
    a(f"v_xor_b32 v{vT+1}, 4, v{vT+1}")
    a(f"v_lshl_add_u32 v{vO+1}, v{vT+1}, 4, v{vT}")
    a(f"v_add_u32 v{vO+1}, {8*4096-1024}, v{vO+1}")
    a(f"v_add_u32 v{vO+2}, {16*4096-2048}, v{vO}")
    a(f"v_add_u32 v{vO+3}, {16*4096-2048}, v{vO+1}")
    a(f"s_lshl_b32 s{sBase}, s{sRB}, 18")
    a(f"s_lshl_b32 s{sT0}, s{sH}, 11")
    a(f"s_add_u32 s{sBase}, s{sBase}, s{sT0}")
    a("s_waitcnt lgkmcnt(0)")
    srd(a, sA, 6, C_BYTES)
    srd(a, sB, 8, C_BYTES)

    def issue_c():
        ins = [f"s_add_u32 s{sOff2}, s{sOff}, {32*4096}"]
        for grp in range(4):
            s_ = sA if grp < 2 else sB
            o_ = sOff if grp % 2 == 0 else sOff2
            ins.append(f"s_add_u32 m0, s{sSlot}, {grp*4096}")
            ins.append("s_nop 0")
            for q in range(4):
                ins.append(f"buffer_load_dwordx4 v{vO+q}, s[{s_}:{s_+3}], s{o_} offen offset:{q*1024} lds")
        return ins
    loader_loop("ldc", 16, issue_c, 128)

    a.label("L_ldx")
    for q in range(7):
        if q:
            a(f"v_add_u32 v{vT}, {64*q}, v{vLane}")
            src = vT
        else:
            src = vLane
        a(f"v_mul_u32_u24 v{vT+1}, 4682, v{src}")
        a(f"v_lshrrev_b32 v{vT+1}, 16, v{vT+1}")
        a(f"v_lshlrev_b32 v{vT+2}, 4, v{src}")
        a(f"v_mul_u32_u24 v{vT+3}, 224, v{vT+1}")
        a(f"v_sub_u32 v{vT+2}, v{vT+2}, v{vT+3}")
        a(f"v_lshrrev_b32 v{vT+3}, 1, v{vT+1}")
        a(f"v_and_b32 v{vT+3}, 4, v{vT+3}")
        a(f"v_xor_b32 v{vT+1}, v{vT+1}, v{vT+3}")
        a(f"v_mul_u32_u24 v{vT+1}, 896, v{vT+1}")
        a(f"v_add_u32 v{vO+q}, v{vT+2}, v{vT+1}")
        a(f"v_add_u32 v{vO+q+7}, {32*896 - 1024*((q+7)%4)}, v{vO+q}")
        if q % 4:
            a(f"v_subrev_u32 v{vO+q}, {1024*(q%4)}, v{vO+q}")
    a(f"s_mul_i32 s{sBase}, s{sH}, {1024*896}")
    a(f"s_mul_i32 s{sT0}, s{sJ}, 224")
    a(f"s_add_u32 s{sBase}, s{sBase}, s{sT0}")
    a("s_waitcnt lgkmcnt(0)")
    srd(a, sA, 4, X_BYTES)

    def issue_x():
        ins = []
        for q in range(14):
            if q % 4 == 0:
                ins.append(f"s_add_u32 m0, s{sSlot}, {XOFF + q*1024}")
                ins.append("s_nop 0")
            ins.append(f"buffer_load_dwordx4 v{vO+q}, s[{sA}:{sA+3}], s{sOff} offen offset:{(q%4)*1024} lds")
        return ins
    loader_loop("ldx", 14, issue_x, 64 * 896)

    a.label("L_ldtail")
    if OPT("LPRIO", 0):
        a("s_setprio 0")
    if OPT("LSTAMP"):
        srd(a, sWS, 58, WS_BYTES)
        a(f"s_sub_u32 s{sT3}, s{sW}, 4")
        sth.dump(sWS, sT0, vT, sT3)
    srd(a, sWS, 58, WS_BYTES)
    p2_offsets()
    dload_setup()
    DS = [int(c) for c in os.environ.get("DSCHED", "121")]
    assert sum(DS) == 4 and len(DS) == PDEPTH
    nd = 0
    for k in range(PDEPTH):
        a(f"s_waitcnt vmcnt({(PDEPTH-1-k)*14 + 7*nd})")
        a("s_barrier")
        for q in range(nd, nd + DS[k]):
            for i in dloads(q):
                a(i)
        nd += DS[k]
    a("s_branch L_p2")

    a.label("L_aux")
    a(f"s_lshl_b32 s{sFl}, s{sRB}, 3")
    a(f"s_lshl_b32 s{sT0}, s{sH}, 2")
    a(f"s_add_u32 s{sFl}, s{sFl}, s{sT0}")
    a(f"s_add_u32 s{sFl}, s{sFl}, s{sJ}")
    a(f"s_mov_b32 s{sIt}, 0")
    a("s_waitcnt lgkmcnt(0)")
    srd(a, sWS, 58, WS_BYTES)
    a(f"s_cmp_eq_u32 s{sW}, 7")
    a("s_cbranch_scc1 L_aux7")
    a(f"v_and_b32 v{vT}, 15, v{vLane}")
    a(f"v_mul_u32_u24 v{vT}, 896, v{vT}")
    a(f"v_lshrrev_b32 v{vT+1}, 4, v{vLane}")
    a(f"v_lshl_add_u32 v{vT}, v{vT+1}, 3, v{vT}")
    a(f"s_mul_i32 s{sT0}, s{sFl}, 9363")
    a(f"s_lshr_b32 s{sT0}, s{sT0}, 16")
    a(f"s_mul_i32 s{sT1}, s{sT0}, 7")
    a(f"s_sub_u32 s{sT1}, s{sFl}, s{sT1}")
    a(f"s_mul_i32 s{sT0}, s{sT0}, {16*896}")
    a(f"s_lshl_b32 s{sT1}, s{sT1}, 7")
    a(f"s_add_u32 s{sT0}, s{sT0}, s{sT1}")
    srd(a, sB, 10, D_BYTES)
    srd(a, sE, 12, D_BYTES)
    for i in range(4):
        r = FX + i * 4
        a(f"buffer_load_dwordx2 v[{r}:{r+1}], v{vT}, s[{sB}:{sB+3}], s{sT0} offen offset:{i*32}")
        a(f"buffer_load_dwordx2 v[{r+2}:{r+3}], v{vT}, s[{sE}:{sE+3}], s{sT0} offen offset:{i*32}")
    a(f"s_lshl_b32 s{sT1}, s{sRB}, 7")
    a(f"s_and_b32 s{sT2}, s{sFl}, 7")
    a(f"s_lshl_b32 s{sT2}, s{sT2}, 2")
    a(f"s_add_u32 s{sT1}, s{sT1}, s{sT2}")
    a(f"s_add_u32 s{sT1}, s{sT1}, {LFOFF}")
    a(f"v_mov_b32 v{vT+2}, 0")
    a("s_mov_b64 exec, 1")
    a(f"buffer_store_dword v{vT+2}, v{vT+2}, s[{sWS}:{sWS+3}], s{sT1} offen")
    if OPT("LFPRE", 1):
        a(f"buffer_load_dword v{vT+3}, v{vT+2}, s[{sWS}:{sWS+3}], s{sT1} offen sc1")
    a("s_mov_b64 exec, -1")
    a(f"s_getreg_b32 s{sByte}, hwreg(HW_REG_XCC_ID)")
    a(f"s_and_b32 s{sByte}, s{sByte}, 7")
    a(f"s_lshr_b32 s{sT1}, s{sRB}, 3")
    a(f"s_lshl_b32 s{sT1}, s{sT1}, 6")
    a(f"s_and_b32 s{sT2}, s{sRB}, 7")
    a(f"s_lshl_b32 s{sT2}, s{sT2}, 2")
    a(f"s_add_u32 s{sT1}, s{sT1}, s{sT2}")
    a(f"s_add_u32 s{sT1}, s{sT1}, 32")
    a(f"s_add_u32 s{sCl}, s56, s{sT1}")
    a(f"s_addc_u32 s{sCl+1}, s57, 0")
    a(f"s_cmp_ge_u32 s{sFl}, 196")
    a("s_cbranch_scc1 L_aux_nod")
    a(f"s_lshl_b32 s{sT0}, s{sFl}, 12")
    a(f"s_add_u32 s{sT0}, s{sT0}, {DOFF}")
    a("s_waitcnt vmcnt(0)")
    for i in range(4):
        r = FX + i * 4
        a(f"v_xor_b32 v{r+2}, 0x80008000, v{r+2}")
        a(f"v_xor_b32 v{r+3}, 0x80008000, v{r+3}")
        a(f"buffer_store_dwordx4 v[{r}:{r+3}], v{vL16}, s[{sWS}:{sWS+3}], s{sT0} offen offset:{i*1024} sc1")
    a.label("L_aux_nod")
    for k in range(NB1):
        a("s_barrier")
    a("s_waitcnt vmcnt(0)")
    a(f"s_and_b32 s{sT0}, s{sFl}, 7")
    a(f"s_mul_i32 s{sT0}, s{sT0}, 3")
    a(f"s_lshl_b32 s{sT0}, s{sByte}, s{sT0}")
    a(f"s_add_u32 s{sT0}, s{sT0}, 0x1000000")
    a(f"s_atomic_add s{sT0}, s[{sCl}:{sCl+1}], 0")
    a(f"s_cmp_ge_u32 s{sFl}, 196")
    a("s_cbranch_scc1 L_aux_nod2")
    a(f"s_mul_i32 s{sT1}, s{sFl}, 1338")
    a(f"s_lshr_b32 s{sT1}, s{sT1}, 16")
    a(f"s_lshl_b32 s{sT1}, s{sT1}, 6")
    a(f"s_add_u32 s{sDc}, s56, s{sT1}")
    a(f"s_addc_u32 s{sDc+1}, s57, 0")
    a(f"s_mov_b32 s{sT1}, 1")
    a(f"s_atomic_add s{sT1}, s[{sDc}:{sDc+1}], 0")
    a.label("L_aux_nod2")
    for k in range(NB1, NB2):
        a("s_barrier")
    a("s_waitcnt lgkmcnt(0)")
    a(f"s_lshl_b32 s{sT1}, s{sJ}, 6")
    a(f"s_add_u32 s{sDc}, s56, s{sT1}")
    a(f"s_addc_u32 s{sDc+1}, s57, 0")
    a(f"s_mov_b32 s{sT2}, 0")
    a(f"s_mov_b32 s{sT3}, 0")
    a(f"s_atomic_add s{sT2}, s[{sCl}:{sCl+1}], 0 glc")
    a(f"s_atomic_add s{sT3}, s[{sDc}:{sDc+1}], 0 glc")
    for k in range(NBG):
        a("s_barrier")
    a.label("L_poll1")
    a("s_waitcnt lgkmcnt(0)")
    a(f"s_add_u32 s{sIt}, s{sIt}, 1")
    a(f"s_lshr_b32 s{sT0}, s{sT2}, 24")
    a(f"s_and_b32 s{sT0}, s{sT0}, 15")
    a(f"s_lshl_b32 s{sT0}, s{sT0}, 8")
    a(f"s_add_u32 s{sT0}, s{sT0}, s{sT3}")
    a(f"s_cmp_eq_u32 s{sT0}, {8*256+49}")
    a("s_cbranch_scc1 L_poll1_done")
    a(f"s_cmp_ge_u32 s{sIt}, {SPIN}")
    a("s_cbranch_scc1 L_poll1_done")
    a("s_sleep 16")
    a(f"s_mov_b32 s{sT2}, 0")
    a(f"s_mov_b32 s{sT3}, 0")
    a(f"s_atomic_add s{sT2}, s[{sCl}:{sCl+1}], 0 glc")
    a(f"s_atomic_add s{sT3}, s[{sDc}:{sDc+1}], 0 glc")
    a("s_branch L_poll1")
    a.label("L_poll1_done")
    a(f"s_mul_i32 s{sT0}, s{sByte}, 0x249249")
    a(f"s_and_b32 s{sT2}, s{sT2}, 0xffffff")
    a(f"s_cmp_eq_u32 s{sT2}, s{sT0}")
    a(f"s_cselect_b32 s{sLoc}, {0 if OPT('FORCESLOW') else 1}, 0")
    a("s_branch L_aux_pre")
    a.label("L_aux7")
    if OPT("TLBPF", 0):
        srd(a, sA, 14, X_BYTES)
        a(f"v_lshlrev_b32 v{vCb}, 17, v{vLane}")
        a(f"buffer_load_dword v{vCb+1}, v{vCb}, s[{sWS}:{sWS+3}], 0 offen")
        a(f"s_mul_i32 s{sT0}, s{sRB}, {64*896}")
        a(f"v_lshlrev_b32 v{vCb}, 10, v{vLane}")
        a(f"buffer_load_dword v{vCb+1}, v{vCb}, s[{sA}:{sA+3}], s{sT0} offen")
    if OPT("CODEPF", 2) == 2:
        a("s_waitcnt vmcnt(0)")
    if OPT("CODEPF", 2) == 1:
        a("s_getpc_b64 s[60:61]")
        a.label("L_pc")
        a(f"s_sub_u32 s60, s60, L_pc-{NAME}")
        a("s_subb_u32 s61, s61, 0")
        a(f"v_lshlrev_b32 v{vT}, 7, v{vLane}")
        a(f"v_min_u32 v{vT}, L_end-{NAME}-4, v{vT}")
        a(f"global_load_dword v{vT+2}, v{vT}, s[60:61]")
        a("s_waitcnt vmcnt(0)")
    for k in range(NB2 + NBG):
        a("s_barrier")
        if k + 1 == OPT("PQPF7", 0):
            a(f"s_lshl_b32 s{sT0}, s{sH}, 7")
            a(f"s_lshl_b32 s{sT1}, s{sRB}, 2")
            a(f"s_add_u32 s{sT0}, s{sT0}, s{sT1}")
            a(f"s_mul_i32 s{sT0}, s{sT0}, 28")
            a(f"s_mul_i32 s{sT1}, s{sJ}, 7")
            a(f"s_add_u32 s{sT0}, s{sT0}, s{sT1}")
            a(f"s_lshl_b32 s{sT0}, s{sT0}, 10")
            a(f"v_lshlrev_b32 v{vCb}, 7, v{vLane}")
            a(f"v_min_u32 v{vCb}, {7168-128}, v{vCb}")
            for t in range(4):
                a(f"buffer_load_dword v{vCb+1}, v{vCb}, s[{sWS}:{sWS+3}], s{sT0} offen sc1")
                a(f"s_add_u32 s{sT0}, s{sT0}, {28*1024}")
    a.label("L_aux_pre")
    p2_offsets()
    dload_setup()
    nb = NB2 + NBG
    assert nb <= 13
    if OPT("DPF", 0):
        a(f"s_lshr_b32 s{sT0}, s2, 5")
        a(f"s_mul_i32 s{sT0}, s{sT0}, 25088")
        a(f"s_mul_i32 s{sT1}, s{sJ}, 200704")
        a(f"s_add_u32 s{sT0}, s{sT0}, s{sT1}")
        a(f"s_add_u32 s{sT0}, s{sT0}, {DOFF}")
        a(f"s_sub_u32 s{sT1}, s{sW}, 6")
        a(f"s_lshl_b32 s{sT1}, s{sT1}, 14")
        a(f"v_lshlrev_b32 v{vCb}, 7, v{vLane}")
        a(f"v_add_u32 v{vCb}, s{sT1}, v{vCb}")
        a(f"v_add_u32 v{vCb+1}, 8192, v{vCb}")
        a(f"v_min_u32 v{vCb+1}, {25088-128}, v{vCb+1}")
        a(f"buffer_load_dword v{vXb}, v{vCb}, s[{sWS}:{sWS+3}], s{sT0} offen sc1")
        a(f"buffer_load_dword v{vXb}, v{vCb+1}, s[{sWS}:{sWS+3}], s{sT0} offen sc1")
        for k in range(OPT("DPFGAP", 2)):
            a("s_barrier")
            nb += 1
    DS2 = [int(c) for c in os.environ.get("DSCHED2", "121")]
    nd = 0
    while nb < 16:
        a("s_barrier")
        nb += 1
        if nb - 1 == OPT("PQPF", 0):
            a(f"s_lshl_b32 s{sT0}, s{sH}, 7")
            a(f"s_lshl_b32 s{sT1}, s{sRB}, 2")
            a(f"s_add_u32 s{sT0}, s{sT0}, s{sT1}")
            a(f"s_sub_u32 s{sT1}, s{sW}, 6")
            a(f"s_lshl_b32 s{sT1}, s{sT1}, 1")
            a(f"s_add_u32 s{sT0}, s{sT0}, s{sT1}")
            a(f"s_mul_i32 s{sT0}, s{sT0}, 28")
            a(f"s_mul_i32 s{sT1}, s{sJ}, 7")
            a(f"s_add_u32 s{sT0}, s{sT0}, s{sT1}")
            a(f"s_lshl_b32 s{sT0}, s{sT0}, 10")
            a(f"s_add_u32 s{sT1}, s{sT0}, {28*1024}")
            a(f"v_lshlrev_b32 v{vCb}, 7, v{vLane}")
            a(f"v_min_u32 v{vCb}, {7168-128}, v{vCb}")
            a(f"buffer_load_dword v{vCb+1}, v{vCb}, s[{sWS}:{sWS+3}], s{sT0} offen sc1")
            a(f"buffer_load_dword v{vCb+1}, v{vCb}, s[{sWS}:{sWS+3}], s{sT1} offen sc1")
        if nb - 1 == OPT("CPF2", 0):
            a(f"s_getpc_b64 s[{sA}:{sA+1}]")
            a.label("L_pc2")
            a(f"s_sub_u32 s{sA}, s{sA}, L_pc2-{NAME}")
            a(f"s_subb_u32 s{sA+1}, s{sA+1}, 0")
            a(f"v_lshlrev_b32 v{vCb}, 7, v{vLane}")
            a(f"v_min_u32 v{vCb}, L_end-{NAME}-4, v{vCb}")
            a(f"global_load_dword v{vCb+1}, v{vCb}, s[{sA}:{sA+1}]")
        k = nb - 1 - (16 - len(DS2))
        if k >= 0:
            for q in range(nd, nd + DS2[k]):
                if OPT("RX", 4) == 0 and q >= 2:
                    continue
                for i in dloads(q):
                    a(i)
            nd += DS2[k]
    assert nd == 4
    a("s_branch L_p2")
    a.label("L_done")
    a("s_endpgm")
    a.label("L_end")
    return name, 256, 0, NSLOT * SLOT, 512


def main():
    a = Asm()
    a.raw('.amdgcn_target "amdgcn-amd-amdhsa--gfx950"')
    a.raw(".text")
    name, nv, na, lds, blk = gen(a)
    out = HEADER
    out += f"; @launch grid=(256,1,1) block=({blk},1,1) lds={lds}\n"
    txt = a.text()
    if OPT("REORD", 1):
        import re
        parts = re.split(r"^;;BLOCK (\w+)\n", txt, flags=re.M)
        blk = {"head": parts[0]}
        for k in range(1, len(parts), 2):
            blk[parts[k]] = parts[k + 1]
        if OPT("REORD", 1) == 2:
            rest, tail = blk["rest"].split("L_done:\n")
            txt = blk["head"] + blk["ld"] + rest + blk["comp"] + "L_done:\n" + tail
        else:
            txt = blk["head"] + blk["ld"] + blk["comp"] + blk["rest"]
    out += txt
    out += '.section .rodata,"a"\n'
    out += G.descriptor(name, nv, na)
    path = sys.argv[1] if len(sys.argv) > 1 else "standalone__spectral_fnet__prompt.s"
    open(path, "w").write(out)


if __name__ == "__main__":
    main()
```
